```python
import torch

def _softmax(x, axis=-1):
    return torch.softmax(x, dim=axis)
def _gelu(x):
    return torch.nn.functional.gelu(x, approximate="tanh")
def _silu(x):
    return torch.nn.functional.silu(x)
def _sigmoid(x):
    return torch.sigmoid(x)
def _layernorm(x, axis=-1, eps=1e-5):
    m = x.mean(dim=axis, keepdim=True)
    v = x.var(dim=axis, keepdim=True, unbiased=False)
    return (x - m) / torch.sqrt(v + eps)
def _scatter_add(tgt, idx, src, axis=0):
    return tgt.clone().index_add_(axis, idx, src)
def _segment_sum(src, seg, n):
    out = torch.zeros((n,) + src.shape[1:], dtype=src.dtype)
    return out.index_add_(0, seg, src)
def _pad(x, pw):
    flat = tuple(v for pair in reversed(pw) for v in pair)
    return torch.nn.functional.pad(x, flat)

kernel_name = 'recurrent_scan__sliding_block_cached__glu_gated_swiglu__decode'

def setup_inputs():

    _w = (lambda a: (lambda t: t.to(torch.bfloat16) if t.is_floating_point() else t)(torch.as_tensor(a)))
    def _A_setup():
        B, Sq, D = 1, 1, 640
        Hq, Hkv, Sk, Dh = 32, 32, 32768, 192
        assert Hq % Hkv == 0, (Hq, Hkv)
        return {
            "x": _w((lambda *s: torch.randn(*s, dtype=torch.bfloat16) * 0.05)(B, Sq, D)),
            "k_cache": _w((lambda *s: torch.randn(*s, dtype=torch.bfloat16) * 3.2)(B, Hkv, Sk, Dh)),
            "v_cache": _w((lambda *s: torch.randn(*s, dtype=torch.bfloat16) * 3.2)(B, Hkv, Sk, Dh)),
            "wq": _w((lambda *s: torch.randn(*s, dtype=torch.bfloat16) * 3.2)(D, Hq * Dh) * (D ** -0.5)),
            "wo": _w((lambda *s: torch.randn(*s, dtype=torch.bfloat16) * 3.2)(Hq * Dh, D) * ((Hq * Dh) ** -0.5)),
        }
    _A_in = _A_setup()

    def _B_setup():
        B, S, D, F = 1, 1, 640, 1536
        return {
            "x": _w((lambda *s: torch.randn(*s, dtype=torch.bfloat16) * 0.05)(B, S, D)),
            "w1": _w((lambda *s: torch.randn(*s, dtype=torch.bfloat16) * 0.4)(D, F) * (2.0 / D) ** 0.5),
            "w3": _w((lambda *s: torch.randn(*s, dtype=torch.bfloat16) * 0.4)(D, F) * (2.0 / D) ** 0.5),
            "w2": _w((lambda *s: torch.randn(*s, dtype=torch.bfloat16) * 0.4)(F, D) * (2.0 / F) ** 0.5),
        }
    _B_in = _B_setup()

    return {
        "A_x": _A_in["x"],
        "A_k_cache": _A_in["k_cache"],
        "A_v_cache": _A_in["v_cache"],
        "A_wq": _A_in["wq"],
        "A_wo": _A_in["wo"],
        "B_x": _B_in["x"],
        "B_w1": _B_in["w1"],
        "B_w3": _B_in["w3"],
        "B_w2": _B_in["w2"],
    }

def reference(A_x, A_k_cache, A_v_cache, A_wq, A_wo, B_x, B_w1, B_w3, B_w2):
    def _A_ref(x, k_cache, v_cache, wq, wo):
        B, Sq, D = x.shape
        Hq, Dh = 32, 192
        Hkv, Sk = k_cache.shape[1], k_cache.shape[2]
        W = min(4096, max(256, Sk // 4))
        rep = Hq // Hkv
        q = (lambda x, *d: x.permute(*d))((x @ wq).reshape(B, Sq, Hq, Dh), 0, 2, 1, 3)
        k = (lambda x, n, axis: torch.repeat_interleave(x, n, dim=axis))(k_cache[:, :, Sk - W:, :], rep, axis=1)
        v = (lambda x, n, axis: torch.repeat_interleave(x, n, dim=axis))(v_cache[:, :, Sk - W:, :], rep, axis=1)
        scores = torch.einsum("bhqd,bhkd->bhqk", q, k) * (Dh ** -0.5)
        p = _softmax(scores, axis=-1)
        o = torch.einsum("bhqk,bhkd->bhqd", p, v)
        return (lambda x, *d: x.permute(*d))(o, 0, 2, 1, 3).reshape(B, Sq, Hq * Dh) @ wo

    def _B_ref(x, w1, w3, w2):
        gate = torch.einsum("bsd,df->bsf", x, w1)
        up = torch.einsum("bsd,df->bsf", x, w3)
        h = _silu(gate) * up
        out = torch.einsum("bsf,fd->bsd", h, w2)
        return out

    x = A_x
    xn = _layernorm(x, axis=-1)
    s = _A_ref(xn, A_k_cache, A_v_cache, A_wq, A_wo)
    g = _silu(_B_ref(xn, B_w1, B_w3, B_w2))
    return x + s * g
```

```python
import re

TRANS = ("v_exp_f32", "v_log_f32", "v_rcp_f32", "v_rsq_f32", "v_sqrt_f32", "v_sin_f32", "v_cos_f32", "v_rcp_iflag_f32")
_tok = re.compile(r"^-?(?:abs\()?\|?([vsa])(\d+)\|?\)?$")
_rng = re.compile(r"^-?([vsa])\[(\d+):(\d+)\]$")

def regs_of(op):
    op = op.strip()
    m = _tok.match(op)
    if m:
        return {(m.group(1), int(m.group(2)))}
    m = _rng.match(op)
    if m:
        return {(m.group(1), i) for i in range(int(m.group(2)), int(m.group(3)) + 1)}
    if op in ("vcc", "vcc_lo", "vcc_hi"):
        return {("s", "vcc")}
    if op in ("exec", "exec_lo", "exec_hi"):
        return {("s", "exec")}
    if op == "m0":
        return {("s", "m0")}
    return set()

def split_ops(rest):
    ops, depth, cur = [], 0, ""
    for ch in rest:
        if ch in "[(": depth += 1
        if ch in "])": depth -= 1
        if ch == "," and depth == 0:
            ops.append(cur.strip()); cur = ""
        else:
            cur += ch
    if cur.strip():
        ops.append(cur.strip())
    mods = ""
    if ops:
        parts = ops[-1].split(None, 1)
        ops[-1] = parts[0]
        mods = parts[1] if len(parts) > 1 else ""
    return ops, mods

class Ins:
    def __init__(self, text):
        self.text = text
        t = text.split(";")[0].strip()
        parts = t.split(None, 1)
        self.mn = parts[0]
        ops, mods = split_ops(parts[1]) if len(parts) > 1 else ([], "")
        self.ops, self.mods = ops, mods
        mn = self.mn
        self.mfma = mn.startswith("v_mfma")
        self.valu = mn.startswith("v_") and not self.mfma
        self.vmem = mn.startswith(("buffer_", "global_"))
        self.ds = mn.startswith("ds_")
        self.salu = mn.startswith("s_")
        self.dpp = self.valu and ("_dpp" in mn)
        self.trans = mn.replace("_e32", "").replace("_e64", "") in TRANS
        self.dot = mn.startswith("v_dot")
        self.perml = mn.startswith("v_permlane")
        self.rdlane = mn.startswith(("v_readlane", "v_readfirstlane"))
        R = [regs_of(o) for o in ops]
        U = lambda l: set().union(*l) if l else set()
        self.w, self.r = set(), set()
        self.a = self.b = self.c = set()
        self.widestore = set()
        if self.mfma:
            self.w = R[0]; self.a, self.b, self.c = R[1], R[2], R[3]; self.r = U(R[1:])
        elif self.valu:
            if mn == "v_nop":
                pass
            elif self.perml:
                self.w = U(R); self.r = U(R)
            else:
                self.w = R[0]; self.r = U(R[1:])
                if mn.startswith(("v_dot2c", "v_fmac", "v_pk_fmac")) or self.dpp or mn.startswith("v_writelane"):
                    self.r |= R[0]
                if mn.startswith("v_dot2c"):
                    self.c = R[0]; self.a = U(R[1:])
                elif self.dot:
                    self.c = R[3]; self.a = U(R[1:3])
                if "_co_" in mn:
                    self.w |= R[1]; self.r = U(R[2:])
        elif self.vmem:
            if "lds" in mods.split():
                self.r = U(R) | {("s", "m0")}
            elif "_load" in mn:
                self.w = R[0]; self.r = U(R[1:])
            elif "_atomic" in mn:
                self.r = U(R)
                if "sc0" in mods.split(): self.w = R[0]
            else:
                self.r = U(R)
                if mn.endswith(("x3", "x4")):
                    self.widestore = R[0] if mn.startswith("buffer_") else R[1]
        elif self.ds:
            if mn.startswith(("ds_read", "ds_bpermute", "ds_permute", "ds_swizzle")) or "_rtn" in mn:
                self.w = R[0]; self.r = U(R[1:])
            else:
                self.r = U(R)
        elif self.salu:
            if mn.startswith(("s_cmp", "s_bitcmp", "s_cbranch", "s_branch", "s_waitcnt", "s_nop", "s_barrier", "s_sleep", "s_setprio", "s_endpgm")):
                self.r = U(R)
            else:
                self.w = R[0] if R else set(); self.r = U(R[1:])
                if "saveexec" in mn: self.w = self.w | {("s", "exec")}
        self.states = 1
        if mn == "s_nop":
            self.states = int(ops[0], 0) + 1

def isv(s):
    return {x for x in s if x[0] in ("v", "a")}
def iss(s):
    return {x for x in s if x[0] == "s"}

def need(p, c):
    n = 0
    if p.valu:
        wv, ws = isv(p.w), iss(p.w)
        if wv & c.r:
            if c.dpp: n = max(n, 2)
            if c.mfma: n = max(n, 2)
            if c.rdlane: n = max(n, 1)
            if c.perml: n = max(n, 2)
            if p.trans and (c.valu or c.mfma): n = max(n, 1)
        if p.dot and (wv & (c.r | c.w)):
            if c.dot and c.mn == p.mn and not (wv & c.a): pass
            else: n = max(n, 3)
        if ws & c.r:
            if c.valu: n = max(n, 4 if (c.rdlane or c.mn.startswith("v_writelane")) else 2)
            if c.vmem: n = max(n, 5)
            if c.salu: n = max(n, 1)
    if p.mfma:
        big = "32x32" in p.mn
        d = 12 if big else 8
        if c.mfma:
            if p.w & (c.a | c.b): n = max(n, d)
            if p.w & c.c and (p.w != c.c or p.mn != c.mn): n = max(n, d - 2)
            if p.w & c.w and not (p.w & c.c): n = max(n, d)
        elif p.w & (c.r | c.w):
            n = max(n, d)
        if c.valu and (p.c & c.w): n = max(n, 7 if big else 3)
    if p.widestore and (p.widestore & c.w):
        n = max(n, 2)
    if p.salu and ("s", "m0") in p.w and ("s", "m0") in c.r and (c.vmem or c.ds):
        n = max(n, 1)
    return n

class Asm:
    def __init__(self):
        self.items = []
    def __call__(self, s=""):
        for line in s.split("\n"):
            line = line.strip()
            if line:
                self.items.append(line)
    def raw(self, s):
        self.items.append(("raw", s))
    def finalize(self):
        at_label = {}
        for _pass in range(3):
            out = []
            hist = []
            nops = 0
            for it in self.items:
                if isinstance(it, tuple):
                    out.append(it[1]); continue
                if it.startswith((";", ".")):
                    out.append(it); continue
                if re.match(r"^[\w.$]+:$", it):
                    lab = it[:-1]
                    hist = hist + [[p, a] for p, a in at_label.get(lab, [])]
                    out.append(it); continue
                ins = Ins(it)
                pad = 0
                for p, age in hist:
                    pad = max(pad, need(p, ins) - age)
                if pad > 0:
                    out.append(f"    s_nop {pad-1}")
                    nops += 1
                    for h in hist: h[1] += pad
                out.append("    " + it)
                for h in hist: h[1] += ins.states
                hist = [h for h in hist if h[1] < 20]
                hist.append([ins, 0])
                if ins.mn.startswith(("s_cbranch", "s_branch")):
                    tgt = ins.ops[0]
                    at_label.setdefault(tgt, [])
                    at_label[tgt] = at_label[tgt] + [(p, a) for p, a in hist]
                if ins.mn in ("s_branch", "s_endpgm"):
                    hist = []
        self.nops = nops
        return "\n".join(out) + "\n"
```

```python
import sys, os
sys.path.insert(0, os.path.dirname(os.path.abspath(__file__)))
from asmlib import Asm

KNAME = "recurrent_scan__sliding_block_cached__glu_gated_swiglu__decode_kernel"
BOX = 5120
QP, GU, OP, ML, MP, SP = 0, 768, 1280, 2048, 2304, 2560
WS_USED = 256 * BOX
STAMP_OFF = 2 << 20
BOUND = 200000
L_FCLR, L_FQ, L_M, L_L, L_Q, L_ED, L_LP = 0, 4, 64, 96, 128, 1024, 16384
LP_STRIDE = 784
LDS_BYTES = 16384 + 8 * LP_STRIDE + 64
DPP = "row_mask:0xf bank_mask:0xf"
LOG2E = "0x3fb8aa3b"
SCALE = "0x3d93cd3a"
INV640 = "0x3acccccd"
EPS = "0x3727c5ac"

sWAVE, sH, sS, sB = "s3", "s4", "s5", "s6"
sK, sV, sWS, sX, sA, sBB, sDBG, sOUT = ("s[40:43]", "s[44:47]", "s[48:51]", "s[52:55]", "s[56:59]", "s[60:63]", "s[64:67]", "s[68:71]")
sCNT = "s15"
sBOX = "s14"
vL, vKV, vR, vC = "v0", "v1", "v2", "v3"
vM = [4, 5, 6, 7]
vQ = 8
vS = 20
vK, vV, vD, vA = 32, 128, 224, 236

def vr(a, n=4):
    return f"v[{a}:{a+n-1}]"

def gen(stamps=False, headmap="xcd", NC=80, nt="nt"):
    A = Asm()
    a = A
    nst = [0]
    def stamp(i):
        if stamps:
            a(f"s_memrealtime s[{72+2*i}:{73+2*i}]")
    def srd(dst, ptr, nbytes):
        d = int(dst[2:dst.index(":")])
        a(f"s_mov_b32 s{d}, s{ptr}")
        a(f"s_mov_b32 s{d+1}, s{ptr+1}")
        a(f"s_mov_b32 s{d+2}, {nbytes}")
        a(f"s_mov_b32 s{d+3}, 0x20000")
    def red8(regs, op="add"):
        for ctl in ("quad_perm:[1,0,3,2]", "quad_perm:[2,3,0,1]", "row_half_mirror"):
            for r in regs:
                a(f"v_{op}_f32_dpp v{r}, v{r}, v{r} {ctl} {DPP}")
    def red_hi(r, t, op="add"):
        a(f"v_{op}_f32_dpp v{r}, v{r}, v{r} row_ror:8 {DPP}")
        a(f"v_mov_b32 v{t}, v{r}")
        a(f"v_permlane16_swap_b32 v{r}, v{t}")
        a(f"v_{op}_f32 v{r}, v{r}, v{t}")
        a(f"v_mov_b32 v{t}, v{r}")
        a(f"v_permlane32_swap_b32 v{r}, v{t}")
        a(f"v_{op}_f32 v{r}, v{r}, v{t}")
    def rnd1(r):
        a(f"v_cvt_pk_bf16_f32 v{r}, v{r}, v{r}")
        a(f"v_lshlrev_b32 v{r}, 16, v{r}")
    def rnd2(r0, r1):
        a(f"v_cvt_pk_bf16_f32 v{r1}, v{r0}, v{r1}")
        a(f"v_lshlrev_b32 v{r0}, 16, v{r1}")
        a(f"v_and_b32 v{r1}, 0xffff0000, v{r1}")
    def mkA(dst, val):
        a(f"v_cvt_pk_bf16_f32 v{dst+3}, v{val}, v{val}")
        for w in range(4):
            a(f"v_and_b32 v{dst+w}, v{vM[w]}, v{dst+3}")
    def mfma(d, aa, b, first=False):
        a(f"v_mfma_f32_16x16x32_bf16 {vr(d)}, {vr(aa)}, {vr(b)}, {'0' if first else vr(d)}")
    def masks():
        a(f"v_and_b32 v28, 1, {vC}")
        a("v_lshlrev_b32 v28, 4, v28")
        a("v_mov_b32 v29, 0xffff")
        a("v_lshlrev_b32 v28, v28, v29")
        a(f"v_lshrrev_b32 v29, 1, {vC}")
        for w in range(4):
            a(f"v_cmp_eq_u32 vcc, {w}, v29")
            a(f"v_cndmask_b32 v{vM[w]}, 0, v28, vcc")
    lab = [0]
    def poll(body, check, sleep=0):
        lab[0] += 1
        n = lab[0]
        a(f"s_mov_b32 {sCNT}, {BOUND}")
        a(f"Lpoll{n}:")
        body()
        check()
        a(f"s_cbranch_vccz Lpdone{n}")
        if sleep: a(f"s_sleep {sleep}")
        a(f"s_sub_u32 {sCNT}, {sCNT}, 1")
        a(f"s_cbranch_scc0 Lpoll{n}")
        a(f"Lpdone{n}:")
    def lds_wait(off, sleep=2):
        def body():
            a(f"ds_read_b32 v28, v30 offset:{off}")
            a("s_waitcnt lgkmcnt(0)")
        def chk():
            a("v_cmp_eq_u32 vcc, 0, v28")
        a("v_mov_b32 v30, 0")
        poll(body, chk, sleep)
    def chk_invalid(regs, t):
        regs = list(regs)
        a(f"v_max3_u32 v{t}, v{regs[0]}, v{regs[1]}, v{regs[2]}")
        i = 3
        while i < len(regs):
            if i + 1 < len(regs):
                a(f"v_max3_u32 v{t}, v{t}, v{regs[i]}, v{regs[i+1]}"); i += 2
            else:
                a(f"v_max_u32 v{t}, v{t}, v{regs[i]}"); i += 1
        a(f"v_cmp_eq_u32 vcc, -1, v{t}")
    def all_flags():
        a(f"v_lshlrev_b32 v29, 2, {vL}")
        def body():
            a(f"buffer_load_dword v28, v29, {sDBG}, 0 offen sc1")
            a("s_waitcnt vmcnt(0)")
        def chk():
            a("v_cmp_ne_u32 vcc, 0x01010101, v28")
        poll(body, chk, 4)
    def silu(r, t):
        a(f"v_mul_f32 v{t}, 0xbfb8aa3b, v{r}")
        a(f"v_exp_f32 v{t}, v{t}")
        a(f"v_add_f32 v{t}, 1.0, v{t}")
        a(f"v_rcp_f32 v{t}, v{t}")
        a(f"v_mul_f32 v{r}, v{r}, v{t}")
    def pub_offsets(v2, v4):
        a(f"v_and_b32 v28, 16, {vL}")
        a(f"v_lshl_add_u32 v28, {vC}, 5, v28")
        a(f"v_lshrrev_b32 v29, 5, {vL}")
        if v2 is not None: a(f"v_lshl_add_u32 v{v2}, v29, 3, v28")
        if v4 is not None: a(f"v_lshl_add_u32 v{v4}, v29, 8, v28")
    def comb1(d):
        a(f"v_permlane32_swap_b32 v{d}, v{d+2}")
        a(f"v_permlane32_swap_b32 v{d+1}, v{d+3}")
        a(f"v_add_f32_dpp v{d}, v{d+2}, v{d} row_ror:8 {DPP}")
        a(f"v_add_f32_dpp v{d+1}, v{d+3}, v{d+1} row_ror:8 {DPP}")
    def comb2(d, e):
        for r in range(4): a(f"v_permlane32_swap_b32 v{d+r}, v{e+r}")
        for r in range(4): a(f"v_add_f32_dpp v{d+r}, v{e+r}, v{d+r} row_ror:8 {DPP}")
    def exec_pub():
        a("s_mov_b32 exec_lo, 0x00ff00ff")
        a("s_mov_b32 exec_hi, 0x00ff00ff")
    def exec_all():
        a("s_mov_b64 exec, -1")
    def kv_load(which, g):
        base, s = (vK, sK) if which == "k" else (vV, sV)
        for i in range(3):
            a(f"buffer_load_dwordx4 {vr(base + 12*g + 4*i)}, {vKV}, {s}, s{8 + g//2} offen offset:{(g%2)*3072 + i*128} {nt}")
    def kv_setup():
        srd(sK, 18, 402653184)
        srd(sV, 20, 402653184)
        a(f"s_mul_i32 s8, {sH}, 12582912")
        a(f"s_mul_i32 s9, {sS}, 196608")
        a(f"s_mul_i32 s10, {sWAVE}, 24576")
        a("s_add_u32 s8, s8, s9")
        a(f"s_add_u32 s10, s10, {28672*384}")
        a("s_add_u32 s8, s8, s10")
        a("s_add_u32 s9, s8, 6144")
        a("s_add_u32 s10, s8, 12288")
        a("s_add_u32 s11, s8, 18432")
        a(f"v_mul_u32_u24 {vKV}, 384, {vR}")
        a(f"v_lshl_add_u32 {vKV}, {vC}, 4, {vKV}")
    def read_q():
        a(f"v_lshlrev_b32 v28, 4, {vC}")
        for i in range(3):
            a(f"ds_read_b128 {vr(vQ + 4*i)}, v28 offset:{L_Q + 128*i}")
        for g in range(8):
            a(f"v_mov_b32 v{vS+g}, 0")
        a("s_waitcnt lgkmcnt(0)")
    def dots(gs):
        for i in range(12):
            for g in gs:
                a(f"v_dot2c_f32_bf16 v{vS+g}, v{vK + 12*g + i}, v{vQ+i}")
    def score_post(gs):
        red8([vS + g for g in gs])
        for j in range(0, len(gs), 2): rnd2(vS + gs[j], vS + gs[j+1])
        for g in gs: a(f"v_mul_f32 v{vS+g}, {SCALE}, v{vS+g}")
        for j in range(0, len(gs), 2): rnd2(vS + gs[j], vS + gs[j+1])
    def wave_max(dst):
        a(f"v_max3_f32 v{dst}, v{vS}, v{vS+1}, v{vS+2}")
        a(f"v_max3_f32 v{dst}, v{dst}, v{vS+3}, v{vS+4}")
        a(f"v_max3_f32 v{dst}, v{dst}, v{vS+5}, v{vS+6}")
        a(f"v_max_f32 v{dst}, v{dst}, v{vS+7}")
        red_hi(dst, 28, "max")
    def probs(m, l):
        for g in range(8): a(f"v_sub_f32 v{vS+g}, v{vS+g}, v{m}")
        for g in range(8): a(f"v_mul_f32 v{vS+g}, {LOG2E}, v{vS+g}")
        for g in range(8): a(f"v_exp_f32 v{vS+g}, v{vS+g}")
        a(f"v_add_f32 v{l}, v{vS}, v{vS+1}")
        for g in range(2, 8): a(f"v_add_f32 v{l}, v{l}, v{vS+g}")
        red_hi(l, 28, "add")
    def pv(first_zero, extra_out=0):
        for g in range(8):
            aa = vA + 4 * (g % 2)
            mkA(aa, vS + g)
            a(f"s_waitcnt vmcnt({21 - 3*g + extra_out})")
            for i in range(3):
                mfma(vD + 4*i, aa, vV + 12*g + 4*i, first_zero and g == 0)
    def dump_stamps():
        if not stamps: return
        a("s_branch L_dump")

    A.raw(f"; @launch grid=(256,1,1) block=(512,1,1) lds={LDS_BYTES}")
    A.raw('.amdgcn_target "amdgcn-amd-amdhsa--gfx950"')
    A.raw(".text")
    A.raw(f".globl {KNAME}")
    A.raw(".p2align 8")
    A.raw(f".type {KNAME},@function")
    a(f"{KNAME}:")
    if stamps:
        for i in range(15): a(f"s_mov_b64 s[{72+2*i}:{73+2*i}], 0")
    stamp(0)
    a("s_load_dwordx16 s[16:31], s[0:1], 0")
    a("s_load_dwordx8 s[32:39], s[0:1], 64")
    a("s_cmp_ge_u32 s2, 256")
    a("s_cbranch_scc1 L_end")
    a("v_lshrrev_b32 v1, 6, v0")
    a("v_mov_b32 v28, 0")
    a("v_mov_b32 v29, 0")
    a(f"v_readfirstlane_b32 {sWAVE}, v1")
    a("ds_write_b64 v28, v[28:29]")
    a("v_and_b32 v0, 63, v0")
    a(f"v_lshrrev_b32 {vR}, 3, {vL}")
    a(f"v_and_b32 {vC}, 7, {vL}")
    if headmap == "xcd":
        a(f"s_and_b32 {sH}, s2, 7")
        a("s_lshr_b32 s7, s2, 6")
        a("s_lshl_b32 s7, s7, 3")
        a(f"s_add_u32 {sH}, {sH}, s7")
        a(f"s_lshr_b32 {sS}, s2, 3")
        a(f"s_and_b32 {sS}, {sS}, 7")
        a(f"s_lshl_b32 {sB}, {sH}, 3")
        a(f"s_add_u32 {sB}, {sB}, {sS}")
    else:
        a(f"s_lshr_b32 {sH}, s2, 3")
        a(f"s_and_b32 {sS}, s2, 7")
        a(f"s_mov_b32 {sB}, s2")
    a(f"s_mul_i32 {sBOX}, {sB}, {BOX}")
    a("s_waitcnt lgkmcnt(0)")
    a("s_barrier")
    a(f"s_cmp_ge_u32 {sWAVE}, 4")
    a("s_cbranch_scc1 L_late")

    kv_setup()
    for g in range(8): kv_load("k", g)
    for g in range(8): kv_load("v", g)
    stamp(1)
    srd(sWS, 38, WS_USED)
    srd(sDBG, 36, 256)
    srd(sA, 24, 7864320)
    srd(sBB, 32, 1966080)
    masks()
    lds_wait(L_FQ)
    stamp(2)
    read_q()
    a("s_waitcnt vmcnt(24)")
    for g in range(0, 8, 2): dots([g, g + 1])
    score_post(list(range(8)))
    wave_max(244)
    probs(244, 245)
    pv(True)
    stamp(3)
    a(f"s_mul_i32 s7, {sWAVE}, 3072")
    a(f"v_lshl_add_u32 v28, {vL}, 4, s7")
    a(f"s_lshl_b32 s7, {sWAVE}, 2")
    a("v_mov_b32 v29, s7")
    for i in range(3):
        a(f"ds_write_b128 v28, {vr(vD + 4*i)} offset:{L_ED + 1024*i}")
    a(f"ds_write_b32 v29, v244 offset:{L_M}")
    a(f"ds_write_b32 v29, v245 offset:{L_L}")
    pub_offsets(246, 247)
    a(f"v_mul_u32_u24 v248, 3840, {vR}")
    a(f"v_lshl_add_u32 v248, {vC}, 4, v248")
    a(f"s_mul_i32 s8, {sB}, {24*1280}")
    a(f"s_mul_i32 s9, {sWAVE}, 384")
    a("s_add_u32 s8, s8, s9")
    a(f"v_mul_u32_u24 v250, {BOX}, {vC}")
    a(f"v_mul_u32_u24 v249, 12, {vR}")
    a("v_add_u32 v249, v249, v250")
    a(f"s_mul_i32 s10, {sH}, {8*BOX}")
    a(f"s_mul_i32 s11, {sS}, 96")
    a("s_add_u32 s11, s11, s10")
    a(f"s_mul_i32 s12, {sWAVE}, 768")
    a(f"s_add_u32 s12, s12, {sBOX}")
    a(f"s_cmp_eq_u32 {sWAVE}, 3")
    a("s_cbranch_scc1 L_e3")

    def o_gather():
        def body():
            a(f"buffer_load_dwordx3 v[8:10], v249, {sWS}, s11 offen offset:{OP} sc1")
            a(f"buffer_load_dwordx2 v[12:13], v250, {sWS}, s10 offen offset:{ML} sc1")
            a("s_waitcnt vmcnt(0)")
        def chk():
            chk_invalid([8, 9, 10, 12, 13], 28)
        poll(body, chk)
        stamp(6)
        a("v_mov_b32 v14, v12")
        red8([14], "max")
        a("v_sub_f32 v12, v12, v14")
        a(f"v_mul_f32 v12, {LOG2E}, v12")
        a("v_exp_f32 v12, v12")
        a("v_mul_f32 v13, v13, v12")
        for r in (8, 9, 10): a(f"v_mul_f32 v{r}, v{r}, v12")
        red8([13, 8, 9, 10])
        a("v_rcp_f32 v13, v13")
        for r in (8, 9, 10): a(f"v_mul_f32 v{r}, v{r}, v13")

    a("s_waitcnt lgkmcnt(0)")
    a("s_barrier")
    stamp(4)
    for li in range(3):
        for rb in range(3):
            a(f"buffer_load_dwordx4 {vr(vK + 4*(li*3+rb))}, v248, {sA}, s8 offen offset:{rb*1280 + li*128} {nt}")
    a("s_barrier")
    stamp(5)
    o_gather()
    for rb in range(3):
        mkA(16 + 4*rb, 8 + rb)
    for rb in range(3):
        for li in range(3):
            mfma(vD + 4*li, 16 + 4*rb, vK + 4*(li*3+rb), rb == 0)
    comb2(vD, vD + 4)
    comb1(vD + 8)
    exec_pub()
    a(f"buffer_store_dwordx4 {vr(vD)}, v247, {sWS}, s12 offen offset:{SP} sc1")
    a(f"buffer_store_dwordx2 {vr(vD+8,2)}, v246, {sWS}, s12 offen offset:{SP+512} sc1")
    stamp(7)
    dump_stamps()
    a("s_endpgm")

    a("L_e3:")
    a(f"s_sub_u32 s13, 255, {sB}")
    a("s_cmp_ge_u32 s13, 240")
    a("s_cbranch_scc1 L_e3_nomlp")
    all_flags()
    a("s_mul_i32 s7, s13, 6554")
    a("s_lshr_b32 s7, s7, 16")
    a("s_mul_i32 s9, s7, 10")
    a("s_sub_u32 s13, s13, s9")
    a(f"s_mul_i32 s9, s7, {8*BOX}")
    a(f"v_lshl_add_u32 v251, {vR}, 5, v250")
    def body():
        a(f"buffer_load_dwordx4 v[128:131], v251, {sWS}, s9 offen offset:{GU} sc1")
        a(f"buffer_load_dwordx4 v[132:135], v251, {sWS}, s9 offen offset:{GU+16} sc1")
        a(f"buffer_load_dwordx4 v[136:139], v251, {sWS}, s9 offen offset:{GU+256} sc1")
        a(f"buffer_load_dwordx4 v[140:143], v251, {sWS}, s9 offen offset:{GU+272} sc1")
        a("s_waitcnt vmcnt(0)")
    poll(body, lambda: chk_invalid(range(128, 144), 28), 4)
    red8(list(range(128, 144)))
    for j in range(128, 144, 2): rnd2(j, j + 1)
    for j in range(8): silu(128 + j, 144 + j)
    for j in range(128, 136, 2): rnd2(j, j + 1)
    for j in range(8): a(f"v_mul_f32 v{128+j}, v{128+j}, v{136+j}")
    for j in range(8): mkA(160 + 4*j, 128 + j)
    a(f"v_mul_u32_u24 v251, 10240, {vR}")
    a(f"v_lshl_add_u32 v251, {vC}, 4, v251")
    a("s_mul_i32 s7, s7, 81920")
    a("s_lshl_b32 s13, s13, 7")
    a("s_add_u32 s7, s7, s13")
    a("s_add_u32 s13, s7, 5120")
    a("s_waitcnt lgkmcnt(0)")
    a("s_barrier")
    stamp(4)
    for rb in range(8):
        a(f"buffer_load_dwordx4 {vr(64 + 4*rb)}, v251, {sBB}, {'s7' if rb < 4 else 's13'} offen offset:{(rb%4)*1280} {nt}")
    for rb in range(3):
        a(f"buffer_load_dwordx4 {vr(vK + 4*rb)}, v248, {sA}, s8 offen offset:{rb*1280} {nt}")
    a("s_barrier")
    stamp(5)
    a("s_waitcnt vmcnt(3)")
    for rb in range(8):
        mfma(vD + 4, 160 + 4*rb, 64 + 4*rb, rb == 0)
    comb1(vD + 4)
    exec_pub()
    a(f"buffer_store_dwordx2 {vr(vD+4,2)}, v246, {sWS}, {sBOX} offen offset:{MP} sc1")
    exec_all()
    a("s_branch L_e3_join")
    a("L_e3_nomlp:")
    a("s_waitcnt lgkmcnt(0)")
    a("s_barrier")
    stamp(4)
    for rb in range(3):
        a(f"buffer_load_dwordx4 {vr(vK + 4*rb)}, v248, {sA}, s8 offen offset:{rb*1280} {nt}")
    a("s_barrier")
    stamp(5)
    a("L_e3_join:")
    o_gather()
    for rb in range(3):
        mkA(16 + 4*rb, 8 + rb)
    for rb in range(3):
        mfma(vD, 16 + 4*rb, vK + 4*rb, rb == 0)
    comb1(vD)
    exec_pub()
    a(f"buffer_store_dwordx2 {vr(vD,2)}, v246, {sWS}, s12 offen offset:{SP} sc1")
    stamp(7)
    dump_stamps()
    a("s_endpgm")

    a("L_late:")
    a("s_setprio 3")
    srd(sX, 16, 1280)
    srd(sWS, 38, WS_USED)
    a(f"v_mul_u32_u24 v28, 20, {vL}")
    a(f"v_mul_u32_u24 v29, 20, {vR}")
    a(f"s_mul_i32 s7, {sS}, 160")
    def x_loads():
        a(f"buffer_load_dwordx4 v[128:131], v28, {sX}, 0 offen {nt}")
        a(f"buffer_load_dword v132, v28, {sX}, 0 offen offset:16 {nt}")
        a(f"buffer_load_dwordx4 v[134:137], v29, {sX}, s7 offen {nt}")
        a(f"buffer_load_dword v138, v29, {sX}, s7 offen offset:16 {nt}")
    def layernorm():
        for i in range(5):
            a(f"v_lshlrev_b32 v{140+2*i}, 16, v{128+i}")
            a(f"v_and_b32 v{141+2*i}, 0xffff0000, v{128+i}")
        a("v_add_f32 v160, v140, v141")
        for i in range(2, 10): a(f"v_add_f32 v160, v160, v{140+i}")
        red8([160]); red_hi(160, 161)
        a(f"v_mul_f32 v160, {INV640}, v160")
        for i in range(10): a(f"v_sub_f32 v{140+i}, v{140+i}, v160")
        a("v_mul_f32 v162, v140, v140")
        for i in range(1, 10): a(f"v_fmac_f32 v162, v{140+i}, v{140+i}")
        red8([162]); red_hi(162, 161)
        a(f"v_mul_f32 v162, {INV640}, v162")
        rnd2(160, 162)
        a(f"v_add_f32 v162, {EPS}, v162")
        rnd1(162)
        a("v_sqrt_f32 v162, v162")
        rnd1(162)
        a("v_rcp_f32 v162, v162")
        for i in range(5):
            a(f"v_lshlrev_b32 v{150+2*i}, 16, v{134+i}")
            a(f"v_and_b32 v{151+2*i}, 0xffff0000, v{134+i}")
        for i in range(10): a(f"v_sub_f32 v{150+i}, v{150+i}, v160")
        for i in range(0, 10, 2): rnd2(150 + i, 151 + i)
        for i in range(10): a(f"v_mul_f32 v{150+i}, v{150+i}, v162")
        for i in range(10): mkA(164 + 4*i, 150 + i)
    a(f"s_cmp_eq_u32 {sWAVE}, 7")
    a("s_cbranch_scc1 L_w7")
    x_loads()
    srd(sA, 22, 7864320)
    a(f"v_mul_u32_u24 v30, 122880, {vR}")
    a(f"v_lshl_add_u32 v30, {vC}, 4, v30")
    a(f"s_mul_i32 s8, {sS}, 983040")
    a(f"s_mul_i32 s9, {sH}, 384")
    a(f"s_lshl_b32 s10, {sWAVE}, 7")
    a("s_add_u32 s8, s8, s9")
    a("s_sub_u32 s10, s10, 512")
    a("s_add_u32 s8, s8, s10")
    for rb in range(10):
        a(f"buffer_load_dwordx4 {vr(vK + 4*rb)}, v30, {sA}, s8 offen {nt}")
        if rb < 9: a("s_add_u32 s8, s8, 12288")
    masks()
    pub_offsets(246, None)
    srd(sDBG, 36, 256)
    a("s_waitcnt vmcnt(10)")
    stamp(1)
    layernorm()
    for rb in range(10):
        a(f"s_waitcnt vmcnt({9-rb})")
        mfma(vD, 164 + 4*rb, vK + 4*rb, rb == 0)
    stamp(2)
    comb1(vD)
    lds_wait(L_FCLR, 1)
    a("s_lshl_b32 s10, s10, 1")
    a(f"s_add_u32 s10, s10, {sBOX}")
    exec_pub()
    a(f"buffer_store_dwordx2 {vr(vD,2)}, v246, {sWS}, s10 offen offset:{QP} sc1")
    exec_all()
    stamp(3)
    a(f"s_cmp_lg_u32 {sWAVE}, 4")
    a("s_cbranch_scc1 L_stream")
    a(f"s_lshl_b32 s7, {sH}, 3")
    a("s_mov_b64 exec, 1")
    def body():
        a(f"buffer_load_dwordx2 v[28:29], off, {sDBG}, s7 sc1")
        a("s_waitcnt vmcnt(0)")
    def chk():
        a("v_and_b32 v28, v28, v29")
        a("v_cmp_ne_u32 vcc, 0x01010101, v28")
    poll(body, chk, 2)
    stamp(4)
    a("s_mov_b32 exec_lo, -1")
    a("s_mov_b32 exec_hi, 0xffff")
    a(f"v_lshlrev_b32 v30, 4, {vL}")
    a(f"s_mul_i32 s8, {sH}, {8*BOX}")
    def body():
        a("s_mov_b32 s9, s8")
        for j in range(8):
            a(f"buffer_load_dwordx4 {vr(vK + 4*j)}, v30, {sWS}, s9 offen offset:{QP} sc1")
            if j < 7: a(f"s_add_u32 s9, s9, {BOX}")
        a("s_waitcnt vmcnt(0)")
    poll(body, lambda: chk_invalid(range(vK, vK + 32), 28))
    for j in range(1, 8):
        for r in range(4): a(f"v_add_f32 v{vK+r}, v{vK+r}, v{vK+4*j+r}")
    a(f"v_cvt_pk_bf16_f32 v{vK}, v{vK}, v{vK+1}")
    a(f"v_cvt_pk_bf16_f32 v{vK+1}, v{vK+2}, v{vK+3}")
    a(f"v_lshlrev_b32 v30, 3, {vL}")
    a(f"ds_write_b64 v30, {vr(vK,2)} offset:{L_Q}")
    a("v_mov_b32 v28, 1")
    a("v_mov_b32 v29, 0")
    a("s_waitcnt lgkmcnt(0)")
    a(f"ds_write_b32 v29, v28 offset:{L_FQ}")
    exec_all()
    stamp(5)
    a("s_branch L_stream")

    a("L_w7:")
    srd(sDBG, 36, 256)
    for r in range(4): a(f"v_mov_b32 v{140+r}, -1")
    a(f"v_lshlrev_b32 v30, 4, {vL}")
    a(f"s_add_u32 s8, {sBOX}, 4096")
    for i in range(4):
        a(f"buffer_store_dwordx4 v[140:143], v30, {sWS}, {sBOX} offen offset:{1024*i} sc1")
    a(f"buffer_store_dwordx4 v[140:143], v30, {sWS}, s8 offen sc1")
    a("v_mov_b32 v31, 0")
    a("v_mov_b32 v133, 1")
    a("s_waitcnt vmcnt(0)")
    stamp(1)
    a("s_mov_b64 exec, 1")
    a(f"buffer_store_byte v133, off, {sDBG}, {sB} sc1")
    a(f"ds_write_b32 v31, v133 offset:{L_FCLR}")
    exec_all()
    masks()
    a(f"s_cmp_ge_u32 {sB}, 192")
    a("s_cbranch_scc1 L_stream")
    a(f"v_mul_u32_u24 v28, 20, {vL}")
    a(f"v_mul_u32_u24 v29, 20, {vR}")
    x_loads()
    srd(sA, 28, 1966080)
    srd(sBB, 30, 1966080)
    a(f"v_mul_u32_u24 v30, 30720, {vR}")
    a(f"v_lshl_add_u32 v30, {vC}, 4, v30")
    a(f"s_mul_i32 s8, {sS}, 245760")
    a(f"s_lshl_b32 s9, {sH}, 7")
    a("s_add_u32 s8, s8, s9")
    for rb in range(10):
        a(f"buffer_load_dwordx4 {vr(vK + 8*rb)}, v30, {sA}, s8 offen {nt}")
        a(f"buffer_load_dwordx4 {vr(vK + 8*rb + 4)}, v30, {sBB}, s8 offen {nt}")
        if rb < 9: a("s_add_u32 s8, s8, 3072")
    pub_offsets(None, 247)
    a("s_waitcnt vmcnt(20)")
    layernorm()
    for rb in range(10):
        a(f"s_waitcnt vmcnt({18-2*rb})")
        mfma(vD, 164 + 4*rb, vK + 8*rb, rb == 0)
        mfma(vD + 4, 164 + 4*rb, vK + 8*rb + 4, rb == 0)
    stamp(2)
    comb2(vD, vD + 4)
    exec_pub()
    a(f"buffer_store_dwordx4 {vr(vD)}, v247, {sWS}, {sBOX} offen offset:{GU} sc1")
    exec_all()
    stamp(3)

    a("L_stream:")
    a("s_setprio 0")
    kv_setup()
    for g in range(8): kv_load("k", g)
    stamp(6)
    lds_wait(L_FQ)
    read_q()
    for g in range(8):
        kv_load("v", g)
        a("s_waitcnt vmcnt(24)")
        dots([g])
        if g == 3: score_post([0, 1, 2, 3])
    stamp(7)
    score_post([4, 5, 6, 7])
    wave_max(244)
    a(f"s_lshl_b32 s7, {sWAVE}, 2")
    a("v_mov_b32 v29, s7")
    a(f"ds_write_b32 v29, v244 offset:{L_M}")
    a(f"s_mul_i32 s7, {sWAVE}, 3072")
    a(f"s_sub_u32 s7, s7, {4*3072}")
    a(f"v_lshl_add_u32 v30, {vL}, 4, s7")
    a("v_mov_b32 v31, 0")
    a("s_waitcnt lgkmcnt(0)")
    a("s_barrier")
    stamp(8)
    a(f"ds_read_b128 v[32:35], v31 offset:{L_M}")
    a(f"ds_read_b128 v[36:39], v31 offset:{L_M+16}")
    a(f"ds_read_b32 v40, v29 offset:{L_M-16}")
    a(f"ds_read_b32 v41, v29 offset:{L_L-16}")
    for i in range(3):
        a(f"ds_read_b128 {vr(vD + 4*i)}, v30 offset:{L_ED + 1024*i}")
    a("s_waitcnt lgkmcnt(0)")
    a("v_max3_f32 v244, v32, v33, v34")
    a("v_max3_f32 v244, v244, v35, v36")
    a("v_max3_f32 v244, v244, v37, v38")
    a("v_max_f32 v244, v244, v39")
    a("v_sub_f32 v40, v40, v244")
    a(f"v_mul_f32 v40, {LOG2E}, v40")
    a("v_exp_f32 v40, v40")
    probs(244, 245)
    a("v_fmac_f32 v245, v40, v41")
    for i in range(12): a(f"v_mul_f32 v{vD+i}, v{vD+i}, v40")
    a(f"s_sub_u32 s7, {sWAVE}, 4")
    a(f"s_mul_i32 s7, s7, {2*LP_STRIDE}")
    a(f"v_lshrrev_b32 v29, 5, {vL}")
    a(f"v_mul_u32_u24 v29, {LP_STRIDE}, v29")
    a("v_add_u32 v29, s7, v29")
    a(f"v_and_b32 v28, 16, {vL}")
    a(f"v_lshl_add_u32 v28, {vC}, 5, v28")
    a("v_add_u32 v30, v28, v29")
    a("v_cmp_eq_u32 vcc, 0, v29")
    a("v_cndmask_b32 v32, 0, v244, vcc")
    a(f"v_cmp_gt_u32 vcc, 32, {vL}")
    a("v_cndmask_b32 v33, 0, v245, vcc")
    a("v_mov_b32 v34, 0")
    a("v_mov_b32 v35, 0")
    a(f"ds_write_b128 v29, v[32:35] offset:{L_LP + 768}")
    a(f"v_lshlrev_b32 v31, 4, {vL}")
    pv(False)
    stamp(9)
    a("s_mov_b32 exec_lo, 0x00ff00ff")
    a("s_mov_b32 exec_hi, 0xff00ff00")
    for i in range(3):
        a(f"ds_write_b128 v30, {vr(vD + 4*i)} offset:{L_LP + 256*i}")
    exec_all()
    a("s_waitcnt lgkmcnt(0)")
    a("s_barrier")
    stamp(10)
    a(f"s_cmp_eq_u32 {sWAVE}, 5")
    a("s_cbranch_scc1 L_final")
    a(f"s_cmp_lg_u32 {sWAVE}, 4")
    a("s_cbranch_scc1 L_done")
    a("s_mov_b32 exec_hi, 0x1ffff")
    for j in range(8):
        a(f"ds_read_b128 {vr(32 + 4*j)}, v31 offset:{L_LP + LP_STRIDE*j}")
    a("s_waitcnt lgkmcnt(0)")
    for step in (16, 8, 4):
        for j in range(0, step, 2):
            a(f"v_pk_add_f32 {vr(32+j,2)}, {vr(32+j,2)}, {vr(32+step+j,2)}")
    a(f"buffer_store_dwordx4 v[32:35], v31, {sWS}, {sBOX} offen offset:{OP} sc1")
    stamp(11)
    a("L_done:")
    dump_stamps()
    a("s_endpgm")

    cols = 640 // NC
    LPn = cols // 4
    sh = {1: 0, 2: 1, 4: 2}[LPn]
    per = 64 // LPn
    nld = 256 // per
    a("L_final:")
    a(f"s_cmp_ge_u32 s2, {NC}")
    a("s_cbranch_scc1 L_done")
    srd(sOUT, 34, 1280)
    all_flags()
    a(f"v_lshrrev_b32 v8, {sh}, {vL}")
    a(f"v_and_b32 v9, {LPn-1}, {vL}")
    a(f"s_mul_i32 s7, s2, {cols}")
    a(f"v_lshrrev_b32 v10, 4, {vL}")
    a("v_lshl_add_u32 v10, v9, 2, v10")
    a("v_add_u32 v10, s7, v10")
    a("v_lshlrev_b32 v10, 1, v10")
    a(f"buffer_load_ushort v11, v10, {sX}, 0 offen")
    a("s_lshr_b32 s8, s7, 6")
    a("s_and_b32 s9, s7, 63")
    a("s_lshl_b32 s9, s9, 2")
    a("s_sub_u32 s8, 255, s8")
    a(f"s_mul_i32 s8, s8, {BOX}")
    a("s_add_u32 s8, s8, s9")
    nmp = (24 + per - 1) // per
    for i in range(nmp):
        a(f"v_add_u32 v12, {i*per}, v8")
        a(f"v_mul_u32_u24 v13, {10*BOX}, v12")
        a("v_sub_u32 v13, s8, v13")
        a("v_lshl_add_u32 v13, v9, 4, v13")
        a("v_cmp_gt_u32 vcc, 24, v12")
        a("v_mov_b32 v12, 0x7ffffff0")
        a(f"v_cndmask_b32 v{14+i}, v12, v13, vcc")
    def body():
        for i in range(nmp):
            a(f"buffer_load_dwordx4 {vr(32+4*i)}, v{14+i}, {sWS}, 0 offen offset:{MP} sc1")
        a("s_waitcnt vmcnt(0)")
    poll(body, lambda: chk_invalid(range(32, 32 + 4*nmp), 28), 2)
    def lane_reduce(d):
        a(f"v_permlane32_swap_b32 v{d}, v{d+2}")
        a(f"v_permlane32_swap_b32 v{d+1}, v{d+3}")
        a(f"v_add_f32 v{d}, v{d}, v{d+2}")
        a(f"v_add_f32 v{d+1}, v{d+1}, v{d+3}")
        a(f"v_permlane16_swap_b32 v{d}, v{d+1}")
        a(f"v_add_f32 v{d}, v{d}, v{d+1}")
        for k in (8, 4, 2, 1):
            if k >= LPn:
                a(f"v_add_f32_dpp v{d}, v{d}, v{d} row_ror:{k} {DPP}")
    if nmp == 2:
        for r in range(4): a(f"v_add_f32 v{32+r}, v{32+r}, v{36+r}")
    lane_reduce(32)
    rnd1(32)
    silu(32, 33)
    rnd1(32)
    a("v_mov_b32 v16, v32")
    a("v_lshlrev_b32 v11, 16, v11")
    stamp(11)
    a(f"v_mul_u32_u24 v12, {BOX}, v8")
    a("v_lshl_add_u32 v12, v9, 4, v12")
    a("s_lshl_b32 s8, s7, 2")
    def body():
        a("s_mov_b32 s9, s8")
        for i in range(nld):
            a(f"buffer_load_dwordx4 {vr(32+4*i)}, v12, {sWS}, s9 offen offset:{SP} sc1")
            if i < nld - 1: a(f"s_add_u32 s9, s9, {per*BOX}")
        a("s_waitcnt vmcnt(0)")
    poll(body, lambda: chk_invalid(range(32, 32 + 4*nld), 28))
    stamp(12)
    step = 2 * nld
    while step >= 4:
        for j in range(0, step, 2):
            a(f"v_pk_add_f32 {vr(32+j,2)}, {vr(32+j,2)}, {vr(32+step+j,2)}")
        step //= 2
    lane_reduce(32)
    rnd1(32)
    a("v_mul_f32 v32, v32, v16")
    rnd1(32)
    a("v_add_f32 v32, v32, v11")
    a("v_cvt_pk_bf16_f32 v32, v32, v32")
    m16 = (1 << LPn) - 1
    a(f"s_mov_b32 exec_lo, {hex(m16 | m16 << 16)}")
    a(f"s_mov_b32 exec_hi, {hex(m16 | m16 << 16)}")
    a(f"buffer_store_short v32, v10, {sOUT}, 0 offen")
    stamp(13)
    dump_stamps()
    if stamps:
        a("L_dump:")
        exec_all()
        a("s_waitcnt vmcnt(0)")
        stamp(14)
        a("s_waitcnt lgkmcnt(0)")
        a("v_mov_b32 v4, 0")
        for i in range(15):
            a(f"v_mov_b32 v5, s{72+2*i}")
            a(f"v_cmp_eq_u32 vcc, {i}, v0")
            a("v_cndmask_b32 v4, v4, v5, vcc")
        srd(sWS, 38, "0x10000000")
        a("s_lshl_b32 s7, s2, 3")
        a(f"s_add_u32 s7, s7, {sWAVE}")
        a("s_lshl_b32 s7, s7, 6")
        a(f"s_add_u32 s7, s7, {STAMP_OFF}")
        a("v_lshlrev_b32 v3, 2, v0")
        a("s_mov_b64 exec, 0xffff")
        a(f"buffer_store_dword v4, v3, {sWS}, s7 offen")
    a("L_end:")
    a("s_endpgm")
    A.raw('.section .rodata,"a"')
    A.raw(".p2align 6")
    A.raw(f".amdhsa_kernel {KNAME}")
    A.raw("  .amdhsa_next_free_vgpr 256")
    A.raw("  .amdhsa_next_free_sgpr 102")
    A.raw("  .amdhsa_accum_offset 256")
    A.raw("  .amdhsa_group_segment_fixed_size 0")
    A.raw("  .amdhsa_kernarg_size 96")
    A.raw("  .amdhsa_user_sgpr_count 2")
    A.raw("  .amdhsa_user_sgpr_kernarg_segment_ptr 1")
    A.raw("  .amdhsa_system_sgpr_workgroup_id_x 1")
    A.raw("  .amdhsa_float_denorm_mode_32 3")
    A.raw(".end_amdhsa_kernel")
    return A.finalize()

if __name__ == "__main__":
    out = sys.argv[1]
    kw = {}
    for x in sys.argv[2:]:
        k, v = x.split("=")
        kw[k] = eval(v) if v[0].isdigit() or v in ("True", "False") else v
    open(out, "w").write(gen(**kw))
```

```python
import sys, os
sys.path.insert(0, os.path.dirname(os.path.abspath(__file__)))
from asmlib import Asm

KNAME = "recurrent_scan__sliding_block_cached__glu_gated_swiglu__decode_kernel"
BOX = 5120
QP, GU, OP, ML, MP, SP = 0, 768, 1280, 2048, 2304, 2560
WS_USED = 256 * BOX
STAMP_OFF = 2 << 20
BOUND = 200000
L_FCLR, L_M, L_Q, L_ROW = 0, 64, 128, 1024
ROWS = 784
LDS_BYTES = 1024 + 16 * ROWS
DPP = "row_mask:0xf bank_mask:0xf"
LOG2E = "0x3fb8aa3b"
SCALE = "0x3d93cd3a"
INV640 = "0x3acccccd"
EPS = "0x3727c5ac"

sWAVE, sH, sS, sB = "s3", "s4", "s5", "s6"
sK, sV, sWS, sX, sA, sBB, sDBG, sOUT = ("s[40:43]", "s[44:47]", "s[48:51]", "s[52:55]", "s[56:59]", "s[60:63]", "s[64:67]", "s[68:71]")
sCNT = "s15"
sBOX = "s14"
vL, vKV, vR, vC = "v0", "v1", "v2", "v3"
vM = [4, 5, 6, 7]
vQ = 8
vS = 20
vK, vV, vD, vA = 32, 128, 224, 236

def vr(a, n=4):
    return f"v[{a}:{a+n-1}]"

def gen(stamps=False, headmap="xcd", NC=80, nt="nt", W=7, pretouch=True, warm=True, prepoll=3, outsc="", xnt="", est=False):
    A = Asm()
    a = A
    def stamp(i):
        if stamps:
            a(f"s_memrealtime s[{72+2*i}:{73+2*i}]")
    def srd(dst, ptr, nbytes):
        d = int(dst[2:dst.index(":")])
        a(f"s_mov_b64 s[{d}:{d+1}], s[{ptr}:{ptr+1}]")
        a(f"s_mov_b32 s{d+2}, {nbytes}")
        a(f"s_mov_b32 s{d+3}, 0x20000")
    def red8(regs, op="add"):
        for ctl in ("quad_perm:[1,0,3,2]", "quad_perm:[2,3,0,1]", "row_half_mirror"):
            for r in regs:
                a(f"v_{op}_f32_dpp v{r}, v{r}, v{r} {ctl} {DPP}")
    def red_hi(r, t, op="add"):
        a(f"v_{op}_f32_dpp v{r}, v{r}, v{r} row_ror:8 {DPP}")
        a(f"v_mov_b32 v{t}, v{r}")
        a(f"v_permlane16_swap_b32 v{r}, v{t}")
        a(f"v_{op}_f32 v{r}, v{r}, v{t}")
        a(f"v_mov_b32 v{t}, v{r}")
        a(f"v_permlane32_swap_b32 v{r}, v{t}")
        a(f"v_{op}_f32 v{r}, v{r}, v{t}")
    def rnd1(r):
        a(f"v_cvt_pk_bf16_f32 v{r}, v{r}, v{r}")
        a(f"v_lshlrev_b32 v{r}, 16, v{r}")
    def rnd2(r0, r1):
        a(f"v_cvt_pk_bf16_f32 v{r1}, v{r0}, v{r1}")
        a(f"v_lshlrev_b32 v{r0}, 16, v{r1}")
        a(f"v_and_b32 v{r1}, 0xffff0000, v{r1}")
    def mkA(dst, val):
        a(f"v_cvt_pk_bf16_f32 v{dst+3}, v{val}, v{val}")
        for w in range(4):
            a(f"v_and_b32 v{dst+w}, v{vM[w]}, v{dst+3}")
    def mfma(d, aa, b, first=False):
        a(f"v_mfma_f32_16x16x32_bf16 {vr(d)}, {vr(aa)}, {vr(b)}, {'0' if first else vr(d)}")
    def masks():
        a(f"v_and_b32 v28, 1, {vC}")
        a("v_lshlrev_b32 v28, 4, v28")
        a("v_mov_b32 v29, 0xffff")
        a("v_lshlrev_b32 v28, v28, v29")
        a(f"v_lshrrev_b32 v29, 1, {vC}")
        for w in range(4):
            a(f"v_cmp_eq_u32 vcc, {w}, v29")
            a(f"v_cndmask_b32 v{vM[w]}, 0, v28, vcc")
    lab = [0]
    def poll(body, check, sleep=0):
        lab[0] += 1
        n = lab[0]
        a(f"s_mov_b32 {sCNT}, {BOUND}")
        a(f"Lpoll{n}:")
        body()
        check()
        a(f"s_cbranch_vccz Lpdone{n}")
        if sleep: a(f"s_sleep {sleep}")
        a(f"s_sub_u32 {sCNT}, {sCNT}, 1")
        a(f"s_cbranch_scc0 Lpoll{n}")
        a(f"Lpdone{n}:")
    def chk_invalid(regs, t):
        regs = list(regs)
        a(f"v_max3_u32 v{t}, v{regs[0]}, v{regs[1]}, v{regs[2]}")
        i = 3
        while i < len(regs):
            if i + 1 < len(regs):
                a(f"v_max3_u32 v{t}, v{t}, v{regs[i]}, v{regs[i+1]}"); i += 2
            else:
                a(f"v_max_u32 v{t}, v{t}, v{regs[i]}"); i += 1
        a(f"v_cmp_eq_u32 vcc, -1, v{t}")
    def silu(r, t):
        a(f"v_mul_f32 v{t}, 0xbfb8aa3b, v{r}")
        a(f"v_exp_f32 v{t}, v{t}")
        a(f"v_add_f32 v{t}, 1.0, v{t}")
        a(f"v_rcp_f32 v{t}, v{t}")
        a(f"v_mul_f32 v{r}, v{r}, v{t}")
    def pub_offsets(v2, v4):
        a(f"v_and_b32 v28, 16, {vL}")
        a(f"v_lshl_add_u32 v28, {vC}, 5, v28")
        a(f"v_lshrrev_b32 v29, 5, {vL}")
        if v2 is not None: a(f"v_lshl_add_u32 v{v2}, v29, 3, v28")
        if v4 is not None: a(f"v_lshl_add_u32 v{v4}, v29, 8, v28")
    def comb1(d):
        a(f"v_permlane32_swap_b32 v{d}, v{d+2}")
        a(f"v_permlane32_swap_b32 v{d+1}, v{d+3}")
        a(f"v_add_f32_dpp v{d}, v{d+2}, v{d} row_ror:8 {DPP}")
        a(f"v_add_f32_dpp v{d+1}, v{d+3}, v{d+1} row_ror:8 {DPP}")
    def comb2(d, e):
        for r in range(4): a(f"v_permlane32_swap_b32 v{d+r}, v{e+r}")
        for r in range(4): a(f"v_add_f32_dpp v{d+r}, v{e+r}, v{d+r} row_ror:8 {DPP}")
    def exec_pub():
        a("s_mov_b32 exec_lo, 0x00ff00ff")
        a("s_mov_b32 exec_hi, 0x00ff00ff")
    def exec_all():
        a("s_mov_b64 exec, -1")
    def dots(gs):
        for i in range(12):
            for g in gs:
                a(f"v_dot2c_f32_bf16 v{vS+g}, v{vK + 12*g + i}, v{vQ+i}")
    def score_post(gs):
        red8([vS + g for g in gs])
        for j in range(0, len(gs), 2): rnd2(vS + gs[j], vS + gs[j+1])
        for g in gs: a(f"v_mul_f32 v{vS+g}, {SCALE}, v{vS+g}")
        for j in range(0, len(gs), 2): rnd2(vS + gs[j], vS + gs[j+1])
    def end_wave():
        if stamps: a("s_branch L_dump")
        else: a("s_endpgm")
    pads = [0]
    def pad():
        if warm:
            pads[0] += 1
            a(f"L_pad{pads[0]}:")
            a(f"s_branch L_pad{pads[0]+1}")

    A.raw(f"; @launch grid=(256,1,1) block=(512,1,1) lds={LDS_BYTES}")
    A.raw('.amdgcn_target "amdgcn-amd-amdhsa--gfx950"')
    A.raw(".text")
    A.raw(f".globl {KNAME}")
    A.raw(".p2align 8")
    A.raw(f".type {KNAME},@function")
    a(f"{KNAME}:")
    stamp(0)
    a("s_load_dwordx2 s[40:41], s[0:1], 8")
    a("s_load_dwordx2 s[44:45], s[0:1], 16")
    a("s_load_dwordx16 s[16:31], s[0:1], 0")
    a("s_load_dwordx8 s[32:39], s[0:1], 64")
    a("v_lshrrev_b32 v1, 6, v0")
    a("s_cmpk_ge_u32 s2, 256")
    a("s_cbranch_scc1 L_end")
    a(f"v_readfirstlane_b32 {sWAVE}, v1")
    a("v_and_b32 v0, 63, v0")
    a(f"v_lshrrev_b32 {vR}, 3, {vL}")
    a(f"v_and_b32 {vC}, 7, {vL}")
    if headmap == "xcd":
        a(f"s_and_b32 {sH}, s2, 7")
        a("s_lshr_b32 s7, s2, 6")
        a(f"s_lshl3_add_u32 {sH}, s7, {sH}")
        a(f"s_lshr_b32 {sS}, s2, 3")
        a(f"s_and_b32 {sS}, {sS}, 7")
    else:
        a(f"s_lshr_b32 {sH}, s2, 3")
        a(f"s_and_b32 {sS}, s2, 7")
    a(f"s_mul_i32 s8, {sH}, 12582912")
    a(f"s_lshl2_add_u32 s9, {sS}, {sWAVE}")
    a("s_mov_b32 s42, 402653184")
    a("s_mov_b32 s43, 0x20000")
    a(f"s_cmp_ge_u32 {sWAVE}, 4")
    a("s_cbranch_scc1 L_late")

    a("L_stream:")
    a("s_mulk_i32 s9, 3072")
    a(f"s_add_u32 s8, s8, {28672*384}")
    a(f"v_mul_u32_u24 {vKV}, 384, {vR}")
    a("s_add_u32 s8, s8, s9")
    a(f"v_lshl_add_u32 {vKV}, {vC}, 4, {vKV}")
    a("s_mov_b32 s9, s8")
    a("s_mov_b32 s10, 98304")
    a("s_waitcnt lgkmcnt(0)")
    n = [0]
    def kv_load(which, g):
        base, s, so = (vK, sK, "s8") if which == "k" else (vV, sV, "s9")
        for i in range(3):
            if n[0] >= W: a(f"s_waitcnt vmcnt({W-1})")
            a(f"buffer_load_dwordx4 {vr(base + 12*g + 4*i)}, {vKV}, {s}, {so} offen offset:{i*128} {nt}")
            n[0] += 1
            if est and n[0] == W + 1: stamp(13)
            if est and n[0] == 2*W: stamp(5)
            if n[0] == W:
                a("s_mov_b64 s[46:47], s[42:43]")
                a(f"s_cmp_ge_u32 {sWAVE}, 4")
                a("s_cbranch_scc1 L_skip0")
                if stamps:
                    for j in range(1, 15): a(f"s_mov_b64 s[{72+2*j}:{73+2*j}], 0")
                a(f"s_lshl3_add_u32 {sB}, {sH}, {sS}")
                a(f"s_mul_i32 {sBOX}, {sB}, {BOX}")
                masks()
                a("s_barrier")
                a("L_skip0:")
        if g < 7: a(f"s_add_u32 {so}, {so}, s10")
    for g in range(8): kv_load("k", g)
    stamp(6)
    for g in range(8):
        kv_load("v", g)
        if g == 4:
            a(f"s_cmp_ge_u32 {sWAVE}, 4")
            a("s_cbranch_scc1 L_skipq")
            stamp(1)
            a("s_barrier")
            stamp(2)
            a("L_skipq:")
            a(f"v_lshlrev_b32 v28, 4, {vC}")
            for i in range(3):
                a(f"ds_read_b128 {vr(vQ + 4*i)}, v28 offset:{L_Q + 128*i}")
            for j in range(8):
                a(f"v_mov_b32 v{vS+j}, 0")
            a("s_waitcnt lgkmcnt(0)")
            dots([0, 1, 2, 3]); score_post([0, 1, 2, 3])
        if g == 5:
            dots([4, 5, 6, 7]); score_post([4, 5, 6, 7])
        if g == 6:
            a(f"v_max3_f32 v244, v{vS}, v{vS+1}, v{vS+2}")
            a(f"v_max3_f32 v244, v244, v{vS+3}, v{vS+4}")
            a(f"v_max3_f32 v244, v244, v{vS+5}, v{vS+6}")
            a(f"v_max_f32 v244, v244, v{vS+7}")
            red_hi(244, 28, "max")
            a(f"s_lshl_b32 s7, {sWAVE}, 2")
            a("v_mov_b32 v29, s7")
            a(f"ds_write_b32 v29, v244 offset:{L_M}")
            for j in range(8): a(f"v_sub_f32 v{vS+j}, v{vS+j}, v244")
            for j in range(8): a(f"v_mul_f32 v{vS+j}, {LOG2E}, v{vS+j}")
            for j in range(8): a(f"v_exp_f32 v{vS+j}, v{vS+j}")
    stamp(7)
    a("s_waitcnt lgkmcnt(0)")
    a("s_barrier")
    stamp(8)
    a(f"v_add_f32 v33, v{vS}, v{vS+1}")
    for j in range(2, 8): a(f"v_add_f32 v33, v33, v{vS+j}")
    red_hi(33, 28, "add")
    a(f"s_mul_i32 s7, {sWAVE}, {2*ROWS}")
    a(f"v_lshrrev_b32 v29, 5, {vL}")
    a(f"v_mul_u32_u24 v29, {ROWS}, v29")
    a("v_add_u32 v29, s7, v29")
    a(f"v_and_b32 v28, 16, {vL}")
    a(f"v_lshl_add_u32 v28, {vC}, 5, v28")
    a("v_add_u32 v30, v28, v29")
    a(f"v_cmp_gt_u32 vcc, 32, {vL}")
    a("v_mov_b32 v32, 0")
    a("v_mov_b32 v34, 0")
    a("v_mov_b32 v35, 0")
    a("v_cndmask_b32 v33, 0, v33, vcc")
    a(f"ds_write_b128 v29, v[32:35] offset:{L_ROW + 768}")
    for g in range(8):
        aa = vA + 4 * (g % 2)
        mkA(aa, vS + g)
        for i in range(3):
            k = 23 - 3*g - i
            if k < W: a(f"s_waitcnt vmcnt({k})")
            mfma(vD + 4*i, aa, vV + 12*g + 4*i, g == 0)
    stamp(9)
    a("s_mov_b32 exec_lo, 0x00ff00ff")
    a("s_mov_b32 exec_hi, 0xff00ff00")
    a(f"s_cmp_lt_u32 {sWAVE}, 4")
    for i in range(3):
        a(f"ds_write_b128 v30, {vr(vD + 4*i)} offset:{L_ROW + 256*i}")
    exec_all()
    a("s_cbranch_scc1 L_early")
    a("s_waitcnt lgkmcnt(0)")
    a("s_barrier")
    stamp(10)

    cols = 640 // NC
    LPn = cols // 4
    sh = {1: 0, 2: 1, 4: 2}[LPn]
    per = 64 // LPn
    nld = 256 // per
    a(f"s_cmp_lg_u32 {sWAVE}, 5")
    a("s_cbranch_scc1 L_done")
    a(f"s_cmpk_ge_u32 s2, {NC}")
    a("s_cbranch_scc1 L_done")
    srd(sX, 16, 1280)
    srd(sWS, 38, WS_USED)
    srd(sOUT, 34, 1280)
    a(f"v_lshrrev_b32 v8, {sh}, {vL}")
    a(f"v_and_b32 v9, {LPn-1}, {vL}")
    a(f"s_mul_i32 s7, s2, {cols}")
    a(f"v_lshrrev_b32 v10, 4, {vL}")
    a("v_lshl_add_u32 v10, v9, 2, v10")
    a("v_add_u32 v10, s7, v10")
    a("v_lshlrev_b32 v10, 1, v10")
    a(f"buffer_load_ushort v11, v10, {sX}, 0 offen")
    a("s_lshr_b32 s8, s7, 6")
    a("s_and_b32 s9, s7, 63")
    a("s_lshl_b32 s9, s9, 2")
    a("s_sub_u32 s8, 255, s8")
    a(f"s_mul_i32 s8, s8, {BOX}")
    a("s_add_u32 s8, s8, s9")
    nmp = (24 + per - 1) // per
    for i in range(nmp):
        a(f"v_add_u32 v12, {i*per}, v8")
        a(f"v_mul_u32_u24 v13, {10*BOX}, v12")
        a("v_sub_u32 v13, s8, v13")
        a("v_lshl_add_u32 v13, v9, 4, v13")
        a("v_cmp_gt_u32 vcc, 24, v12")
        a("v_mov_b32 v12, 0x7ffffff0")
        a(f"v_cndmask_b32 v{14+i}, v12, v13, vcc")
    def body():
        for i in range(nmp):
            a(f"buffer_load_dwordx4 {vr(32+4*i)}, v{14+i}, {sWS}, 0 offen offset:{MP} sc1")
        a("s_waitcnt vmcnt(0)")
    poll(body, lambda: chk_invalid(range(32, 32 + 4*nmp), 28), 2)
    def lane_reduce(d):
        a(f"v_permlane32_swap_b32 v{d}, v{d+2}")
        a(f"v_permlane32_swap_b32 v{d+1}, v{d+3}")
        a(f"v_add_f32 v{d}, v{d}, v{d+2}")
        a(f"v_add_f32 v{d+1}, v{d+1}, v{d+3}")
        a(f"v_permlane16_swap_b32 v{d}, v{d+1}")
        a(f"v_add_f32 v{d}, v{d}, v{d+1}")
        for k in (8, 4, 2, 1):
            if k >= LPn:
                a(f"v_add_f32_dpp v{d}, v{d}, v{d} row_ror:{k} {DPP}")
    if nmp == 2:
        for r in range(4): a(f"v_add_f32 v{32+r}, v{32+r}, v{36+r}")
    lane_reduce(32)
    rnd1(32)
    silu(32, 33)
    rnd1(32)
    a("v_mov_b32 v16, v32")
    a("v_lshlrev_b32 v11, 16, v11")
    stamp(11)
    a(f"v_mul_u32_u24 v12, {BOX}, v8")
    a("v_lshl_add_u32 v12, v9, 4, v12")
    a("s_lshl_b32 s8, s7, 2")
    def body():
        a("s_mov_b32 s9, s8")
        for i in range(nld):
            a(f"buffer_load_dwordx4 {vr(32+4*i)}, v12, {sWS}, s9 offen offset:{SP} sc1")
            if i < nld - 1: a(f"s_add_u32 s9, s9, {per*BOX}")
        a("s_waitcnt vmcnt(0)")
    poll(body, lambda: chk_invalid(range(32, 32 + 4*nld), 28))
    stamp(12)
    step = 2 * nld
    while step >= 4:
        for j in range(0, step, 2):
            a(f"v_pk_add_f32 {vr(32+j,2)}, {vr(32+j,2)}, {vr(32+step+j,2)}")
        step //= 2
    lane_reduce(32)
    rnd1(32)
    a("v_mul_f32 v32, v32, v16")
    rnd1(32)
    a("v_add_f32 v32, v32, v11")
    a("v_cvt_pk_bf16_f32 v32, v32, v32")
    m16 = (1 << LPn) - 1
    a(f"s_mov_b32 exec_lo, {hex(m16 | m16 << 16)}")
    a(f"s_mov_b32 exec_hi, {hex(m16 | m16 << 16)}")
    a(f"buffer_store_short v32, v10, {sOUT}, 0 offen {outsc}")
    stamp(13)
    a("L_done:")
    end_wave()

    pad()
    a("L_early:")
    srd(sWS, 38, WS_USED)
    srd(sA, 24, 7864320)
    pub_offsets(246, 247)
    a(f"v_mul_u32_u24 v248, 3840, {vR}")
    a(f"v_lshl_add_u32 v248, {vC}, 4, v248")
    a(f"s_mul_i32 s8, {sB}, {24*1280}")
    a(f"s_mul_i32 s9, {sWAVE}, 384")
    a("s_add_u32 s8, s8, s9")
    a(f"v_mul_u32_u24 v250, {BOX}, {vC}")
    a(f"v_mul_u32_u24 v249, 12, {vR}")
    a("v_add_u32 v249, v249, v250")
    a(f"s_mul_i32 s10, {sH}, {8*BOX}")
    a(f"s_mul_i32 s11, {sS}, 96")
    a("s_add_u32 s11, s11, s10")
    a(f"s_mul_i32 s12, {sWAVE}, 768")
    a(f"s_add_u32 s12, s12, {sBOX}")
    a(f"s_cmp_eq_u32 {sWAVE}, 3")
    a("s_cbranch_scc1 L_e3")
    a("s_waitcnt lgkmcnt(0)")
    a("s_barrier")
    stamp(3)
    for li in range(3):
        for rb in range(3):
            a(f"buffer_load_dwordx4 {vr(vK + 4*(li*3+rb))}, v248, {sA}, s8 offen offset:{rb*1280 + li*128} {nt}")
    a(f"s_cmp_lg_u32 {sWAVE}, 0")
    a("s_cbranch_scc1 L_e12")
    a("v_mov_b32 v28, 0")
    a(f"v_lshlrev_b32 v31, 4, {vL}")
    a("s_mov_b32 exec_hi, 0x1ffff")
    a(f"ds_read_b128 v[128:131], v28 offset:{L_M}")
    a(f"ds_read_b128 v[132:135], v28 offset:{L_M+16}")
    for j in range(8):
        a(f"ds_read_b128 {vr(160 + 4*j)}, v31 offset:{L_ROW + ROWS*j}")
    a("s_waitcnt lgkmcnt(0)")
    a("v_max3_f32 v136, v128, v129, v130")
    a("v_max3_f32 v136, v136, v131, v132")
    a("v_max3_f32 v136, v136, v133, v134")
    a("v_max_f32 v136, v136, v135")
    for j in range(8): a(f"v_sub_f32 v{128+j}, v{128+j}, v136")
    for j in range(8): a(f"v_mul_f32 v{128+j}, {LOG2E}, v{128+j}")
    for j in range(8): a(f"v_exp_f32 v{140+2*j}, v{128+j}")
    a(f"v_cmp_eq_u32 vcc, 48, {vL}")
    a("v_mov_b32 v157, 0")
    a("v_mov_b32 v158, 0")
    a("v_mov_b32 v159, 0")
    a("v_cndmask_b32 v156, 0, v136, vcc")
    def rows_acc(w0):
        for w in range(4):
            for h in (0, 2):
                a(f"v_pk_add_f32 {vr(160+8*w+h,2)}, {vr(160+8*w+h,2)}, {vr(164+8*w+h,2)}")
        for w in range(4):
            for h in (0, 2):
                a(f"v_pk_fma_f32 {vr(156+h,2)}, {vr(160+8*w+h,2)}, {vr(140+2*(w0+w),2)}, {vr(156+h,2)} op_sel_hi:[1,0,1]")
    rows_acc(0)
    a("s_barrier")
    stamp(4)
    for j in range(8):
        a(f"ds_read_b128 {vr(160 + 4*j)}, v31 offset:{L_ROW + ROWS*(8+j)}")
    a("s_waitcnt lgkmcnt(0)")
    rows_acc(4)
    a(f"buffer_store_dwordx4 v[156:159], v31, {sWS}, {sBOX} offen offset:{OP} sc1")
    exec_all()
    if not est: stamp(5)
    a(f"s_waitcnt vmcnt({prepoll+1})")
    a("s_branch L_og")
    a("L_e12:")
    a("s_barrier")
    stamp(4)
    a(f"s_waitcnt vmcnt({prepoll})")
    a("L_og:")
    a("s_mov_b32 s13, 0")
    a("L_og3:")
    stamp(10)
    def body():
        a(f"buffer_load_dwordx3 v[8:10], v249, {sWS}, s11 offen offset:{OP} sc1")
        a(f"buffer_load_dwordx2 v[12:13], v250, {sWS}, s10 offen offset:{ML} sc1")
        a("s_waitcnt vmcnt(0)")
    poll(body, lambda: chk_invalid([8, 9, 10, 12, 13], 28))
    stamp(11)
    a("v_max_f32_dpp v14, v12, v12 quad_perm:[1,0,3,2] " + DPP)
    a("v_max_f32_dpp v14, v14, v14 quad_perm:[2,3,0,1] " + DPP)
    a("v_max_f32_dpp v14, v14, v14 row_half_mirror " + DPP)
    a("v_sub_f32 v12, v12, v14")
    a(f"v_mul_f32 v12, {LOG2E}, v12")
    a("v_exp_f32 v12, v12")
    a("s_cmp_lg_u32 s13, 0")
    a("v_mul_f32 v13, v13, v12")
    for r in (8, 9, 10): a(f"v_mul_f32 v{r}, v{r}, v12")
    red8([13, 8, 9, 10])
    a("v_rcp_f32 v13, v13")
    for r in (8, 9, 10): a(f"v_mul_f32 v{r}, v{r}, v13")
    for rb in range(3):
        mkA(16 + 4*rb, 8 + rb)
    a("s_cbranch_scc1 L_e3fin")
    for rb in range(3):
        for li in range(3):
            mfma(vD + 4*li, 16 + 4*rb, vK + 4*(li*3+rb), rb == 0)
    comb2(vD, vD + 4)
    comb1(vD + 8)
    exec_pub()
    a(f"buffer_store_dwordx4 {vr(vD)}, v247, {sWS}, s12 offen offset:{SP} sc1")
    a(f"buffer_store_dwordx2 {vr(vD+8,2)}, v246, {sWS}, s12 offen offset:{SP+512} sc1")
    stamp(12)
    end_wave()
    a("L_e3fin:")
    for rb in range(3):
        mfma(vD, 16 + 4*rb, vK + 4*rb, rb == 0)
    comb1(vD)
    exec_pub()
    a(f"buffer_store_dwordx2 {vr(vD,2)}, v246, {sWS}, s12 offen offset:{SP} sc1")
    stamp(12)
    end_wave()

    pad()
    a("L_e3:")
    srd(sDBG, 36, 256)
    srd(sBB, 32, 1966080)
    a(f"v_lshlrev_b32 v29, 3, {vL}")
    a("s_mov_b32 exec_hi, 0")
    def body():
        a(f"buffer_load_dword v28, v29, {sDBG}, 0 offen sc1")
        a("s_waitcnt vmcnt(0)")
    poll(body, lambda: a("v_cmp_ne_u32 vcc, 8, v28"), 4)
    exec_all()
    a(f"s_sub_u32 s13, 255, {sB}")
    a("s_cmpk_ge_u32 s13, 240")
    a("s_cbranch_scc1 L_e3_nomlp")
    a("s_mul_i32 s7, s13, 6554")
    a("s_lshr_b32 s7, s7, 16")
    a("s_mul_i32 s9, s7, 10")
    a("s_sub_u32 s13, s13, s9")
    a(f"s_mul_i32 s9, s7, {8*BOX}")
    a(f"v_lshl_add_u32 v251, {vR}, 5, v250")
    def body():
        a(f"buffer_load_dwordx4 v[128:131], v251, {sWS}, s9 offen offset:{GU} sc1")
        a(f"buffer_load_dwordx4 v[132:135], v251, {sWS}, s9 offen offset:{GU+16} sc1")
        a(f"buffer_load_dwordx4 v[136:139], v251, {sWS}, s9 offen offset:{GU+256} sc1")
        a(f"buffer_load_dwordx4 v[140:143], v251, {sWS}, s9 offen offset:{GU+272} sc1")
        a("s_waitcnt vmcnt(0)")
    poll(body, lambda: chk_invalid(range(128, 144), 28), 4)
    red8(list(range(128, 144)))
    for j in range(128, 144, 2): rnd2(j, j + 1)
    for j in range(8): silu(128 + j, 144 + j)
    for j in range(128, 136, 2): rnd2(j, j + 1)
    for j in range(8): a(f"v_mul_f32 v{128+j}, v{128+j}, v{136+j}")
    for j in range(8): mkA(160 + 4*j, 128 + j)
    a(f"v_mul_u32_u24 v251, 10240, {vR}")
    a(f"v_lshl_add_u32 v251, {vC}, 4, v251")
    a("s_mul_i32 s7, s7, 81920")
    a("s_lshl_b32 s13, s13, 7")
    a("s_add_u32 s7, s7, s13")
    a("s_add_u32 s13, s7, 5120")
    stamp(5)
    a("s_waitcnt lgkmcnt(0)")
    a("s_barrier")
    stamp(3)
    for rb in range(8):
        a(f"buffer_load_dwordx4 {vr(64 + 4*rb)}, v251, {sBB}, {'s7' if rb < 4 else 's13'} offen offset:{(rb%4)*1280} {nt}")
    for rb in range(3):
        a(f"buffer_load_dwordx4 {vr(vK + 4*rb)}, v248, {sA}, s8 offen offset:{rb*1280} {nt}")
    a("s_barrier")
    stamp(4)
    a("s_waitcnt vmcnt(3)")
    for rb in range(8):
        mfma(vD + 4, 160 + 4*rb, 64 + 4*rb, rb == 0)
    comb1(vD + 4)
    exec_pub()
    a(f"buffer_store_dwordx2 {vr(vD+4,2)}, v246, {sWS}, {sBOX} offen offset:{MP} sc1")
    exec_all()
    a("s_mov_b32 s13, 1")
    a("s_branch L_og3")
    a("L_e3_nomlp:")
    a("s_waitcnt lgkmcnt(0)")
    a("s_barrier")
    stamp(3)
    for rb in range(3):
        a(f"buffer_load_dwordx4 {vr(vK + 4*rb)}, v248, {sA}, s8 offen offset:{rb*1280} {nt}")
    a("s_barrier")
    stamp(4)
    a("s_mov_b32 s13, 1")
    a("s_waitcnt vmcnt(0)")
    a("s_branch L_og3")

    a(".p2align 6")
    a("L_late:")
    if stamps:
        for j in range(1, 15): a(f"s_mov_b64 s[{72+2*j}:{73+2*j}], 0")
    a("s_setprio 3")
    a("v_mov_b32 v31, 0")
    a(f"ds_write_b32 v31, v31 offset:{L_FCLR}")
    a("s_mov_b64 s[46:47], s[42:43]")
    a(f"s_lshl3_add_u32 {sB}, {sH}, {sS}")
    a(f"s_mul_i32 {sBOX}, {sB}, {BOX}")
    a(f"v_mul_u32_u24 v26, 20, {vL}")
    a(f"v_mul_u32_u24 v27, 20, {vR}")
    a(f"s_mul_i32 s7, {sS}, 160")
    a("s_add_u32 s9, s9, 252")
    a("s_waitcnt lgkmcnt(0)")
    srd(sX, 16, 1280)
    srd(sWS, 38, WS_USED)
    def x_loads():
        a(f"buffer_load_dwordx4 v[128:131], v26, {sX}, 0 offen {xnt}")
        a(f"buffer_load_dword v132, v26, {sX}, 0 offen offset:16 {xnt}")
        a(f"buffer_load_dwordx4 v[134:137], v27, {sX}, s7 offen {xnt}")
        a(f"buffer_load_dword v138, v27, {sX}, s7 offen offset:16 {xnt}")
    a(f"s_cmp_eq_u32 {sWAVE}, 7")
    a("s_cbranch_scc1 L_w7")
    x_loads()
    srd(sA, 22, 7864320)
    a(f"v_mul_u32_u24 v30, 122880, {vR}")
    a(f"v_lshl_add_u32 v30, {vC}, 4, v30")
    a(f"s_mul_i32 s11, {sS}, 983040")
    a(f"s_mul_i32 s12, {sH}, 384")
    a(f"s_lshl_b32 s13, {sWAVE}, 7")
    a("s_add_u32 s11, s11, s12")
    a("s_sub_u32 s13, s13, 512")
    a("s_add_u32 s11, s11, s13")
    a("s_movk_i32 s12, 12288")
    for rb in range(10):
        a(f"buffer_load_dwordx4 {vr(vK + 8*rb)}, v30, {sA}, s11 offen {nt}")
        if rb < 9: a("s_add_u32 s11, s11, s12")
    a("s_barrier")
    a("s_waitcnt vmcnt(10)")
    a("s_branch L_ln")
    a("L_w7:")
    for r in range(4): a(f"v_mov_b32 v{140+r}, -1")
    a(f"v_lshlrev_b32 v30, 4, {vL}")
    a(f"s_add_u32 s11, {sBOX}, 4096")
    for i in range(4):
        a(f"buffer_store_dwordx4 v[140:143], v30, {sWS}, {sBOX} offen offset:{1024*i} sc1")
    a(f"buffer_store_dwordx4 v[140:143], v30, {sWS}, s11 offen sc1")
    if pretouch:
        srd(sA, 24, 7864320)
        srd(sBB, 32, 1966080)
        srd(sOUT, 34, 1280)
        a(f"s_add_u32 s11, s8, {28672*384}")
        a(f"s_mul_i32 s12, {sB}, {24*1280}")
        a("s_mov_b64 exec, 1")
        a(f"buffer_load_dword v144, off, {sV}, s11 {xnt}")
        a(f"buffer_load_dword v145, off, {sA}, s12 {nt}")
        a(f"buffer_load_dword v146, off, {sBB}, 0 {xnt}")
        a(f"buffer_load_dword v147, off, {sOUT}, 0 {xnt}")
        exec_all()
    a("s_barrier")
    a(f"s_lshl3_add_u32 s36, {sH}, s36")
    a("s_addc_u32 s37, s37, 0")
    a("s_mov_b32 s11, 1")
    a("v_mov_b32 v133, 1")
    a("s_waitcnt vmcnt(0)")
    stamp(4)
    a("s_atomic_add s11, s[36:37], 0")
    a(f"ds_write_b32 v31, v133 offset:{L_FCLR}")
    a(f"s_cmpk_lt_u32 {sB}, 192")
    a("s_cbranch_scc1 L_w7a")
    masks()
    a("s_waitcnt lgkmcnt(0)")
    a("s_branch L_lq")
    a("L_w7a:")
    x_loads()
    srd(sA, 28, 1966080)
    srd(sBB, 30, 1966080)
    a(f"v_mul_u32_u24 v30, 30720, {vR}")
    a(f"v_lshl_add_u32 v30, {vC}, 4, v30")
    a(f"s_mul_i32 s12, {sS}, 245760")
    a(f"s_lshl_b32 s13, {sH}, 7")
    a("s_add_u32 s12, s12, s13")
    for rb in range(10):
        a(f"buffer_load_dwordx4 {vr(vK + 8*rb)}, v30, {sA}, s12 offen offset:{(rb%2)*3072} {nt}")
        a(f"buffer_load_dwordx4 {vr(vK + 8*rb + 4)}, v30, {sBB}, s12 offen offset:{(rb%2)*3072} {nt}")
        if rb % 2 == 1 and rb < 9: a("s_addk_i32 s12, 6144")
    a("s_waitcnt vmcnt(20) lgkmcnt(0)")
    a("L_ln:")
    stamp(1)
    masks()
    pub_offsets(246, 247)
    for i in range(5):
        a(f"v_lshlrev_b32 v{140+2*i}, 16, v{128+i}")
        a(f"v_and_b32 v{141+2*i}, 0xffff0000, v{128+i}")
    a("v_add_f32 v160, v140, v141")
    for i in range(2, 10): a(f"v_add_f32 v160, v160, v{140+i}")
    red8([160]); red_hi(160, 161)
    a(f"v_mul_f32 v160, {INV640}, v160")
    for i in range(10): a(f"v_sub_f32 v{140+i}, v{140+i}, v160")
    a("v_mul_f32 v162, v140, v140")
    for i in range(1, 10): a(f"v_fmac_f32 v162, v{140+i}, v{140+i}")
    red8([162]); red_hi(162, 161)
    a(f"v_mul_f32 v162, {INV640}, v162")
    rnd2(160, 162)
    a(f"v_add_f32 v162, {EPS}, v162")
    rnd1(162)
    a("v_sqrt_f32 v162, v162")
    rnd1(162)
    a("v_rcp_f32 v162, v162")
    for i in range(5):
        a(f"v_lshlrev_b32 v{150+2*i}, 16, v{134+i}")
        a(f"v_and_b32 v{151+2*i}, 0xffff0000, v{134+i}")
    for i in range(10): a(f"v_sub_f32 v{150+i}, v{150+i}, v160")
    for i in range(0, 10, 2): rnd2(150 + i, 151 + i)
    for i in range(10): a(f"v_mul_f32 v{150+i}, v{150+i}, v162")
    for i in range(10): mkA(164 + 4*i, 150 + i)
    a("s_waitcnt vmcnt(0)")
    for rb in range(10):
        mfma(vD, 164 + 4*rb, vK + 8*rb, rb == 0)
    stamp(2)
    a(f"s_cmp_eq_u32 {sWAVE}, 7")
    a("s_cbranch_scc1 L_w7b")
    comb1(vD)
    def body():
        a(f"ds_read_b32 v28, v31 offset:{L_FCLR}")
        a("s_waitcnt lgkmcnt(0)")
    poll(body, lambda: a("v_cmp_eq_u32 vcc, 0, v28"), 1)
    a(f"s_lshl1_add_u32 s13, s13, {sBOX}")
    exec_pub()
    a(f"buffer_store_dwordx2 {vr(vD,2)}, v246, {sWS}, s13 offen offset:{QP} sc1")
    stamp(3)
    a(f"s_cmp_eq_u32 {sWAVE}, 4")
    a("s_cbranch_scc1 L_w4")
    if warm:
        a(f"s_cmp_eq_u32 {sWAVE}, 6")
        a("s_cbranch_scc1 L_pad1")
        a(f"L_pad{pads[0]+1}:")
    a("L_lq:")
    exec_all()
    a("s_barrier")
    a("s_setprio 0")
    a("s_barrier")
    a("s_branch L_stream")

    a("L_w4:")
    srd(sDBG, 36, 256)
    a(f"s_lshl_b32 s7, {sH}, 3")
    a("s_mov_b64 exec, 1")
    def body():
        a(f"buffer_load_dword v28, off, {sDBG}, s7 sc1")
        a("s_waitcnt vmcnt(0)")
    poll(body, lambda: a("v_cmp_ne_u32 vcc, 8, v28"), 2)
    stamp(4)
    a("s_mov_b32 exec_lo, -1")
    a("s_mov_b32 exec_hi, 0xffff")
    a(f"v_lshlrev_b32 v30, 4, {vL}")
    a(f"s_mul_i32 s11, {sH}, {8*BOX}")
    a(f"s_movk_i32 s13, {BOX}")
    def body():
        a("s_mov_b32 s12, s11")
        for j in range(8):
            a(f"buffer_load_dwordx4 {vr(vK + 4*j)}, v30, {sWS}, s12 offen offset:{QP} sc1")
            if j < 7: a(f"s_add_u32 s12, s12, s13")
        a("s_waitcnt vmcnt(0)")
    poll(body, lambda: chk_invalid(range(vK, vK + 32), 28))
    for step in (16, 8, 4):
        for j in range(0, step, 2):
            a(f"v_pk_add_f32 {vr(vK+j,2)}, {vr(vK+j,2)}, {vr(vK+step+j,2)}")
    a(f"v_cvt_pk_bf16_f32 v{vK}, v{vK}, v{vK+1}")
    a(f"v_cvt_pk_bf16_f32 v{vK+1}, v{vK+2}, v{vK+3}")
    a(f"v_lshlrev_b32 v30, 3, {vL}")
    a(f"ds_write_b64 v30, {vr(vK,2)} offset:{L_Q}")
    stamp(5)
    a("s_waitcnt lgkmcnt(0)")
    a("s_branch L_lq")

    a("L_w7b:")
    for rb in range(10):
        mfma(vD + 4, 164 + 4*rb, vK + 8*rb + 4, rb == 0)
    comb2(vD, vD + 4)
    exec_pub()
    a(f"buffer_store_dwordx4 {vr(vD)}, v247, {sWS}, {sBOX} offen offset:{GU} sc1")
    stamp(3)
    a("s_branch L_lq")

    if stamps:
        a("L_dump:")
        exec_all()
        a("s_waitcnt vmcnt(0)")
        stamp(14)
        a("s_waitcnt lgkmcnt(0)")
        a("v_mov_b32 v4, 0")
        for i in range(15):
            a(f"v_mov_b32 v5, s{72+2*i}")
            a(f"v_cmp_eq_u32 vcc, {i}, v0")
            a("v_cndmask_b32 v4, v4, v5, vcc")
        srd(sWS, 38, "0x10000000")
        a("s_lshl_b32 s7, s2, 3")
        a(f"s_add_u32 s7, s7, {sWAVE}")
        a("s_lshl_b32 s7, s7, 6")
        a(f"s_add_u32 s7, s7, {STAMP_OFF}")
        a("v_lshlrev_b32 v3, 2, v0")
        a("s_mov_b64 exec, 0xffff")
        a(f"buffer_store_dword v4, v3, {sWS}, s7 offen")
    a("L_end:")
    a("s_endpgm")
    A.raw('.section .rodata,"a"')
    A.raw(".p2align 6")
    A.raw(f".amdhsa_kernel {KNAME}")
    A.raw("  .amdhsa_next_free_vgpr 256")
    A.raw("  .amdhsa_next_free_sgpr 102")
    A.raw("  .amdhsa_accum_offset 256")
    A.raw("  .amdhsa_group_segment_fixed_size 0")
    A.raw("  .amdhsa_kernarg_size 96")
    A.raw("  .amdhsa_user_sgpr_count 2")
    A.raw("  .amdhsa_user_sgpr_kernarg_segment_ptr 1")
    A.raw("  .amdhsa_system_sgpr_workgroup_id_x 1")
    A.raw("  .amdhsa_float_denorm_mode_32 3")
    A.raw(".end_amdhsa_kernel")
    return A.finalize()

if __name__ == "__main__":
    out = sys.argv[1]
    kw = {}
    for x in sys.argv[2:]:
        k, v = x.split("=")
        kw[k] = eval(v) if v[0].isdigit() or v in ("True", "False") else v
    open(out, "w").write(gen(**kw))
```

```python
import sys, os
sys.path.insert(0, os.path.dirname(os.path.abspath(__file__)))
from asmlib import Asm

KNAME = "recurrent_scan__sliding_block_cached__glu_gated_swiglu__decode_kernel"
BOX = 3584
QG, OP, ML, INB, MP, SP = 0, 1536, 2304, 2432, 2560, 3072
WS_USED = 256 * BOX
STAMP_OFF = 2 << 20
BOUND = 200000
L_MODE, L_M, L_Q, L_ROW = 0, 64, 128, 1024
ROWS = 784
L_TS = L_ROW + 16 * ROWS
L_TM = L_TS + 2048
LDS_BYTES = L_TM + 512
DPP = "row_mask:0xf bank_mask:0xf"
LOG2E = "0x3fb8aa3b"
SCALE = "0x3d93cd3a"
INV640 = "0x3acccccd"
EPS = "0x3727c5ac"

sWAVE, sX8, sI = "s3", "s4", "s5"
sK, sV, sWS, sX, sA, sBB, sDBG, sOUT = ("s[40:43]", "s[44:47]", "s[48:51]", "s[52:55]", "s[56:59]", "s[60:63]", "s[64:67]", "s[68:71]")
sCNT = "s15"
sBOX = "s14"
vL, vKV, vR, vC = "v0", "v1", "v2", "v3"
vM = [4, 5, 6, 7]
vQ = 8
vS = 20
vK, vV, vD, vA = 32, 128, 224, 236
vPUB = 247

def vr(a, n=4):
    return f"v[{a}:{a+n-1}]"

def gen(stamps=False, nt="nt", W=7, W0=3, b2=True, w2win=0, mplate=True, outsc="", force_global=False, notail=False, csleep=0):
    A = Asm()
    a = A
    assert W <= 15
    def stamp(i):
        if stamps:
            a(f"s_memrealtime s[{72+2*i}:{73+2*i}]")
    def srd(dst, ptr, nbytes):
        d = int(dst[2:dst.index(":")])
        a(f"s_mov_b64 s[{d}:{d+1}], s[{ptr}:{ptr+1}]")
        a(f"s_mov_b32 s{d+2}, {nbytes}")
        a(f"s_mov_b32 s{d+3}, 0x20000")
    def red8(regs, op="add_f32"):
        for ctl in ("quad_perm:[1,0,3,2]", "quad_perm:[2,3,0,1]", "row_half_mirror"):
            for r in regs:
                a(f"v_{op}_dpp v{r}, v{r}, v{r} {ctl} {DPP}")
    def red_hi(r, t, op="add"):
        a(f"v_{op}_f32_dpp v{r}, v{r}, v{r} row_ror:8 {DPP}")
        a(f"v_mov_b32 v{t}, v{r}")
        a(f"v_permlane16_swap_b32 v{r}, v{t}")
        a(f"v_{op}_f32 v{r}, v{r}, v{t}")
        a(f"v_mov_b32 v{t}, v{r}")
        a(f"v_permlane32_swap_b32 v{r}, v{t}")
        a(f"v_{op}_f32 v{r}, v{r}, v{t}")
    def rnd1(r):
        a(f"v_cvt_pk_bf16_f32 v{r}, v{r}, v{r}")
        a(f"v_lshlrev_b32 v{r}, 16, v{r}")
    def rnd2(r0, r1):
        a(f"v_cvt_pk_bf16_f32 v{r1}, v{r0}, v{r1}")
        a(f"v_lshlrev_b32 v{r0}, 16, v{r1}")
        a(f"v_and_b32 v{r1}, 0xffff0000, v{r1}")
    def mkA(dst, val):
        a(f"v_cvt_pk_bf16_f32 v{dst+3}, v{val}, v{val}")
        for w in range(4):
            a(f"v_and_b32 v{dst+w}, v{vM[w]}, v{dst+3}")
    def mfma(d, aa, b, first=False):
        a(f"v_mfma_f32_16x16x32_bf16 {vr(d)}, {vr(aa)}, {vr(b)}, {'0' if first else vr(d)}")
    def lane_consts():
        a(f"v_and_b32 v28, 1, {vC}")
        a("v_lshlrev_b32 v28, 4, v28")
        a("v_mov_b32 v29, 0xffff")
        a("v_lshlrev_b32 v28, v28, v29")
        a(f"v_lshrrev_b32 v29, 1, {vC}")
        for w in range(4):
            a(f"v_cmp_eq_u32 vcc, {w}, v29")
            a(f"v_cndmask_b32 v{vM[w]}, 0, v28, vcc")
        a(f"v_lshrrev_b32 v28, 4, {vL}")
        a("v_lshlrev_b32 v28, 7, v28")
        a(f"v_lshl_add_u32 v{vPUB}, {vC}, 4, v28")
        a(f"s_mul_i32 {sBOX}, s2, {BOX}")
    lab = [0]
    def poll(body, check, sleep=0):
        lab[0] += 1
        n = lab[0]
        a(f"s_mov_b32 {sCNT}, {BOUND}")
        a(f"Lpoll{n}:")
        body()
        check()
        a(f"s_cbranch_vccz Lpdone{n}")
        if sleep: a(f"s_sleep {sleep}")
        a(f"s_sub_u32 {sCNT}, {sCNT}, 1")
        a(f"s_cbranch_scc0 Lpoll{n}")
        a(f"Lpdone{n}:")
    def chk_invalid(regs, t):
        regs = list(regs)
        a(f"v_max3_u32 v{t}, v{regs[0]}, v{regs[1]}, v{regs[2]}")
        i = 3
        while i < len(regs):
            if i + 1 < len(regs):
                a(f"v_max3_u32 v{t}, v{t}, v{regs[i]}, v{regs[i+1]}"); i += 2
            else:
                a(f"v_max_u32 v{t}, v{t}, v{regs[i]}"); i += 1
        a(f"v_cmp_eq_u32 vcc, -1, v{t}")
    def silu(r, t):
        a(f"v_mul_f32 v{t}, 0xbfb8aa3b, v{r}")
        a(f"v_exp_f32 v{t}, v{t}")
        a(f"v_add_f32 v{t}, 1.0, v{t}")
        a(f"v_rcp_f32 v{t}, v{t}")
        a(f"v_mul_f32 v{r}, v{r}, v{t}")
    def comb2(d, e):
        for r in range(4): a(f"v_permlane32_swap_b32 v{d+r}, v{e+r}")
        for r in range(4): a(f"v_add_f32_dpp v{d+r}, v{e+r}, v{d+r} row_ror:8 {DPP}")
    def exec_pub():
        a("s_mov_b32 exec_lo, 0x00ff00ff")
        a("s_mov_b32 exec_hi, 0x00ff00ff")
    def exec_all():
        a("s_mov_b64 exec, -1")
    def team_store(text, mode):
        lab[0] += 1
        n = lab[0]
        a(f"s_cmp_eq_u32 {mode}, 1")
        a(f"s_cbranch_scc0 Lts{n}")
        a(text)
        a(f"s_branch Lte{n}")
        a(f"Lts{n}:")
        a(text + " sc1")
        a(f"Lte{n}:")
    def dots(gs):
        for i in range(12):
            for g in gs:
                a(f"v_dot2c_f32_bf16 v{vS+g}, v{vK + 12*g + i}, v{vQ+i}")
    def score_post(gs):
        red8([vS + g for g in gs])
        for j in range(0, len(gs), 2): rnd2(vS + gs[j], vS + gs[j+1])
        for g in gs: a(f"v_mul_f32 v{vS+g}, {SCALE}, v{vS+g}")
        for j in range(0, len(gs), 2): rnd2(vS + gs[j], vS + gs[j+1])
    def end_wave():
        if stamps: a("s_branch L_dump")
        else: a("s_endpgm")
    def zero_stamps():
        if stamps:
            for j in range(1, 15): a(f"s_mov_b64 s[{72+2*j}:{73+2*j}], 0")

    A.raw(f"; @launch grid=(256,1,1) block=(512,1,1) lds={LDS_BYTES}")
    A.raw('.amdgcn_target "amdgcn-amd-amdhsa--gfx950"')
    A.raw(".text")
    A.raw(f".globl {KNAME}")
    A.raw(".p2align 8")
    A.raw(f".type {KNAME},@function")
    a(f"{KNAME}:")
    stamp(0)
    a("s_load_dwordx2 s[40:41], s[0:1], 8")
    a("s_load_dwordx2 s[44:45], s[0:1], 16")
    a("s_load_dwordx16 s[16:31], s[0:1], 0")
    a("s_load_dwordx8 s[32:39], s[0:1], 64")
    a("v_lshrrev_b32 v1, 6, v0")
    a("s_cmpk_ge_u32 s2, 256")
    a("s_cbranch_scc1 L_end")
    a(f"v_readfirstlane_b32 {sWAVE}, v1")
    a("v_and_b32 v0, 63, v0")
    a(f"v_lshrrev_b32 {vR}, 3, {vL}")
    a(f"v_and_b32 {vC}, 7, {vL}")
    a(f"s_and_b32 {sX8}, s2, 7")
    a(f"s_lshr_b32 {sI}, s2, 3")
    a("s_lshr_b32 s6, s2, 6")
    a(f"s_lshl2_add_u32 s6, {sX8}, s6")
    a(f"s_and_b32 s7, {sI}, 7")
    a("s_mul_i32 s8, s6, 12582912")
    a(f"s_lshl2_add_u32 s9, s7, {sWAVE}")
    a("s_mov_b32 s42, 402653184")
    a("s_mov_b32 s43, 0x20000")
    a(f"s_cmp_eq_u32 {sWAVE}, 7")
    a("s_cbranch_scc1 L_w7")
    a(f"s_cmp_ge_u32 {sWAVE}, 4")
    a("s_cbranch_scc1 L_late")

    a("L_stream:")
    a("s_mulk_i32 s9, 3072")
    a(f"s_add_u32 s8, s8, {28672*384}")
    a(f"v_mul_u32_u24 {vKV}, 384, {vR}")
    a("s_add_u32 s8, s8, s9")
    a(f"v_lshl_add_u32 {vKV}, {vC}, 4, {vKV}")
    a("s_mov_b32 s9, s8")
    a("s_mov_b32 s10, 98304")
    a("s_waitcnt lgkmcnt(0)")
    n = [0]
    def kv_load(which, g):
        base, s, so = (vK, sK, "s8") if which == "k" else (vV, sV, "s9")
        for i in range(3):
            if n[0] >= W: a(f"s_waitcnt vmcnt({W-1})")
            a(f"buffer_load_dwordx4 {vr(base + 12*g + 4*i)}, {vKV}, {s}, {so} offen offset:{i*128} {nt}")
            n[0] += 1
            if n[0] == W0:
                a("s_mov_b64 s[46:47], s[42:43]")
                a(f"s_cmp_ge_u32 {sWAVE}, 4")
                a("s_cbranch_scc1 L_skip0")
                zero_stamps()
                lane_consts()
                a("s_barrier")
                stamp(13)
                a("L_skip0:")
        if g < 7: a(f"s_add_u32 {so}, {so}, s10")
    for g in range(8): kv_load("k", g)
    stamp(6)
    for g in range(8):
        kv_load("v", g)
        if g == 4:
            a(f"s_cmp_ge_u32 {sWAVE}, 4")
            a("s_cbranch_scc1 L_skipq")
            stamp(1)
            a("s_barrier")
            stamp(2)
            a("L_skipq:")
            a(f"v_lshlrev_b32 v28, 4, {vC}")
            for i in range(3):
                a(f"ds_read_b128 {vr(vQ + 4*i)}, v28 offset:{L_Q + 128*i}")
            for j in range(8):
                a(f"v_mov_b32 v{vS+j}, 0")
            a("s_waitcnt lgkmcnt(0)")
            dots([0, 1, 2, 3]); score_post([0, 1, 2, 3])
        if g == 5:
            dots([4, 5, 6, 7]); score_post([4, 5, 6, 7])
        if g == 6:
            a(f"v_max3_f32 v244, v{vS}, v{vS+1}, v{vS+2}")
            a(f"v_max3_f32 v244, v244, v{vS+3}, v{vS+4}")
            a(f"v_max3_f32 v244, v244, v{vS+5}, v{vS+6}")
            a(f"v_max_f32 v244, v244, v{vS+7}")
            red_hi(244, 28, "max")
            a(f"s_lshl_b32 s7, {sWAVE}, 2")
            a("v_mov_b32 v29, s7")
            a(f"ds_write_b32 v29, v244 offset:{L_M}")
            for j in range(8): a(f"v_sub_f32 v{vS+j}, v{vS+j}, v244")
            for j in range(8): a(f"v_mul_f32 v{vS+j}, {LOG2E}, v{vS+j}")
            for j in range(8): a(f"v_exp_f32 v{vS+j}, v{vS+j}")
    stamp(7)
    a("s_waitcnt lgkmcnt(0)")
    a("s_barrier")
    stamp(8)
    a(f"v_add_f32 v33, v{vS}, v{vS+1}")
    for j in range(2, 8): a(f"v_add_f32 v33, v33, v{vS+j}")
    red_hi(33, 28, "add")
    a(f"s_mul_i32 s7, {sWAVE}, {2*ROWS}")
    a(f"v_lshrrev_b32 v29, 5, {vL}")
    a(f"v_mul_u32_u24 v29, {ROWS}, v29")
    a("v_add_u32 v29, s7, v29")
    a(f"v_and_b32 v28, 16, {vL}")
    a(f"v_lshl_add_u32 v28, {vC}, 5, v28")
    a("v_add_u32 v30, v28, v29")
    a(f"v_cmp_gt_u32 vcc, 32, {vL}")
    a("v_mov_b32 v32, 0")
    a("v_mov_b32 v34, 0")
    a("v_mov_b32 v35, 0")
    a("v_cndmask_b32 v33, 0, v33, vcc")
    a(f"ds_write_b128 v29, v[32:35] offset:{L_ROW + 768}")
    for g in range(8):
        aa = vA + 4 * (g % 2)
        mkA(aa, vS + g)
        for i in range(3):
            k = 23 - 3*g - i
            if k < W: a(f"s_waitcnt vmcnt({k})")
            mfma(vD + 4*i, aa, vV + 12*g + 4*i, g == 0)
    stamp(9)
    a("s_mov_b32 exec_lo, 0x00ff00ff")
    a("s_mov_b32 exec_hi, 0xff00ff00")
    a(f"s_cmp_lt_u32 {sWAVE}, 4")
    for i in range(3):
        a(f"ds_write_b128 v30, {vr(vD + 4*i)} offset:{L_ROW + 256*i}")
    a("s_cbranch_scc1 L_early")
    a("s_waitcnt lgkmcnt(0)")
    a("s_barrier")
    stamp(10)
    if (stamps or mplate) and not notail:
        a(f"s_cmp_ge_u32 {sI}, 30")
        a("s_cbranch_scc1 L_done")
        if mplate:
            a(f"s_cmp_lg_u32 {sWAVE}, 4")
            a(f"s_cbranch_scc1 {'L_lb' if stamps else 'L_done'}")
            a("s_mov_b32 exec_lo, -1")
            a("s_mov_b32 exec_hi, 0")
            a(f"v_lshlrev_b32 v31, 4, {vL}")
            a(f"ds_read_b128 v[32:35], v31 offset:{L_TM}")
            srd(sWS, 38, WS_USED)
            a("s_waitcnt lgkmcnt(0)")
            a(f"buffer_store_dwordx4 v[32:35], v31, {sWS}, {sBOX} offen offset:{MP} sc1")
            a("L_lb:")
        if b2: a("s_barrier")
        a("s_barrier")
    end_wave()

    a("L_early:")
    exec_all()
    srd(sWS, 38, WS_USED)
    a(f"v_lshlrev_b32 v31, 4, {vL}")
    a(f"s_cmp_ge_u32 {sI}, 30")
    a("s_cbranch_scc1 L_notile")
    srd(sA, 24, 7864320)
    a(f"s_mul_i32 s13, {sI}, 52")
    a("s_lshr_b32 s13, s13, 8")
    a("s_mul_i32 s7, s13, 5")
    a(f"s_sub_u32 s7, {sI}, s7")
    a(f"s_lshl2_add_u32 s6, s13, {sWAVE}")
    a("s_lshl_b32 s7, s7, 8")
    a(f"s_mul_i32 s8, {sX8}, 24")
    a("s_add_u32 s8, s8, s6")
    a("s_mul_i32 s8, s8, 40960")
    a("s_add_u32 s8, s8, s7")
    a(f"v_mul_u32_u24 v248, 5120, {vR}")
    a(f"v_lshl_add_u32 v248, {vC}, 4, v248")
    a(f"v_mul_u32_u24 v250, {8*BOX}, {vC}")
    a(f"v_lshl_add_u32 v249, {vR}, 4, v250")
    a(f"s_mul_i32 s12, {sX8}, {BOX}")
    a("s_mul_i32 s10, s6, 43")
    a("s_lshr_b32 s10, s10, 8")
    a("s_mul_i32 s11, s10, 6")
    a("s_sub_u32 s11, s6, s11")
    a("s_lshl_b32 s11, s11, 7")
    a(f"s_mul_i32 s10, s10, {64*BOX}")
    a("s_add_u32 s10, s10, s12")
    a("s_add_u32 s11, s11, s10")
    a(f"s_lshl_b32 s6, {sWAVE}, 9")
    a(f"v_add_u32 v246, s6, v{vPUB}")
    a(f"s_cmp_eq_u32 {sWAVE}, 3")
    a("s_cbranch_scc1 L_mlp2")
    a("L_ea:")
    a("s_waitcnt lgkmcnt(0)")
    a("s_barrier")
    stamp(3)
    for rb in range(4):
        for li in range(2):
            a(f"buffer_load_dwordx4 {vr(vK + 8*rb + 4*li)}, v248, {sA}, s8 offen offset:{rb*1280 + li*128} {nt}")
    a(f"s_cmp_eq_u32 {sWAVE}, 0")
    a("s_cbranch_scc1 L_pub")
    a("s_barrier")
    stamp(4)
    a("s_branch L_og")

    a("L_pub:")
    a("v_mov_b32 v28, 0")
    a("s_mov_b32 exec_hi, 0x1ffff")
    a(f"ds_read_b32 v137, v28 offset:{L_MODE}")
    a(f"ds_read_b128 v[128:131], v28 offset:{L_M}")
    a(f"ds_read_b128 v[132:135], v28 offset:{L_M+16}")
    for j in range(8):
        a(f"ds_read_b128 {vr(160 + 4*j)}, v31 offset:{L_ROW + ROWS*j}")
    a("s_waitcnt lgkmcnt(0)")
    a("v_readfirstlane_b32 s13, v137")
    a("v_max3_f32 v136, v128, v129, v130")
    a("v_max3_f32 v136, v136, v131, v132")
    a("v_max3_f32 v136, v136, v133, v134")
    a("v_max_f32 v136, v136, v135")
    for j in range(8): a(f"v_sub_f32 v{128+j}, v{128+j}, v136")
    for j in range(8): a(f"v_mul_f32 v{128+j}, {LOG2E}, v{128+j}")
    for j in range(8): a(f"v_exp_f32 v{140+2*j}, v{128+j}")
    a(f"v_cmp_eq_u32 vcc, 48, {vL}")
    a("v_mov_b32 v157, 0")
    a("v_mov_b32 v158, 0")
    a("v_mov_b32 v159, 0")
    a("v_cndmask_b32 v156, 0, v136, vcc")
    def rows_acc(w0):
        for w in range(4):
            for h in (0, 2):
                a(f"v_pk_add_f32 {vr(160+8*w+h,2)}, {vr(160+8*w+h,2)}, {vr(164+8*w+h,2)}")
        for w in range(4):
            for h in (0, 2):
                a(f"v_pk_fma_f32 {vr(156+h,2)}, {vr(160+8*w+h,2)}, {vr(140+2*(w0+w),2)}, {vr(156+h,2)} op_sel_hi:[1,0,1]")
    rows_acc(0)
    a("s_barrier")
    stamp(4)
    for j in range(8):
        a(f"ds_read_b128 {vr(160 + 4*j)}, v31 offset:{L_ROW + ROWS*(8+j)}")
    a("s_waitcnt lgkmcnt(0)")
    rows_acc(4)
    if not notail: team_store(f"buffer_store_dwordx4 v[156:159], v31, {sWS}, {sBOX} offen offset:{OP}", "s13")
    exec_all()
    a(f"s_cmp_ge_u32 {sI}, 30")
    a("s_cbranch_scc1 L_done")
    a("L_og:")
    if b2: a("s_barrier")
    else: a("s_waitcnt vmcnt(0)")
    stamp(10)
    if notail:
        a("s_waitcnt vmcnt(0)")
        stamp(11)
        end_wave()
    def body():
        a(f"buffer_load_dwordx4 v[8:11], v249, {sWS}, s11 offen offset:{OP} sc1")
        a(f"buffer_load_dwordx2 v[12:13], v250, {sWS}, s10 offen offset:{ML} sc1")
        a("s_waitcnt vmcnt(0)")
    poll(body, lambda: chk_invalid([8, 9, 10, 11, 12, 13], 28))
    stamp(11)
    a("v_max_f32_dpp v14, v12, v12 quad_perm:[1,0,3,2] " + DPP)
    a("v_max_f32_dpp v14, v14, v14 quad_perm:[2,3,0,1] " + DPP)
    a("v_max_f32_dpp v14, v14, v14 row_half_mirror " + DPP)
    a("v_sub_f32 v12, v12, v14")
    a(f"v_mul_f32 v12, {LOG2E}, v12")
    a("v_exp_f32 v12, v12")
    a("v_mul_f32 v13, v13, v12")
    a("v_pk_mul_f32 v[8:9], v[8:9], v[12:13] op_sel_hi:[1,0]")
    a("v_pk_mul_f32 v[10:11], v[10:11], v[12:13] op_sel_hi:[1,0]")
    red8([13, 8, 9, 10, 11])
    a("v_rcp_f32 v12, v13")
    a("v_pk_mul_f32 v[8:9], v[8:9], v[12:13] op_sel_hi:[1,0]")
    a("v_pk_mul_f32 v[10:11], v[10:11], v[12:13] op_sel_hi:[1,0]")
    mkA(128, 8)
    for rb in range(4):
        if rb < 3: mkA(132 + 4*rb, 9 + rb)
        for li in range(2):
            mfma(vD + 4*li, 128 + 4*rb, vK + 8*rb + 4*li, rb == 0)
    comb2(vD, vD + 4)
    exec_pub()
    a(f"ds_write_b128 v246, {vr(vD)} offset:{L_TS}")
    a(f"s_cmp_lg_u32 {sWAVE}, 1")
    a("s_mov_b32 exec_lo, -1")
    a("s_waitcnt lgkmcnt(0)")
    a("s_barrier")
    a("s_cbranch_scc1 L_done")
    a("s_mov_b32 exec_hi, 0")
    for j in range(4):
        a(f"ds_read_b128 {vr(128 + 4*j)}, v31 offset:{L_TS + 512*j}")
    a("s_waitcnt lgkmcnt(0)")
    for j in (0, 2, 4, 6): a(f"v_pk_add_f32 {vr(128+j,2)}, {vr(128+j,2)}, {vr(136+j,2)}")
    for j in (0, 2): a(f"v_pk_add_f32 {vr(128+j,2)}, {vr(128+j,2)}, {vr(132+j,2)}")
    a(f"buffer_store_dwordx4 v[128:131], v31, {sWS}, {sBOX} offen offset:{SP} sc1")
    stamp(12)
    a("L_done:")
    end_wave()

    a("L_mlp2:")
    srd(sBB, 32, 1966080)
    a("s_lshr_b32 s6, s13, 1")
    a("s_and_b32 s13, s13, 1")
    a(f"s_mul_i32 s9, {sX8}, 48")
    a("s_lshl4_add_u32 s9, s6, s9")
    a("s_add_u32 s9, s9, s13")
    a("s_mul_i32 s9, s9, 5120")
    a("s_add_u32 s9, s9, s7")
    a(f"v_mul_u32_u24 v251, 10240, {vR}")
    a(f"v_lshl_add_u32 v251, {vC}, 4, v251")
    a("s_lshl2_add_u32 s13, s6, s13")
    a("s_lshl_b32 s13, s13, 7")
    a("s_add_u32 s13, s13, s12")
    def body():
        a("s_mov_b32 s6, s13")
        for j in range(4):
            a(f"buffer_load_dwordx4 {vr(128+4*j)}, v249, {sWS}, s6 offen offset:{QG+256} sc1")
            if j < 3: a(f"s_add_u32 s6, s6, {64*BOX}")
        a("s_waitcnt vmcnt(0)")
    poll(body, lambda: chk_invalid(range(128, 144), 28), 4)
    for rb in range(4):
        for li in range(2):
            if w2win and 2*rb + li >= w2win: a(f"s_waitcnt vmcnt({w2win-1})")
            a(f"buffer_load_dwordx4 {vr(64 + 8*rb + 4*li)}, v251, {sBB}, s9 offen offset:{rb*1280 + li*128} {nt}")
    for j in (0, 2):
        a(f"v_pk_add_f32 {vr(128+j,2)}, {vr(128+j,2)}, {vr(132+j,2)}")
        a(f"v_pk_add_f32 {vr(132+j,2)}, {vr(136+j,2)}, {vr(140+j,2)}")
    red8(range(128, 136))
    for j in range(128, 136, 2): rnd2(j, j + 1)
    for j in range(4): silu(128 + j, 136 + j)
    for j in (128, 130): rnd2(j, j + 1)
    for j in range(4): a(f"v_mul_f32 v{128+j}, v{128+j}, v{132+j}")
    for j in range(4): mkA(144 + 4*j, 128 + j)
    a("s_waitcnt vmcnt(0)")
    for rb in range(4):
        for li in range(2):
            mfma(vD + 4*li, 144 + 4*rb, 64 + 8*rb + 4*li, rb == 0)
    comb2(vD, vD + 4)
    exec_pub()
    if mplate: a(f"ds_write_b128 v246, {vr(vD)} offset:{L_TM-1536}")
    elif not notail: a(f"buffer_store_dwordx4 {vr(vD)}, v246, {sWS}, {sBOX} offen offset:{MP-1536} sc1")
    exec_all()
    stamp(5)
    a("s_branch L_ea")

    a("L_notile:")
    a("v_mov_b32 v249, 0")
    a("v_mov_b32 v250, 0")
    a(f"s_cmp_lg_u32 {sWAVE}, 0")
    a("s_cbranch_scc1 L_cons")
    a("s_waitcnt lgkmcnt(0)")
    a("s_barrier")
    a("s_branch L_pub")
    a("L_cons:")
    srd(sDBG, 36, 256)
    srd(sX, 16, 1280)
    srd(sOUT, 34, 1280)
    a(f"s_lshl4_add_u32 s6, {sWAVE}, s2")
    a("s_sub_u32 s6, s6, 256")
    a("s_lshr_b32 s7, s6, 2")
    a("s_and_b32 s8, s6, 3")
    a("s_lshr_b32 s9, s6, 1")
    a("s_lshl_b32 s9, s9, 6")
    a("s_and_b32 s10, s6, 1")
    a("s_lshl2_add_u32 s9, s10, s9")
    a(f"v_lshrrev_b32 v10, 4, {vL}")
    a(f"v_lshl_add_u32 v10, {vC}, 3, v10")
    a("v_add_lshl_u32 v10, v10, s9, 1")
    a(f"buffer_load_ushort v11, v10, {sX}, 0 offen")
    a(f"v_lshlrev_b32 v29, 5, {vC}")
    def body():
        a(f"buffer_load_dword v28, v29, {sDBG}, 0 offen sc1")
        a("s_waitcnt vmcnt(0)")
        a("v_max_u32 v28, 1, v28")
        a("v_and_b32 v28, 31, v28")
    poll(body, lambda: a("v_cmp_ne_u32 vcc, 0, v28"), 4)
    a("v_lshlrev_b32 v11, 16, v11")
    a(f"v_mul_u32_u24 v12, {BOX}, {vR}")
    a(f"v_lshl_add_u32 v12, {vC}, 4, v12")
    a(f"s_mul_i32 s7, s7, {8*BOX}")
    a("s_lshl_b32 s8, s8, 7")
    a("s_add_u32 s8, s8, s7")
    a(f"s_add_u32 s8, s8, {MP}")
    a(f"s_mov_b32 s10, {40*BOX}")
    a("s_mov_b32 s13, 0")
    a("s_waitcnt lgkmcnt(0)")
    a("s_barrier")
    a("s_barrier")
    stamp(4)
    a("s_cmp_ge_u32 s6, 20")
    a("s_cbranch_scc1 L_done")
    if notail: a("s_branch L_done")
    a("L_fin:")
    def body():
        a("s_mov_b32 s9, s8")
        for i in range(6):
            a(f"buffer_load_dwordx4 {vr(32+4*i)}, v12, {sWS}, s9 offen sc1")
            if i < 5: a("s_add_u32 s9, s9, s10")
        a("s_waitcnt vmcnt(0)")
    poll(body, lambda: chk_invalid(range(32, 56), 28), csleep)
    stamp(12)
    for j in range(0, 12, 2): a(f"v_pk_add_f32 {vr(32+j,2)}, {vr(32+j,2)}, {vr(44+j,2)}")
    for j in (0, 2): a(f"v_pk_add_f32 {vr(32+j,2)}, {vr(32+j,2)}, {vr(36+j,2)}")
    for j in (0, 2): a(f"v_pk_add_f32 {vr(32+j,2)}, {vr(32+j,2)}, {vr(40+j,2)}")
    a("v_permlane32_swap_b32 v32, v34")
    a("v_permlane32_swap_b32 v33, v35")
    a("v_pk_add_f32 v[32:33], v[32:33], v[34:35]")
    a("s_cmp_lg_u32 s13, 0")
    a("v_permlane16_swap_b32 v32, v33")
    a("v_add_f32 v32, v32, v33")
    a(f"v_add_f32_dpp v32, v32, v32 row_ror:8 {DPP}")
    rnd1(32)
    a("s_cbranch_scc1 L_fin2")
    silu(32, 33)
    a("v_cvt_pk_bf16_f32 v16, v32, v32")
    a("v_lshlrev_b32 v16, 16, v16")
    a(f"s_add_u32 s8, s8, {SP-MP}")
    a("s_mov_b32 s13, 1")
    stamp(11)
    a("s_branch L_fin")
    a("L_fin2:")
    a("v_mul_f32 v32, v32, v16")
    rnd1(32)
    a("v_add_f32 v32, v32, v11")
    a("v_cvt_pk_bf16_f32 v32, v32, v32")
    exec_pub()
    a(f"buffer_store_short v32, v10, {sOUT}, 0 offen {outsc}")
    stamp(13)
    end_wave()

    a(".p2align 6")
    a("L_late:")
    zero_stamps()
    a("s_setprio 3")
    a("v_mov_b32 v31, 0")
    a(f"ds_write_b32 v31, v31 offset:{L_MODE}")
    a("s_add_u32 s9, s9, 252")
    a(f"v_mul_u32_u24 v26, 20, {vL}")
    a(f"v_mul_u32_u24 v27, 20, {vR}")
    a(f"v_mul_u32_u24 v30, 122880, {vR}")
    a(f"v_lshl_add_u32 v30, {vC}, 4, v30")
    a("s_mul_i32 s10, s7, 160")
    a("s_mul_i32 s11, s7, 983040")
    a("s_mul_i32 s12, s6, 384")
    a(f"s_lshl_b32 s13, {sWAVE}, 7")
    a("s_add_u32 s11, s11, s12")
    a("s_sub_u32 s13, s13, 512")
    a("s_add_u32 s11, s11, s13")
    a("s_movk_i32 s12, 12288")
    a("s_mov_b32 s54, 1280")
    a("s_mov_b32 s55, 0x20000")
    a("s_mov_b32 s58, 7864320")
    a("s_mov_b32 s59, 0x20000")
    a("s_waitcnt lgkmcnt(0)")
    a("s_mov_b64 s[52:53], s[16:17]")
    a("s_mov_b64 s[56:57], s[22:23]")
    a(f"buffer_load_dwordx4 v[128:131], v26, {sX}, 0 offen")
    a(f"buffer_load_dword v132, v26, {sX}, 0 offen offset:16")
    a(f"buffer_load_dwordx4 v[134:137], v27, {sX}, s10 offen")
    a(f"buffer_load_dword v138, v27, {sX}, s10 offen offset:16")
    for rb in range(10):
        a(f"buffer_load_dwordx4 {vr(vK + 4*rb)}, v30, {sA}, s11 offen {nt}")
        if rb < 9: a("s_add_u32 s11, s11, s12")
    a(f"s_cmp_ge_u32 {sI}, 16")
    a("s_cselect_b64 s[60:61], s[30:31], s[28:29]")
    a("s_mov_b32 s62, 1966080")
    a("s_mov_b32 s63, 0x20000")
    a(f"v_mul_u32_u24 v30, 30720, {vR}")
    a(f"v_lshl_add_u32 v30, {vC}, 4, v30")
    a("s_mul_i32 s11, s7, 245760")
    a("s_and_b32 s10, s6, 1")
    a("s_mul_i32 s12, s10, 15360")
    a("s_add_u32 s11, s11, s12")
    a(f"s_mul_i32 s12, {sX8}, 384")
    a("s_add_u32 s11, s11, s12")
    a("s_add_u32 s11, s11, s13")
    for rb in range(5):
        a(f"buffer_load_dwordx4 {vr(vK + 40 + 4*rb)}, v30, {sBB}, s11 offen offset:{(rb%2)*3072} {nt}")
        if rb % 2 == 1: a("s_addk_i32 s11, 6144")
    srd(sWS, 38, WS_USED)
    lane_consts()
    a("s_waitcnt vmcnt(15)")
    stamp(1)
    for i in range(5):
        a(f"v_lshlrev_b32 v{140+2*i}, 16, v{128+i}")
        a(f"v_and_b32 v{141+2*i}, 0xffff0000, v{128+i}")
    a("v_add_f32 v160, v140, v141")
    for i in range(2, 10): a(f"v_add_f32 v160, v160, v{140+i}")
    red8([160]); red_hi(160, 161)
    a(f"v_mul_f32 v160, {INV640}, v160")
    for i in range(10): a(f"v_sub_f32 v{140+i}, v{140+i}, v160")
    a("v_mul_f32 v162, v140, v140")
    for i in range(1, 10): a(f"v_fmac_f32 v162, v{140+i}, v{140+i}")
    red8([162]); red_hi(162, 161)
    a(f"v_mul_f32 v162, {INV640}, v162")
    rnd2(160, 162)
    a(f"v_add_f32 v162, {EPS}, v162")
    rnd1(162)
    a("v_sqrt_f32 v162, v162")
    rnd1(162)
    a("v_rcp_f32 v162, v162")
    a("s_barrier")
    for i in range(5):
        a(f"v_lshlrev_b32 v{150+2*i}, 16, v{134+i}")
        a(f"v_and_b32 v{151+2*i}, 0xffff0000, v{134+i}")
    for i in range(10): a(f"v_sub_f32 v{150+i}, v{150+i}, v160")
    for i in range(0, 10, 2): rnd2(150 + i, 151 + i)
    for i in range(10): a(f"v_mul_f32 v{150+i}, v{150+i}, v162")
    for i in range(10): mkA(164 + 4*i, 150 + i)
    a("s_waitcnt vmcnt(5)")
    for rb in range(10):
        mfma(vD, 164 + 4*rb, vK + 4*rb, rb == 0)
    a("s_cmp_lg_u32 s10, 0")
    a("s_waitcnt vmcnt(0)")
    a("s_cbranch_scc1 L_mh1")
    for rb in range(5):
        mfma(vD + 4, 164 + 4*rb, vK + 40 + 4*rb, rb == 0)
    a("s_branch L_mh2")
    a("L_mh1:")
    for rb in range(5):
        mfma(vD + 4, 184 + 4*rb, vK + 40 + 4*rb, rb == 0)
    a("L_mh2:")
    stamp(2)
    comb2(vD, vD + 4)
    def body():
        a(f"ds_read_b32 v28, v31 offset:{L_MODE}")
        a("s_waitcnt lgkmcnt(0)")
    poll(body, lambda: a("v_cmp_eq_u32 vcc, 0, v28"), 1)
    a("v_readfirstlane_b32 s12, v28")
    a(f"s_lshl2_add_u32 s13, s13, {sBOX}")
    exec_pub()
    team_store(f"buffer_store_dwordx4 {vr(vD)}, v{vPUB}, {sWS}, s13 offen offset:{QG}", "s12")
    stamp(3)
    a(f"s_cmp_lg_u32 {sWAVE}, 4")
    a("s_cbranch_scc1 L_lq")
    a("s_mov_b32 exec_lo, -1")
    a("s_mov_b32 exec_hi, 0xffff")
    a(f"v_lshrrev_b32 v30, 4, {vL}")
    a("v_lshlrev_b32 v30, 8, v30")
    a(f"v_lshl_add_u32 v30, {vL}, 4, v30")
    a(f"s_mul_i32 s11, s7, {8*BOX}")
    a(f"s_sub_u32 s11, {sBOX}, s11")
    a(f"s_movk_i32 s13, {8*BOX}")
    a("s_waitcnt vmcnt(0)")
    stamp(4)
    def body():
        a("s_mov_b32 s12, s11")
        for j in range(8):
            a(f"buffer_load_dwordx4 {vr(vK + 4*j)}, v30, {sWS}, s12 offen offset:{QG} sc1")
            if j < 7: a(f"s_add_u32 s12, s12, s13")
        a("s_waitcnt vmcnt(0)")
    poll(body, lambda: chk_invalid(range(vK, vK + 32), 28))
    for step in (16, 8, 4):
        for j in range(0, step, 2):
            a(f"v_pk_add_f32 {vr(vK+j,2)}, {vr(vK+j,2)}, {vr(vK+step+j,2)}")
    a(f"v_cvt_pk_bf16_f32 v{vK}, v{vK}, v{vK+1}")
    a(f"v_cvt_pk_bf16_f32 v{vK+1}, v{vK+2}, v{vK+3}")
    a(f"v_and_b32 v30, 8, {vL}")
    a(f"v_add_u32 v30, v30, v{vPUB}")
    a(f"ds_write_b64 v30, {vr(vK,2)} offset:{L_Q}")
    stamp(5)
    a("L_lq:")
    exec_all()
    a("s_waitcnt lgkmcnt(0)")
    a("s_barrier")
    a("s_setprio 0")
    a("s_barrier")
    a("s_branch L_stream")

    a("L_w7:")
    zero_stamps()
    a("s_setprio 3")
    a("v_mov_b32 v31, 0")
    a("s_add_u32 s9, s9, 252")
    a(f"s_mul_i32 {sBOX}, s2, {BOX}")
    for r in range(4): a(f"v_mov_b32 v{140+r}, -1")
    a(f"v_lshlrev_b32 v30, 4, {vL}")
    a("s_getreg_b32 s10, hwreg(HW_REG_XCC_ID, 0, 4)")
    a("s_waitcnt lgkmcnt(0)")
    srd(sWS, 38, WS_USED)
    def clears(fl):
        a(f"buffer_store_dwordx4 v[140:143], v30, {sWS}, {sBOX} offen {fl}")
        a(f"buffer_store_dwordx4 v[140:143], v30, {sWS}, {sBOX} offen offset:1024 {fl}")
        a("s_mov_b64 exec, 0xffffff")
        a(f"buffer_store_dwordx4 v[140:143], v30, {sWS}, {sBOX} offen offset:2048 {fl}")
    a(f"buffer_store_dwordx4 v[140:143], v30, {sWS}, {sBOX} offen offset:{MP} sc1")
    clears("")
    a("s_mov_b64 exec, 0xff")
    a(f"buffer_store_dwordx4 v[140:143], v30, {sWS}, {sBOX} offen offset:{INB} sc1")
    exec_all()
    lane_consts()
    a("s_and_b32 s10, s10, 7")
    a("s_mul_i32 s11, s10, s10")
    a("s_lshl_b32 s11, s11, 8")
    a("s_add_u32 s10, s10, s11")
    a("s_lshl_b32 s10, s10, 6")
    a("s_add_u32 s10, s10, 1")
    a("s_mov_b32 s11, s10")
    a(f"s_lshl_b32 s12, {sX8}, 5")
    a(f"s_add_u32 s13, {sBOX}, {INB}")
    a(f"v_mul_u32_u24 v133, {8*BOX}, {vL}")
    a(f"s_mul_i32 s7, {sX8}, {BOX}")
    a("s_barrier")
    a("s_waitcnt vmcnt(0)")
    stamp(1)
    a("s_atomic_add s11, s[36:37], s12 glc")
    def inbox_wait(n, bad):
        a(f"s_mov_b32 {sCNT}, {BOUND}")
        a(f"L_in{n}:")
        a("s_load_dword s11, s[38:39], s13 glc")
        a("s_waitcnt lgkmcnt(0)")
        a(f"s_cmp_lg_u32 s11, {bad}")
        a(f"s_cbranch_scc1 L_ind{n}")
        a("s_sleep 2")
        a(f"s_sub_u32 {sCNT}, {sCNT}, 1")
        a(f"s_cbranch_scc0 L_in{n}")
        a(f"L_ind{n}:")
    def broadcast():
        a("v_mov_b32 v28, s11")
        a("s_mov_b32 exec_hi, 0")
        a(f"buffer_store_dword v28, v133, {sWS}, s7 offen offset:{INB} sc1")
        exec_all()
    a("s_waitcnt lgkmcnt(0)")
    stamp(2)
    a("s_add_u32 s11, s11, s10")
    a("s_and_b32 s6, s11, 31")
    a("s_cbranch_scc1 L_w7a")
    a("s_lshl_b32 s10, s10, 5")
    a(f"s_cmp_eq_u32 s11, {'0' if force_global else 's10'}")
    a("s_cselect_b32 s11, 1, 2")
    broadcast()
    a("L_w7a:")
    inbox_wait(1, -1)
    stamp(3)
    a("v_mov_b32 v28, 1")
    a("s_cmp_eq_u32 s11, 1")
    a("s_cbranch_scc1 L_w7m")
    clears("sc1")
    exec_all()
    a("s_mov_b32 s11, 1")
    a("s_add_u32 s12, s12, 4")
    a("s_waitcnt vmcnt(0)")
    a("s_atomic_add s11, s[36:37], s12 glc")
    a("s_waitcnt lgkmcnt(0)")
    a("s_add_u32 s11, s11, 1")
    a("s_and_b32 s6, s11, 31")
    a("s_cbranch_scc1 L_w7b")
    a("s_mov_b32 s11, 3")
    broadcast()
    a("L_w7b:")
    inbox_wait(2, 2)
    a("v_mov_b32 v28, 2")
    a("L_w7m:")
    a(f"ds_write_b32 v31, v28 offset:{L_MODE}")
    a("s_branch L_lq")

    if stamps:
        a("L_dump:")
        exec_all()
        a("s_waitcnt vmcnt(0)")
        stamp(14)
        a("s_waitcnt lgkmcnt(0)")
        a("v_mov_b32 v4, 0")
        for i in range(15):
            a(f"v_mov_b32 v5, s{72+2*i}")
            a(f"v_cmp_eq_u32 vcc, {i}, v0")
            a("v_cndmask_b32 v4, v4, v5, vcc")
        srd(sWS, 38, "0x10000000")
        a("s_lshl_b32 s7, s2, 3")
        a(f"s_add_u32 s7, s7, {sWAVE}")
        a("s_lshl_b32 s7, s7, 6")
        a(f"s_add_u32 s7, s7, {STAMP_OFF}")
        a("v_lshlrev_b32 v3, 2, v0")
        a("s_mov_b64 exec, 0xffff")
        a(f"buffer_store_dword v4, v3, {sWS}, s7 offen")
    a("L_end:")
    a("s_endpgm")
    A.raw('.section .rodata,"a"')
    A.raw(".p2align 6")
    A.raw(f".amdhsa_kernel {KNAME}")
    A.raw("  .amdhsa_next_free_vgpr 256")
    A.raw("  .amdhsa_next_free_sgpr 102")
    A.raw("  .amdhsa_accum_offset 256")
    A.raw("  .amdhsa_group_segment_fixed_size 0")
    A.raw("  .amdhsa_kernarg_size 96")
    A.raw("  .amdhsa_user_sgpr_count 2")
    A.raw("  .amdhsa_user_sgpr_kernarg_segment_ptr 1")
    A.raw("  .amdhsa_system_sgpr_workgroup_id_x 1")
    A.raw("  .amdhsa_float_denorm_mode_32 3")
    A.raw(".end_amdhsa_kernel")
    return A.finalize()

if __name__ == "__main__":
    out = sys.argv[1]
    kw = {}
    for x in sys.argv[2:]:
        k, v = x.split("=")
        kw[k] = eval(v) if v[0].isdigit() or v in ("True", "False") else v
    open(out, "w").write(gen(**kw))
```

```python
import sys, os
sys.path.insert(0, os.path.dirname(os.path.abspath(__file__)))
from asmlib import Asm

KNAME = "recurrent_scan__sliding_block_cached__glu_gated_swiglu__decode_kernel"
SLICE = 2432
TEAM = 32 * SLICE
TQ, TG, TO, HO = 0, 24576, 49152, 6272
GB = 8 * TEAM
BOX = 1152
INB, MP, SP = 0, 128, 640
WS_USED = GB + 256 * BOX
STAMP_OFF = 2 << 20
BOUND = 200000
L_MODE, L_M, L_Q, L_ROW = 0, 64, 128, 1024
ROWS = 784
L_TS = L_ROW + 16 * ROWS
L_TM = L_TS + 2048
LDS_BYTES = L_TM + 512
DPP = "row_mask:0xf bank_mask:0xf"
LOG2E = "0x3fb8aa3b"
SCALE = "0x3d93cd3a"
INV640 = "0x3acccccd"
EPS = "0x3727c5ac"

sWAVE, sX8, sI = "s3", "s4", "s5"
sK, sV, sWS, sX, sA, sBB, sDBG, sOUT = ("s[40:43]", "s[44:47]", "s[48:51]", "s[52:55]", "s[56:59]", "s[60:63]", "s[64:67]", "s[68:71]")
sCNT = "s15"
sBOX = "s14"
vL, vKV, vR, vC = "v0", "v1", "v2", "v3"
vM = [4, 5, 6, 7]
vQ = 8
vS = 20
vK, vV, vD, vA = 32, 128, 224, 236
vPUB = 247

def vr(a, n=4):
    return f"v[{a}:{a+n-1}]"

def gen(stamps=False, nt="nt", W=7, W0=3, b2=True, w2win=0, mplate=True, maskpoll=True, outsc="", force_global=False, notail=False, csleep=0):
    A = Asm()
    a = A
    assert W <= 15
    def stamp(i):
        if stamps:
            a(f"s_memrealtime s[{72+2*i}:{73+2*i}]")
    def srd(dst, ptr, nbytes):
        d = int(dst[2:dst.index(":")])
        a(f"s_mov_b64 s[{d}:{d+1}], s[{ptr}:{ptr+1}]")
        a(f"s_mov_b32 s{d+2}, {nbytes}")
        a(f"s_mov_b32 s{d+3}, 0x20000")
    def red8(regs, op="add_f32"):
        for ctl in ("quad_perm:[1,0,3,2]", "quad_perm:[2,3,0,1]", "row_half_mirror"):
            for r in regs:
                a(f"v_{op}_dpp v{r}, v{r}, v{r} {ctl} {DPP}")
    def red_hi(r, t, op="add"):
        a(f"v_{op}_f32_dpp v{r}, v{r}, v{r} row_ror:8 {DPP}")
        a(f"v_mov_b32 v{t}, v{r}")
        a(f"v_permlane16_swap_b32 v{r}, v{t}")
        a(f"v_{op}_f32 v{r}, v{r}, v{t}")
        a(f"v_mov_b32 v{t}, v{r}")
        a(f"v_permlane32_swap_b32 v{r}, v{t}")
        a(f"v_{op}_f32 v{r}, v{r}, v{t}")
    def rnd1(r):
        a(f"v_cvt_pk_bf16_f32 v{r}, v{r}, v{r}")
        a(f"v_lshlrev_b32 v{r}, 16, v{r}")
    def rnd2(r0, r1):
        a(f"v_cvt_pk_bf16_f32 v{r1}, v{r0}, v{r1}")
        a(f"v_lshlrev_b32 v{r0}, 16, v{r1}")
        a(f"v_and_b32 v{r1}, 0xffff0000, v{r1}")
    def mkA(dst, val):
        a(f"v_cvt_pk_bf16_f32 v{dst+3}, v{val}, v{val}")
        for w in range(4):
            a(f"v_and_b32 v{dst+w}, v{vM[w]}, v{dst+3}")
    def mfma(d, aa, b, first=False):
        a(f"v_mfma_f32_16x16x32_bf16 {vr(d)}, {vr(aa)}, {vr(b)}, {'0' if first else vr(d)}")
    def lane_consts():
        a(f"v_and_b32 v28, 1, {vC}")
        a("v_lshlrev_b32 v28, 4, v28")
        a("v_mov_b32 v29, 0xffff")
        a("v_lshlrev_b32 v28, v28, v29")
        a(f"v_lshrrev_b32 v29, 1, {vC}")
        for w in range(4):
            a(f"v_cmp_eq_u32 vcc, {w}, v29")
            a(f"v_cndmask_b32 v{vM[w]}, 0, v28, vcc")
        a(f"v_lshrrev_b32 v28, 4, {vL}")
        a("v_lshlrev_b32 v28, 7, v28")
        a(f"v_lshl_add_u32 v{vPUB}, {vC}, 4, v28")
        a(f"s_mul_i32 {sBOX}, s2, {BOX}")
        a(f"s_add_u32 {sBOX}, {sBOX}, {GB}")
    lab = [0]
    def poll(body, check, sleep=0):
        lab[0] += 1
        n = lab[0]
        a(f"s_mov_b32 {sCNT}, {BOUND}")
        a(f"Lpoll{n}:")
        body()
        check()
        a(f"s_cbranch_vccz Lpdone{n}")
        if sleep: a(f"s_sleep {sleep}")
        a(f"s_sub_u32 {sCNT}, {sCNT}, 1")
        a(f"s_cbranch_scc0 Lpoll{n}")
        a(f"Lpdone{n}:")
    def chk_invalid(regs, t):
        regs = list(regs)
        a(f"v_max3_u32 v{t}, v{regs[0]}, v{regs[1]}, v{regs[2]}")
        i = 3
        while i < len(regs):
            if i + 1 < len(regs):
                a(f"v_max3_u32 v{t}, v{t}, v{regs[i]}, v{regs[i+1]}"); i += 2
            else:
                a(f"v_max_u32 v{t}, v{t}, v{regs[i]}"); i += 1
        a(f"v_cmp_eq_u32 vcc, -1, v{t}")
    def silu(r, t):
        a(f"v_mul_f32 v{t}, 0xbfb8aa3b, v{r}")
        a(f"v_exp_f32 v{t}, v{t}")
        a(f"v_add_f32 v{t}, 1.0, v{t}")
        a(f"v_rcp_f32 v{t}, v{t}")
        a(f"v_mul_f32 v{r}, v{r}, v{t}")
    def comb2(d, e):
        for r in range(4): a(f"v_permlane32_swap_b32 v{d+r}, v{e+r}")
        for r in range(4): a(f"v_add_f32_dpp v{d+r}, v{e+r}, v{d+r} row_ror:8 {DPP}")
    def exec_pub():
        a("s_mov_b32 exec_lo, 0x00ff00ff")
        a("s_mov_b32 exec_hi, 0x00ff00ff")
    def exec_all():
        a("s_mov_b64 exec, -1")
    def team_store(text, mode):
        lab[0] += 1
        n = lab[0]
        a(f"s_cmp_eq_u32 {mode}, 1")
        a(f"s_cbranch_scc0 Lts{n}")
        a(text)
        a(f"s_branch Lte{n}")
        a(f"Lts{n}:")
        a(text + " sc1")
        a(f"Lte{n}:")
    def dots(gs):
        for i in range(12):
            for g in gs:
                a(f"v_dot2c_f32_bf16 v{vS+g}, v{vK + 12*g + i}, v{vQ+i}")
    def score_post(gs):
        red8([vS + g for g in gs])
        for j in range(0, len(gs), 2): rnd2(vS + gs[j], vS + gs[j+1])
        for g in gs: a(f"v_mul_f32 v{vS+g}, {SCALE}, v{vS+g}")
        for j in range(0, len(gs), 2): rnd2(vS + gs[j], vS + gs[j+1])
    def end_wave():
        if stamps: a("s_branch L_dump")
        else: a("s_endpgm")
    def zero_stamps():
        if stamps:
            for j in range(1, 15): a(f"s_mov_b64 s[{72+2*j}:{73+2*j}], 0")

    A.raw(f"; @launch grid=(256,1,1) block=(512,1,1) lds={LDS_BYTES}")
    A.raw('.amdgcn_target "amdgcn-amd-amdhsa--gfx950"')
    A.raw(".text")
    A.raw(f".globl {KNAME}")
    A.raw(".p2align 8")
    A.raw(f".type {KNAME},@function")
    a(f"{KNAME}:")
    stamp(0)
    a("s_load_dwordx2 s[40:41], s[0:1], 8")
    a("s_load_dwordx2 s[44:45], s[0:1], 16")
    a("s_load_dwordx16 s[16:31], s[0:1], 0")
    a("s_load_dwordx8 s[32:39], s[0:1], 64")
    a("v_lshrrev_b32 v1, 6, v0")
    a("s_cmpk_ge_u32 s2, 256")
    a("s_cbranch_scc1 L_end")
    a(f"v_readfirstlane_b32 {sWAVE}, v1")
    a("v_and_b32 v0, 63, v0")
    a(f"v_lshrrev_b32 {vR}, 3, {vL}")
    a(f"v_and_b32 {vC}, 7, {vL}")
    a(f"s_and_b32 {sX8}, s2, 7")
    a(f"s_lshr_b32 {sI}, s2, 3")
    a("s_lshr_b32 s6, s2, 6")
    a(f"s_lshl2_add_u32 s6, {sX8}, s6")
    a(f"s_and_b32 s7, {sI}, 7")
    a("s_mul_i32 s8, s6, 12582912")
    a(f"s_lshl2_add_u32 s9, s7, {sWAVE}")
    a("s_mov_b32 s42, 402653184")
    a("s_mov_b32 s43, 0x20000")
    a(f"s_cmp_eq_u32 {sWAVE}, 7")
    a("s_cbranch_scc1 L_w7")
    a(f"s_cmp_ge_u32 {sWAVE}, 4")
    a("s_cbranch_scc1 L_late")

    a("L_stream:")
    a("s_mulk_i32 s9, 3072")
    a(f"s_add_u32 s8, s8, {28672*384}")
    a(f"v_mul_u32_u24 {vKV}, 384, {vR}")
    a("s_add_u32 s8, s8, s9")
    a(f"v_lshl_add_u32 {vKV}, {vC}, 4, {vKV}")
    a("s_mov_b32 s9, s8")
    a("s_mov_b32 s10, 98304")
    a("s_waitcnt lgkmcnt(0)")
    n = [0]
    def kv_load(which, g):
        base, s, so = (vK, sK, "s8") if which == "k" else (vV, sV, "s9")
        for i in range(3):
            if n[0] >= W: a(f"s_waitcnt vmcnt({W-1})")
            a(f"buffer_load_dwordx4 {vr(base + 12*g + 4*i)}, {vKV}, {s}, {so} offen offset:{i*128} {nt}")
            n[0] += 1
            if n[0] == W0:
                a("s_mov_b64 s[46:47], s[42:43]")
                a(f"s_cmp_ge_u32 {sWAVE}, 4")
                a("s_cbranch_scc1 L_skip0")
                zero_stamps()
                lane_consts()
                a("s_barrier")
                stamp(13)
                a("L_skip0:")
        if g < 7: a(f"s_add_u32 {so}, {so}, s10")
    for g in range(8): kv_load("k", g)
    stamp(6)
    for g in range(8):
        kv_load("v", g)
        if g == 4:
            a(f"s_cmp_ge_u32 {sWAVE}, 4")
            a("s_cbranch_scc1 L_skipq")
            stamp(1)
            a("s_barrier")
            stamp(2)
            a("L_skipq:")
            a(f"v_lshlrev_b32 v28, 4, {vC}")
            for i in range(3):
                a(f"ds_read_b128 {vr(vQ + 4*i)}, v28 offset:{L_Q + 128*i}")
            for j in range(8):
                a(f"v_mov_b32 v{vS+j}, 0")
            a("s_waitcnt lgkmcnt(0)")
            dots([0, 1, 2, 3]); score_post([0, 1, 2, 3])
        if g == 5:
            dots([4, 5, 6, 7]); score_post([4, 5, 6, 7])
        if g == 6:
            a(f"v_max3_f32 v244, v{vS}, v{vS+1}, v{vS+2}")
            a(f"v_max3_f32 v244, v244, v{vS+3}, v{vS+4}")
            a(f"v_max3_f32 v244, v244, v{vS+5}, v{vS+6}")
            a(f"v_max_f32 v244, v244, v{vS+7}")
            red_hi(244, 28, "max")
            a(f"s_lshl_b32 s7, {sWAVE}, 2")
            a("v_mov_b32 v29, s7")
            a(f"ds_write_b32 v29, v244 offset:{L_M}")
            for j in range(8): a(f"v_sub_f32 v{vS+j}, v{vS+j}, v244")
            for j in range(8): a(f"v_mul_f32 v{vS+j}, {LOG2E}, v{vS+j}")
            for j in range(8): a(f"v_exp_f32 v{vS+j}, v{vS+j}")
    stamp(7)
    a("s_waitcnt lgkmcnt(0)")
    a("s_barrier")
    stamp(8)
    a(f"v_add_f32 v33, v{vS}, v{vS+1}")
    for j in range(2, 8): a(f"v_add_f32 v33, v33, v{vS+j}")
    red_hi(33, 28, "add")
    a(f"s_mul_i32 s7, {sWAVE}, {2*ROWS}")
    a(f"v_lshrrev_b32 v29, 5, {vL}")
    a(f"v_mul_u32_u24 v29, {ROWS}, v29")
    a("v_add_u32 v29, s7, v29")
    a(f"v_and_b32 v28, 16, {vL}")
    a(f"v_lshl_add_u32 v28, {vC}, 5, v28")
    a("v_add_u32 v30, v28, v29")
    a(f"v_cmp_gt_u32 vcc, 32, {vL}")
    a("v_mov_b32 v32, 0")
    a("v_mov_b32 v34, 0")
    a("v_mov_b32 v35, 0")
    a("v_cndmask_b32 v33, 0, v33, vcc")
    a(f"ds_write_b128 v29, v[32:35] offset:{L_ROW + 768}")
    for g in range(8):
        aa = vA + 4 * (g % 2)
        mkA(aa, vS + g)
        for i in range(3):
            k = 23 - 3*g - i
            if k < W: a(f"s_waitcnt vmcnt({k})")
            mfma(vD + 4*i, aa, vV + 12*g + 4*i, g == 0)
    stamp(9)
    a("s_mov_b32 exec_lo, 0x00ff00ff")
    a("s_mov_b32 exec_hi, 0xff00ff00")
    a(f"s_cmp_lt_u32 {sWAVE}, 4")
    for i in range(3):
        a(f"ds_write_b128 v30, {vr(vD + 4*i)} offset:{L_ROW + 256*i}")
    a("s_cbranch_scc1 L_early")
    a("s_waitcnt lgkmcnt(0)")
    a("s_barrier")
    stamp(10)
    if (stamps or mplate) and not notail:
        a(f"s_cmp_ge_u32 {sI}, 30")
        a("s_cbranch_scc1 L_done")
        if mplate:
            a(f"s_cmp_lg_u32 {sWAVE}, 4")
            a(f"s_cbranch_scc1 {'L_lb' if stamps else 'L_done'}")
            a("s_mov_b32 exec_lo, -1")
            a("s_mov_b32 exec_hi, 0")
            a(f"v_lshlrev_b32 v31, 4, {vL}")
            a(f"ds_read_b128 v[32:35], v31 offset:{L_TM}")
            srd(sWS, 38, WS_USED)
            a("s_waitcnt lgkmcnt(0)")
            a(f"buffer_store_dwordx4 v[32:35], v31, {sWS}, {sBOX} offen offset:{MP} sc1")
            a("L_lb:")
        if b2: a("s_barrier")
        a("s_barrier")
    end_wave()

    a("L_early:")
    exec_all()
    srd(sWS, 38, WS_USED)
    a(f"v_lshlrev_b32 v31, 4, {vL}")
    a(f"s_mul_i32 s12, {sX8}, {TEAM}")
    a(f"s_add_u32 s12, s12, {TO}")
    a(f"s_cmp_ge_u32 {sI}, 30")
    a("s_cbranch_scc1 L_notile")
    srd(sA, 24, 7864320)
    a(f"s_mul_i32 s13, {sI}, 52")
    a("s_lshr_b32 s13, s13, 8")
    a("s_mul_i32 s7, s13, 5")
    a(f"s_sub_u32 s7, {sI}, s7")
    a(f"s_lshl2_add_u32 s6, s13, {sWAVE}")
    a("s_lshl_b32 s7, s7, 8")
    a(f"s_mul_i32 s8, {sX8}, 24")
    a("s_add_u32 s8, s8, s6")
    a("s_mul_i32 s8, s8, 40960")
    a("s_add_u32 s8, s8, s7")
    a(f"v_mul_u32_u24 v248, 5120, {vR}")
    a(f"v_lshl_add_u32 v248, {vC}, 4, v248")
    a(f"v_lshlrev_b32 v250, 4, {vC}")
    a("s_mul_i32 s10, s6, 43")
    a("s_lshr_b32 s10, s10, 8")
    a("s_mul_i32 s11, s10, 6")
    a("s_sub_u32 s11, s6, s11")
    a("s_lshl_b32 s11, s11, 10")
    a(f"s_mul_i32 s10, s10, {HO}")
    a("s_add_u32 s10, s10, s12")
    a("s_add_u32 s11, s11, s10")
    a("s_addk_i32 s10, 6144")
    a(f"s_lshl_b32 s6, {sWAVE}, 9")
    a(f"v_add_u32 v246, s6, v{vPUB}")
    a(f"s_cmp_eq_u32 {sWAVE}, 3")
    a("s_cbranch_scc1 L_mlp2")
    a("L_ea:")
    a("s_waitcnt lgkmcnt(0)")
    a("s_barrier")
    stamp(3)
    for rb in range(4):
        for li in range(2):
            a(f"buffer_load_dwordx4 {vr(vK + 8*rb + 4*li)}, v248, {sA}, s8 offen offset:{rb*1280 + li*128} {nt}")
    a(f"s_cmp_eq_u32 {sWAVE}, 0")
    a("s_cbranch_scc1 L_pub")
    a("s_barrier")
    stamp(4)
    a("s_branch L_og")

    a("L_pub:")
    a("v_mov_b32 v28, 0")
    a("s_mov_b32 exec_hi, 0x1ffff")
    a(f"ds_read_b32 v137, v28 offset:{L_MODE}")
    a(f"ds_read_b128 v[128:131], v28 offset:{L_M}")
    a(f"ds_read_b128 v[132:135], v28 offset:{L_M+16}")
    for j in range(8):
        a(f"ds_read_b128 {vr(160 + 4*j)}, v31 offset:{L_ROW + ROWS*j}")
    a("s_waitcnt lgkmcnt(0)")
    a("v_readfirstlane_b32 s13, v137")
    a(f"s_lshr_b32 s6, {sI}, 3")
    a(f"s_mul_i32 s6, s6, {HO}")
    a(f"s_and_b32 s7, {sI}, 7")
    a("s_lshl4_add_u32 s6, s7, s6")
    a("s_add_u32 s6, s6, s12")
    a(f"v_lshlrev_b32 v30, 7, {vL}")
    a("v_max3_f32 v136, v128, v129, v130")
    a("v_max3_f32 v136, v136, v131, v132")
    a("v_max3_f32 v136, v136, v133, v134")
    a("v_max_f32 v136, v136, v135")
    for j in range(8): a(f"v_sub_f32 v{128+j}, v{128+j}, v136")
    for j in range(8): a(f"v_mul_f32 v{128+j}, {LOG2E}, v{128+j}")
    for j in range(8): a(f"v_exp_f32 v{140+2*j}, v{128+j}")
    a(f"v_cmp_eq_u32 vcc, 48, {vL}")
    a("v_mov_b32 v157, 0")
    a("v_mov_b32 v158, 0")
    a("v_mov_b32 v159, 0")
    a("v_cndmask_b32 v156, 0, v136, vcc")
    def rows_acc(w0):
        for w in range(4):
            for h in (0, 2):
                a(f"v_pk_add_f32 {vr(160+8*w+h,2)}, {vr(160+8*w+h,2)}, {vr(164+8*w+h,2)}")
        for w in range(4):
            for h in (0, 2):
                a(f"v_pk_fma_f32 {vr(156+h,2)}, {vr(160+8*w+h,2)}, {vr(140+2*(w0+w),2)}, {vr(156+h,2)} op_sel_hi:[1,0,1]")
    rows_acc(0)
    a("s_barrier")
    stamp(4)
    for j in range(8):
        a(f"ds_read_b128 {vr(160 + 4*j)}, v31 offset:{L_ROW + ROWS*(8+j)}")
    a("s_waitcnt lgkmcnt(0)")
    rows_acc(4)
    if not notail: team_store(f"buffer_store_dwordx4 v[156:159], v30, {sWS}, s6 offen", "s13")
    exec_all()
    a(f"s_cmp_ge_u32 {sI}, 30")
    a("s_cbranch_scc1 L_done")
    a("L_og:")
    if b2: a("s_barrier")
    else: a("s_waitcnt vmcnt(0)")
    stamp(10)
    if notail:
        a("s_waitcnt vmcnt(0)")
        stamp(11)
        end_wave()
    def body():
        a(f"buffer_load_dwordx4 v[8:11], v31, {sWS}, s11 offen sc1")
        a(f"buffer_load_dwordx2 v[12:13], v250, {sWS}, s10 offen sc1")
        a("s_waitcnt vmcnt(0)")
    poll(body, lambda: chk_invalid([8, 9, 10, 11, 12, 13], 28))
    stamp(11)
    a("v_max_f32_dpp v14, v12, v12 quad_perm:[1,0,3,2] " + DPP)
    a("v_max_f32_dpp v14, v14, v14 quad_perm:[2,3,0,1] " + DPP)
    a("v_max_f32_dpp v14, v14, v14 row_half_mirror " + DPP)
    a("v_sub_f32 v12, v12, v14")
    a(f"v_mul_f32 v12, {LOG2E}, v12")
    a("v_exp_f32 v12, v12")
    a("v_mul_f32 v13, v13, v12")
    a("v_pk_mul_f32 v[8:9], v[8:9], v[12:13] op_sel_hi:[1,0]")
    a("v_pk_mul_f32 v[10:11], v[10:11], v[12:13] op_sel_hi:[1,0]")
    red8([13, 8, 9, 10, 11])
    a("v_rcp_f32 v12, v13")
    a("v_pk_mul_f32 v[8:9], v[8:9], v[12:13] op_sel_hi:[1,0]")
    a("v_pk_mul_f32 v[10:11], v[10:11], v[12:13] op_sel_hi:[1,0]")
    mkA(128, 8)
    for rb in range(4):
        if rb < 3: mkA(132 + 4*rb, 9 + rb)
        for li in range(2):
            mfma(vD + 4*li, 128 + 4*rb, vK + 8*rb + 4*li, rb == 0)
    comb2(vD, vD + 4)
    exec_pub()
    a(f"ds_write_b128 v246, {vr(vD)} offset:{L_TS}")
    a(f"s_cmp_lg_u32 {sWAVE}, 1")
    a("s_mov_b32 exec_lo, -1")
    a("s_waitcnt lgkmcnt(0)")
    a("s_barrier")
    a("s_cbranch_scc1 L_done")
    a("s_mov_b32 exec_hi, 0")
    for j in range(4):
        a(f"ds_read_b128 {vr(128 + 4*j)}, v31 offset:{L_TS + 512*j}")
    a("s_waitcnt lgkmcnt(0)")
    for j in (0, 2, 4, 6): a(f"v_pk_add_f32 {vr(128+j,2)}, {vr(128+j,2)}, {vr(136+j,2)}")
    for j in (0, 2): a(f"v_pk_add_f32 {vr(128+j,2)}, {vr(128+j,2)}, {vr(132+j,2)}")
    a(f"buffer_store_dwordx4 v[128:131], v31, {sWS}, {sBOX} offen offset:{SP} sc1")
    stamp(12)
    a("L_done:")
    end_wave()

    a("L_mlp2:")
    srd(sBB, 32, 1966080)
    a("s_lshr_b32 s6, s13, 1")
    a(f"s_mul_i32 s9, {sX8}, 48")
    a("s_lshl4_add_u32 s9, s6, s9")
    a("s_and_b32 s6, s13, 1")
    a("s_add_u32 s9, s9, s6")
    a("s_mul_i32 s9, s9, 5120")
    a("s_add_u32 s9, s9, s7")
    a(f"v_mul_u32_u24 v251, 10240, {vR}")
    a(f"v_lshl_add_u32 v251, {vC}, 4, v251")
    a("s_lshl_b32 s13, s13, 11")
    a("s_add_u32 s13, s13, s12")
    a(f"s_sub_u32 s13, s13, {TO-TG}")
    a("s_add_u32 s6, s13, 12288")
    a(f"v_lshl_add_u32 v249, {vR}, 8, v250")
    def body():
        for j in range(4):
            a(f"buffer_load_dwordx4 {vr(128+4*j)}, v249, {sWS}, {'s13' if j < 2 else 's6'} offen offset:{128*(j%2)} sc1")
        a("s_waitcnt vmcnt(0)")
    poll(body, lambda: chk_invalid(range(128, 144), 28), 4)
    for rb in range(4):
        for li in range(2):
            if w2win and 2*rb + li >= w2win: a(f"s_waitcnt vmcnt({w2win-1})")
            a(f"buffer_load_dwordx4 {vr(64 + 8*rb + 4*li)}, v251, {sBB}, s9 offen offset:{rb*1280 + li*128} {nt}")
    for j in (0, 2):
        a(f"v_pk_add_f32 {vr(128+j,2)}, {vr(128+j,2)}, {vr(132+j,2)}")
        a(f"v_pk_add_f32 {vr(132+j,2)}, {vr(136+j,2)}, {vr(140+j,2)}")
    red8(range(128, 136))
    for j in range(128, 136, 2): rnd2(j, j + 1)
    for j in range(4): silu(128 + j, 136 + j)
    for j in (128, 130): rnd2(j, j + 1)
    for j in range(4): a(f"v_mul_f32 v{128+j}, v{128+j}, v{132+j}")
    for j in range(4): mkA(144 + 4*j, 128 + j)
    a("s_waitcnt vmcnt(0)")
    for rb in range(4):
        for li in range(2):
            mfma(vD + 4*li, 144 + 4*rb, 64 + 8*rb + 4*li, rb == 0)
    comb2(vD, vD + 4)
    exec_pub()
    a(f"ds_write_b128 v246, {vr(vD)} offset:{L_TM-1536}")
    exec_all()
    stamp(5)
    a("s_branch L_ea")

    a("L_notile:")
    a("v_mov_b32 v250, 0")
    a(f"s_cmp_lg_u32 {sWAVE}, 0")
    a("s_cbranch_scc1 L_cons")
    a("s_waitcnt lgkmcnt(0)")
    a("s_barrier")
    a("s_branch L_pub")
    a("L_cons:")
    srd(sDBG, 36, 256)
    srd(sX, 16, 1280)
    srd(sOUT, 34, 1280)
    a(f"s_lshl4_add_u32 s6, {sWAVE}, s2")
    a("s_sub_u32 s6, s6, 256")
    a("s_lshr_b32 s7, s6, 2")
    a("s_and_b32 s8, s6, 3")
    a("s_lshr_b32 s9, s6, 1")
    a("s_lshl_b32 s9, s9, 6")
    a("s_and_b32 s10, s6, 1")
    a("s_lshl2_add_u32 s9, s10, s9")
    a(f"v_lshrrev_b32 v10, 4, {vL}")
    a(f"v_lshl_add_u32 v10, {vC}, 3, v10")
    a("v_add_lshl_u32 v10, v10, s9, 1")
    a(f"buffer_load_ushort v11, v10, {sX}, 0 offen")
    a(f"v_lshlrev_b32 v29, 5, {vC}")
    def body():
        a(f"buffer_load_dword v28, v29, {sDBG}, 0 offen sc1")
        a("s_waitcnt vmcnt(0)")
        a("v_max_u32 v28, 1, v28")
        a("v_and_b32 v28, 31, v28")
    poll(body, lambda: a("v_cmp_ne_u32 vcc, 0, v28"), 4)
    a("v_lshlrev_b32 v11, 16, v11")
    a(f"v_mul_u32_u24 v12, {BOX}, {vR}")
    a(f"v_lshl_add_u32 v12, {vC}, 4, v12")
    a(f"s_mul_i32 s7, s7, {8*BOX}")
    a("s_lshl_b32 s8, s8, 7")
    a("s_add_u32 s8, s8, s7")
    a(f"s_add_u32 s8, s8, {GB+MP}")
    a(f"s_mov_b32 s10, {40*BOX}")
    a("s_mov_b32 s13, 0")
    a("s_waitcnt lgkmcnt(0)")
    a("s_barrier")
    a("s_barrier")
    stamp(4)
    a("s_cmp_ge_u32 s6, 20")
    a("s_cbranch_scc1 L_done")
    if notail: a("s_branch L_done")
    a("L_fin:")
    def body():
        a("s_mov_b32 s9, s8")
        for i in range(6):
            a(f"buffer_load_dwordx4 {vr(32+4*i)}, v12, {sWS}, s9 offen sc1")
            if i < 5: a("s_add_u32 s9, s9, s10")
        a("s_waitcnt vmcnt(0)")
    def chk():
        chk_invalid(range(32, 56), 28)
        if maskpoll: a("s_mov_b64 exec, vcc")
    poll(body, chk, csleep)
    if maskpoll: exec_all()
    stamp(12)
    for j in range(0, 12, 2): a(f"v_pk_add_f32 {vr(32+j,2)}, {vr(32+j,2)}, {vr(44+j,2)}")
    for j in (0, 2): a(f"v_pk_add_f32 {vr(32+j,2)}, {vr(32+j,2)}, {vr(36+j,2)}")
    for j in (0, 2): a(f"v_pk_add_f32 {vr(32+j,2)}, {vr(32+j,2)}, {vr(40+j,2)}")
    a("v_permlane32_swap_b32 v32, v34")
    a("v_permlane32_swap_b32 v33, v35")
    a("v_pk_add_f32 v[32:33], v[32:33], v[34:35]")
    a("s_cmp_lg_u32 s13, 0")
    a("v_permlane16_swap_b32 v32, v33")
    a("v_add_f32 v32, v32, v33")
    a(f"v_add_f32_dpp v32, v32, v32 row_ror:8 {DPP}")
    rnd1(32)
    a("s_cbranch_scc1 L_fin2")
    silu(32, 33)
    a("v_cvt_pk_bf16_f32 v16, v32, v32")
    a("v_lshlrev_b32 v16, 16, v16")
    a(f"s_add_u32 s8, s8, {SP-MP}")
    a("s_mov_b32 s13, 1")
    stamp(11)
    a("s_branch L_fin")
    a("L_fin2:")
    a("v_mul_f32 v32, v32, v16")
    rnd1(32)
    a("v_add_f32 v32, v32, v11")
    a("v_cvt_pk_bf16_f32 v32, v32, v32")
    exec_pub()
    a(f"buffer_store_short v32, v10, {sOUT}, 0 offen {outsc}")
    stamp(13)
    end_wave()

    a(".p2align 6")
    a("L_late:")
    zero_stamps()
    a("s_setprio 3")
    a("v_mov_b32 v31, 0")
    a(f"ds_write_b32 v31, v31 offset:{L_MODE}")
    a("s_add_u32 s9, s9, 252")
    a(f"v_mul_u32_u24 v26, 20, {vL}")
    a(f"v_mul_u32_u24 v27, 20, {vR}")
    a(f"v_mul_u32_u24 v30, 122880, {vR}")
    a(f"v_lshl_add_u32 v30, {vC}, 4, v30")
    a("s_mul_i32 s10, s7, 160")
    a("s_mul_i32 s11, s7, 983040")
    a("s_mul_i32 s12, s6, 384")
    a(f"s_lshl_b32 s13, {sWAVE}, 7")
    a("s_add_u32 s11, s11, s12")
    a("s_sub_u32 s13, s13, 512")
    a("s_add_u32 s11, s11, s13")
    a("s_movk_i32 s12, 12288")
    a("s_mov_b32 s54, 1280")
    a("s_mov_b32 s55, 0x20000")
    a("s_mov_b32 s58, 7864320")
    a("s_mov_b32 s59, 0x20000")
    a("s_waitcnt lgkmcnt(0)")
    a("s_mov_b64 s[52:53], s[16:17]")
    a("s_mov_b64 s[56:57], s[22:23]")
    a(f"buffer_load_dwordx4 v[128:131], v26, {sX}, 0 offen")
    a(f"buffer_load_dword v132, v26, {sX}, 0 offen offset:16")
    a(f"buffer_load_dwordx4 v[134:137], v27, {sX}, s10 offen")
    a(f"buffer_load_dword v138, v27, {sX}, s10 offen offset:16")
    for rb in range(10):
        a(f"buffer_load_dwordx4 {vr(vK + 4*rb)}, v30, {sA}, s11 offen {nt}")
        if rb < 9: a("s_add_u32 s11, s11, s12")
    a(f"s_cmp_ge_u32 {sI}, 16")
    a("s_cselect_b64 s[60:61], s[30:31], s[28:29]")
    a("s_mov_b32 s62, 1966080")
    a("s_mov_b32 s63, 0x20000")
    a(f"v_mul_u32_u24 v30, 30720, {vR}")
    a(f"v_lshl_add_u32 v30, {vC}, 4, v30")
    a("s_mul_i32 s11, s7, 245760")
    a("s_and_b32 s10, s6, 1")
    a("s_mul_i32 s12, s10, 15360")
    a("s_add_u32 s11, s11, s12")
    a(f"s_mul_i32 s12, {sX8}, 384")
    a("s_add_u32 s11, s11, s12")
    a("s_add_u32 s11, s11, s13")
    for rb in range(5):
        a(f"buffer_load_dwordx4 {vr(vK + 40 + 4*rb)}, v30, {sBB}, s11 offen offset:{(rb%2)*3072} {nt}")
        if rb % 2 == 1: a("s_addk_i32 s11, 6144")
    srd(sWS, 38, WS_USED)
    lane_consts()
    a(f"s_mul_i32 s11, {sI}, 768")
    a("s_lshl1_add_u32 s11, s13, s11")
    a(f"v_add_u32 v30, s11, v{vPUB}")
    a(f"s_lshr_b32 s11, {sI}, 4")
    a("s_mul_i32 s11, s11, 12288")
    a("s_lshl_b32 s12, s13, 5")
    a("s_add_u32 s11, s11, s12")
    a(f"s_and_b32 s12, {sI}, 15")
    a("s_lshl4_add_u32 s11, s12, s11")
    a(f"s_add_u32 s11, s11, {TG-4096}")
    a(f"v_lshl_add_u32 v28, v{vPUB}, 4, s11")
    a(f"v_cmp_gt_u32 vcc, 32, {vL}")
    a(f"s_mul_i32 s11, {sX8}, {TEAM}")
    a("v_cndmask_b32 v30, v28, v30, vcc")
    a("s_waitcnt vmcnt(15)")
    stamp(1)
    for i in range(5):
        a(f"v_lshlrev_b32 v{140+2*i}, 16, v{128+i}")
        a(f"v_and_b32 v{141+2*i}, 0xffff0000, v{128+i}")
    a("v_add_f32 v160, v140, v141")
    for i in range(2, 10): a(f"v_add_f32 v160, v160, v{140+i}")
    red8([160]); red_hi(160, 161)
    a(f"v_mul_f32 v160, {INV640}, v160")
    for i in range(10): a(f"v_sub_f32 v{140+i}, v{140+i}, v160")
    a("v_mul_f32 v162, v140, v140")
    for i in range(1, 10): a(f"v_fmac_f32 v162, v{140+i}, v{140+i}")
    red8([162]); red_hi(162, 161)
    a(f"v_mul_f32 v162, {INV640}, v162")
    rnd2(160, 162)
    a(f"v_add_f32 v162, {EPS}, v162")
    rnd1(162)
    a("v_sqrt_f32 v162, v162")
    rnd1(162)
    a("v_rcp_f32 v162, v162")
    a("s_barrier")
    for i in range(5):
        a(f"v_lshlrev_b32 v{150+2*i}, 16, v{134+i}")
        a(f"v_and_b32 v{151+2*i}, 0xffff0000, v{134+i}")
    for i in range(10): a(f"v_sub_f32 v{150+i}, v{150+i}, v160")
    for i in range(0, 10, 2): rnd2(150 + i, 151 + i)
    for i in range(10): a(f"v_mul_f32 v{150+i}, v{150+i}, v162")
    for i in range(10): mkA(164 + 4*i, 150 + i)
    a("s_waitcnt vmcnt(5)")
    for rb in range(10):
        mfma(vD, 164 + 4*rb, vK + 4*rb, rb == 0)
    a("s_cmp_lg_u32 s10, 0")
    a("s_waitcnt vmcnt(0)")
    a("s_cbranch_scc1 L_mh1")
    for rb in range(5):
        mfma(vD + 4, 164 + 4*rb, vK + 40 + 4*rb, rb == 0)
    a("s_branch L_mh2")
    a("L_mh1:")
    for rb in range(5):
        mfma(vD + 4, 184 + 4*rb, vK + 40 + 4*rb, rb == 0)
    a("L_mh2:")
    stamp(2)
    comb2(vD, vD + 4)
    def body():
        a(f"ds_read_b32 v28, v31 offset:{L_MODE}")
        a("s_waitcnt lgkmcnt(0)")
    poll(body, lambda: a("v_cmp_eq_u32 vcc, 0, v28"), 1)
    a("v_readfirstlane_b32 s12, v28")
    exec_pub()
    team_store(f"buffer_store_dwordx4 {vr(vD)}, v30, {sWS}, s11 offen", "s12")
    stamp(3)
    a(f"s_cmp_lg_u32 {sWAVE}, 4")
    a("s_cbranch_scc1 L_lq")
    a("s_mov_b32 exec_lo, -1")
    a("s_mov_b32 exec_hi, 0xffff")
    a(f"v_lshlrev_b32 v30, 4, {vL}")
    a(f"s_lshr_b32 s12, {sI}, 3")
    a("s_mul_i32 s12, s12, 6144")
    a("s_add_u32 s11, s11, s12")
    a("s_add_u32 s12, s11, 3072")
    a("s_waitcnt vmcnt(0)")
    stamp(4)
    def body():
        for j in range(8):
            a(f"buffer_load_dwordx4 {vr(vK + 4*j)}, v30, {sWS}, {'s11' if j < 4 else 's12'} offen offset:{768*(j%4)} sc1")
        a("s_waitcnt vmcnt(0)")
    poll(body, lambda: chk_invalid(range(vK, vK + 32), 28))
    for step in (16, 8, 4):
        for j in range(0, step, 2):
            a(f"v_pk_add_f32 {vr(vK+j,2)}, {vr(vK+j,2)}, {vr(vK+step+j,2)}")
    a(f"v_cvt_pk_bf16_f32 v{vK}, v{vK}, v{vK+1}")
    a(f"v_cvt_pk_bf16_f32 v{vK+1}, v{vK+2}, v{vK+3}")
    a(f"v_and_b32 v30, 8, {vL}")
    a(f"v_add_u32 v30, v30, v{vPUB}")
    a(f"ds_write_b64 v30, {vr(vK,2)} offset:{L_Q}")
    stamp(5)
    a("L_lq:")
    exec_all()
    a("s_waitcnt lgkmcnt(0)")
    a("s_barrier")
    a("s_setprio 0")
    a("s_barrier")
    a("s_branch L_stream")

    a("L_w7:")
    zero_stamps()
    a("s_setprio 3")
    a("v_mov_b32 v31, 0")
    a("s_add_u32 s9, s9, 252")
    a(f"s_mul_i32 {sBOX}, s2, {BOX}")
    a(f"s_add_u32 {sBOX}, {sBOX}, {GB}")
    a(f"s_lshl_b32 s70, {sX8}, 5")
    a(f"s_add_u32 s70, s70, {sI}")
    a(f"s_mulk_i32 s70, {SLICE}")
    for r in range(4): a(f"v_mov_b32 v{140+r}, -1")
    a(f"v_lshlrev_b32 v30, 4, {vL}")
    a("s_getreg_b32 s10, hwreg(HW_REG_XCC_ID, 0, 4)")
    a("s_waitcnt lgkmcnt(0)")
    srd(sWS, 38, WS_USED)
    def clears(fl):
        a(f"buffer_store_dwordx4 v[140:143], v30, {sWS}, s70 offen {fl}")
        a(f"buffer_store_dwordx4 v[140:143], v30, {sWS}, s70 offen offset:1024 {fl}")
        a("s_mov_b64 exec, 0xffffff")
        a(f"buffer_store_dwordx4 v[140:143], v30, {sWS}, s70 offen offset:2048 {fl}")
    a(f"buffer_store_dwordx4 v[140:143], v30, {sWS}, {sBOX} offen offset:{MP} sc1")
    clears("")
    a("s_mov_b64 exec, 0xff")
    a(f"buffer_store_dwordx4 v[140:143], v30, {sWS}, {sBOX} offen offset:{INB} sc1")
    exec_all()
    lane_consts()
    a("s_and_b32 s10, s10, 7")
    a("s_mul_i32 s11, s10, s10")
    a("s_lshl_b32 s11, s11, 8")
    a("s_add_u32 s10, s10, s11")
    a("s_lshl_b32 s10, s10, 6")
    a("s_add_u32 s10, s10, 1")
    a("s_mov_b32 s11, s10")
    a(f"s_lshl_b32 s12, {sX8}, 5")
    a(f"s_add_u32 s13, {sBOX}, {INB}")
    a(f"v_mul_u32_u24 v133, {8*BOX}, {vL}")
    a(f"s_mul_i32 s7, {sX8}, {BOX}")
    a(f"s_add_u32 s7, s7, {GB}")
    a("s_barrier")
    a("s_waitcnt vmcnt(0)")
    stamp(1)
    a("s_atomic_add s11, s[36:37], s12 glc")
    def inbox_wait(n, bad):
        a(f"s_mov_b32 {sCNT}, {BOUND}")
        a(f"L_in{n}:")
        a("s_load_dword s11, s[38:39], s13 glc")
        a("s_waitcnt lgkmcnt(0)")
        a(f"s_cmp_lg_u32 s11, {bad}")
        a(f"s_cbranch_scc1 L_ind{n}")
        a("s_sleep 2")
        a(f"s_sub_u32 {sCNT}, {sCNT}, 1")
        a(f"s_cbranch_scc0 L_in{n}")
        a(f"L_ind{n}:")
    def broadcast():
        a("v_mov_b32 v28, s11")
        a("s_mov_b32 exec_hi, 0")
        a(f"buffer_store_dword v28, v133, {sWS}, s7 offen offset:{INB} sc1")
        exec_all()
    a("s_waitcnt lgkmcnt(0)")
    stamp(2)
    a("s_add_u32 s11, s11, s10")
    a("s_and_b32 s6, s11, 31")
    a("s_cbranch_scc1 L_w7a")
    a("s_lshl_b32 s10, s10, 5")
    a(f"s_cmp_eq_u32 s11, {'0' if force_global else 's10'}")
    a("s_cselect_b32 s11, 1, 2")
    broadcast()
    a("L_w7a:")
    inbox_wait(1, -1)
    stamp(3)
    a("v_mov_b32 v28, 1")
    a("s_cmp_eq_u32 s11, 1")
    a("s_cbranch_scc1 L_w7m")
    clears("sc1")
    exec_all()
    a("s_mov_b32 s11, 1")
    a("s_add_u32 s12, s12, 4")
    a("s_waitcnt vmcnt(0)")
    a("s_atomic_add s11, s[36:37], s12 glc")
    a("s_waitcnt lgkmcnt(0)")
    a("s_add_u32 s11, s11, 1")
    a("s_and_b32 s6, s11, 31")
    a("s_cbranch_scc1 L_w7b")
    a("s_mov_b32 s11, 3")
    broadcast()
    a("L_w7b:")
    inbox_wait(2, 2)
    a("v_mov_b32 v28, 2")
    a("L_w7m:")
    a(f"ds_write_b32 v31, v28 offset:{L_MODE}")
    a("s_branch L_lq")

    if stamps:
        a("L_dump:")
        exec_all()
        a("s_waitcnt vmcnt(0)")
        stamp(14)
        a("s_waitcnt lgkmcnt(0)")
        a("v_mov_b32 v4, 0")
        for i in range(15):
            a(f"v_mov_b32 v5, s{72+2*i}")
            a(f"v_cmp_eq_u32 vcc, {i}, v0")
            a("v_cndmask_b32 v4, v4, v5, vcc")
        srd(sWS, 38, "0x10000000")
        a("s_lshl_b32 s7, s2, 3")
        a(f"s_add_u32 s7, s7, {sWAVE}")
        a("s_lshl_b32 s7, s7, 6")
        a(f"s_add_u32 s7, s7, {STAMP_OFF}")
        a("v_lshlrev_b32 v3, 2, v0")
        a("s_mov_b64 exec, 0xffff")
        a(f"buffer_store_dword v4, v3, {sWS}, s7 offen")
    a("L_end:")
    a("s_endpgm")
    A.raw('.section .rodata,"a"')
    A.raw(".p2align 6")
    A.raw(f".amdhsa_kernel {KNAME}")
    A.raw("  .amdhsa_next_free_vgpr 256")
    A.raw("  .amdhsa_next_free_sgpr 102")
    A.raw("  .amdhsa_accum_offset 256")
    A.raw("  .amdhsa_group_segment_fixed_size 0")
    A.raw("  .amdhsa_kernarg_size 96")
    A.raw("  .amdhsa_user_sgpr_count 2")
    A.raw("  .amdhsa_user_sgpr_kernarg_segment_ptr 1")
    A.raw("  .amdhsa_system_sgpr_workgroup_id_x 1")
    A.raw("  .amdhsa_float_denorm_mode_32 3")
    A.raw(".end_amdhsa_kernel")
    return A.finalize()

if __name__ == "__main__":
    out = sys.argv[1]
    kw = {}
    for x in sys.argv[2:]:
        k, v = x.split("=")
        kw[k] = eval(v) if v[0].isdigit() or v in ("True", "False") else v
    open(out, "w").write(gen(**kw))
```

```python
import sys, os
sys.path.insert(0, os.path.dirname(os.path.abspath(__file__)))
from asmlib import Asm

KNAME = "recurrent_scan__sliding_block_cached__glu_gated_swiglu__decode_kernel"
SLICE = 2432
TEAM = 32 * SLICE
TQ, TG, TO, HO = 0, 24576, 49152, 6272
CT = 8 * TEAM
CTS = 4352
AM = CT + 8 * CTS
AS = AM + 45 * 128
WS_USED = AS + 45 * 128
STAMP_OFF = 2 << 20
BOUND = 200000
L_MODE, L_M, L_Q, L_ROW = 0, 64, 128, 1024
ROWS = 784
L_TS = (L_ROW + 16 * ROWS + 255) // 256 * 256
L_TM = L_TS + 2048
LDS_BYTES = L_TM + 512
DPP = "row_mask:0xf bank_mask:0xf"
LOG2E = "0x3fb8aa3b"
SCALE = "0x3d93cd3a"
INV640 = "0x3acccccd"
EPS = "0x3727c5ac"

sWAVE, sX8, sI = "s3", "s4", "s5"
sK, sV, sWS, sX, sA, sBB, sDBG, sOUT = ("s[40:43]", "s[44:47]", "s[48:51]", "s[52:55]", "s[56:59]", "s[60:63]", "s[64:67]", "s[68:71]")
sCNT = "s15"
sBOX = "s14"
vL, vKV, vR, vC = "v0", "v1", "v2", "v3"
vM = [4, 5, 6, 7]
vQ = 8
vS = 20
vK, vV, vD, vA = 32, 128, 224, 236
vPUB = 247

def vr(a, n=4):
    return f"v[{a}:{a+n-1}]"

def gen(stamps=False, nt="nt", W=6, W0=4, b2=True, w2win=0, mplate=True, maskpoll=True, est=False, W2=None, n1=36, fine=True, defer=0, nos1=False, nosync=False, nopub=False, nomlp2=False, nocomp=False, nox=False, abl=(), isleep=2, early0=False, accs=128, clr1=True, leader=0, hwait=True, qn=42, fld="sc1", fst="sc1", outsc="", force_global=False, notail=False, csleep=0):
    A = Asm()
    AS = AM + 45 * accs
    WS_USED = AS + 45 * accs
    a = A
    if W2 is None: W2 = W
    assert max(W, W2) <= qn - 24
    def estamp(i):
        if stamps and est:
            a(f"s_memrealtime s[{72+2*i}:{73+2*i}]")
    def stamp(i):
        if stamps and (not est or i in (0, 1, 2, 3, 13, 14)):
            a(f"s_memrealtime s[{72+2*i}:{73+2*i}]")
    def srd(dst, ptr, nbytes):
        d = int(dst[2:dst.index(":")])
        a(f"s_mov_b64 s[{d}:{d+1}], s[{ptr}:{ptr+1}]")
        a(f"s_mov_b32 s{d+2}, {nbytes}")
        a(f"s_mov_b32 s{d+3}, 0x20000")
    def red8(regs, op="add_f32"):
        for ctl in ("quad_perm:[1,0,3,2]", "quad_perm:[2,3,0,1]", "row_half_mirror"):
            for r in regs:
                a(f"v_{op}_dpp v{r}, v{r}, v{r} {ctl} {DPP}")
    def red_hi(r, t, op="add"):
        a(f"v_{op}_f32_dpp v{r}, v{r}, v{r} row_ror:8 {DPP}")
        a(f"v_mov_b32 v{t}, v{r}")
        a(f"v_permlane16_swap_b32 v{r}, v{t}")
        a(f"v_{op}_f32 v{r}, v{r}, v{t}")
        a(f"v_mov_b32 v{t}, v{r}")
        a(f"v_permlane32_swap_b32 v{r}, v{t}")
        a(f"v_{op}_f32 v{r}, v{r}, v{t}")
    def rnd1(r):
        a(f"v_cvt_pk_bf16_f32 v{r}, v{r}, v{r}")
        a(f"v_lshlrev_b32 v{r}, 16, v{r}")
    def rnd2(r0, r1):
        a(f"v_cvt_pk_bf16_f32 v{r1}, v{r0}, v{r1}")
        a(f"v_lshlrev_b32 v{r0}, 16, v{r1}")
        a(f"v_and_b32 v{r1}, 0xffff0000, v{r1}")
    def mkA(dst, val):
        a(f"v_cvt_pk_bf16_f32 v{dst+3}, v{val}, v{val}")
        for w in range(4):
            a(f"v_and_b32 v{dst+w}, v{vM[w]}, v{dst+3}")
    def mfma(d, aa, b, first=False):
        a(f"v_mfma_f32_16x16x32_bf16 {vr(d)}, {vr(aa)}, {vr(b)}, {'0' if first else vr(d)}")
    def lane_consts():
        a(f"v_and_b32 v28, 1, {vC}")
        a("v_lshlrev_b32 v28, 4, v28")
        a("v_mov_b32 v29, 0xffff")
        a("v_lshlrev_b32 v28, v28, v29")
        a(f"v_lshrrev_b32 v29, 1, {vC}")
        for w in range(4):
            a(f"v_cmp_eq_u32 vcc, {w}, v29")
            a(f"v_cndmask_b32 v{vM[w]}, 0, v28, vcc")
        a(f"v_lshrrev_b32 v28, 4, {vL}")
        a("v_lshlrev_b32 v28, 7, v28")
        a(f"v_lshl_add_u32 v{vPUB}, {vC}, 4, v28")
    lab = [0]
    def poll(body, check, sleep=0):
        lab[0] += 1
        n = lab[0]
        a(f"s_mov_b32 {sCNT}, {BOUND}")
        a(f"Lpoll{n}:")
        body()
        check()
        a(f"s_cbranch_vccz Lpdone{n}")
        if sleep: a(f"s_sleep {sleep}")
        a(f"s_sub_u32 {sCNT}, {sCNT}, 1")
        a(f"s_cbranch_scc0 Lpoll{n}")
        a(f"Lpdone{n}:")
    def chk_invalid(regs, t):
        regs = list(regs)
        a(f"v_max3_u32 v{t}, v{regs[0]}, v{regs[1]}, v{regs[2]}")
        i = 3
        while i < len(regs):
            if i + 1 < len(regs):
                a(f"v_max3_u32 v{t}, v{t}, v{regs[i]}, v{regs[i+1]}"); i += 2
            else:
                a(f"v_max_u32 v{t}, v{t}, v{regs[i]}"); i += 1
        a(f"v_cmp_eq_u32 vcc, -1, v{t}")
    def silu(r, t):
        a(f"v_mul_f32 v{t}, 0xbfb8aa3b, v{r}")
        a(f"v_exp_f32 v{t}, v{t}")
        a(f"v_add_f32 v{t}, 1.0, v{t}")
        a(f"v_rcp_f32 v{t}, v{t}")
        a(f"v_mul_f32 v{r}, v{r}, v{t}")
    def comb2(d, e):
        for r in range(4): a(f"v_permlane32_swap_b32 v{d+r}, v{e+r}")
        for r in range(4): a(f"v_add_f32_dpp v{d+r}, v{e+r}, v{d+r} row_ror:8 {DPP}")
    def exec_pub():
        a("s_mov_b32 exec_lo, 0x00ff00ff")
        a("s_mov_b32 exec_hi, 0x00ff00ff")
    def exec_all():
        a("s_mov_b64 exec, -1")
    def team_store(text, mode):
        lab[0] += 1
        n = lab[0]
        a(f"s_cmp_eq_u32 {mode}, 1")
        a(f"s_cbranch_scc0 Lts{n}")
        a(text)
        a(f"s_branch Lte{n}")
        a(f"Lts{n}:")
        a(text + " sc1")
        a(f"Lte{n}:")
    def dots(gs):
        for i in range(12):
            for g in gs:
                a(f"v_dot2c_f32_bf16 v{vS+g}, v{vK + 12*g + i}, v{vQ+i}")
    def score_post(gs):
        red8([vS + g for g in gs])
        for j in range(0, len(gs), 2): rnd2(vS + gs[j], vS + gs[j+1])
        for g in gs: a(f"v_mul_f32 v{vS+g}, {SCALE}, v{vS+g}")
        for j in range(0, len(gs), 2): rnd2(vS + gs[j], vS + gs[j+1])
    def end_wave():
        if stamps: a("s_branch L_dump")
        else: a("s_endpgm")
    def zero_stamps():
        if stamps and not est:
            for j in range(1, 15): a(f"s_mov_b64 s[{72+2*j}:{73+2*j}], 0")

    A.raw(f"; @launch grid=(256,1,1) block=(512,1,1) lds={LDS_BYTES}")
    A.raw('.amdgcn_target "amdgcn-amd-amdhsa--gfx950"')
    A.raw(".text")
    A.raw(f".globl {KNAME}")
    A.raw(".p2align 8")
    A.raw(f".type {KNAME},@function")
    a(f"{KNAME}:")
    stamp(0)
    a("s_load_dwordx2 s[40:41], s[0:1], 8")
    a("s_load_dwordx2 s[44:45], s[0:1], 16")
    a("s_load_dwordx16 s[16:31], s[0:1], 0")
    a("s_load_dwordx8 s[32:39], s[0:1], 64")
    a("v_lshrrev_b32 v1, 6, v0")
    a("s_cmpk_ge_u32 s2, 256")
    a("s_cbranch_scc1 L_end")
    a(f"v_readfirstlane_b32 {sWAVE}, v1")
    a("v_and_b32 v0, 63, v0")
    a(f"v_lshrrev_b32 {vR}, 3, {vL}")
    a(f"v_and_b32 {vC}, 7, {vL}")
    a(f"s_and_b32 {sX8}, s2, 7")
    a(f"s_lshr_b32 {sI}, s2, 3")
    a("s_lshr_b32 s6, s2, 6")
    a(f"s_lshl2_add_u32 s6, {sX8}, s6")
    a(f"s_and_b32 s7, {sI}, 7")
    a("s_mul_i32 s8, s6, 12582912")
    a(f"s_lshl2_add_u32 s9, s7, {sWAVE}")
    a("s_mov_b32 s42, 402653184")
    a("s_mov_b32 s43, 0x20000")
    a(f"s_cmp_eq_u32 {sWAVE}, 7")
    a("s_cbranch_scc1 L_w7")
    a(f"s_cmp_ge_u32 {sWAVE}, 4")
    a("s_cbranch_scc1 L_late")

    a("L_stream:")
    a("s_mulk_i32 s9, 3072")
    a(f"s_add_u32 s8, s8, {28672*384}")
    a(f"v_mul_u32_u24 {vKV}, 384, {vR}")
    a("s_add_u32 s8, s8, s9")
    a(f"v_lshl_add_u32 {vKV}, {vC}, 4, {vKV}")
    a("s_mov_b32 s9, s8")
    a("s_mov_b32 s10, 98304")
    a("s_waitcnt lgkmcnt(0)")
    n = [0]
    def kv_load(which, g):
        base, s, so = (vK, sK, "s8") if which == "k" else (vV, sV, "s9")
        for i in range(3):
            Wn = W2 if n[0] >= n1 else W
            if n[0] >= Wn: a(f"s_waitcnt vmcnt({Wn-1})")
            a(f"buffer_load_dwordx4 {vr(base + 12*g + 4*i)}, {vKV}, {s}, {so} offen offset:{i*128} {nt}")
            n[0] += 1
            if n[0] == W0:
                a("s_mov_b64 s[46:47], s[42:43]")
                a(f"s_cmp_ge_u32 {sWAVE}, 4")
                a("s_cbranch_scc1 L_skip0")
                zero_stamps()
                estamp(4)
                lane_consts()
                if est:
                    estamp(5)
                    a(f"s_waitcnt vmcnt({W0-1})")
                    estamp(6)
                    a("s_waitcnt vmcnt(0)")
                    estamp(7)
                a("s_barrier")
                stamp(13)
                a("L_skip0:")
            after(n[0])
        if g < 7: a(f"s_add_u32 {so}, {so}, s10")
    real = A.items
    A.items = []
    dots([0, 1, 2, 3]); score_post([0, 1, 2, 3])
    dots([4, 5, 6, 7]); score_post([4, 5, 6, 7])
    a(f"v_max3_f32 v244, v{vS}, v{vS+1}, v{vS+2}")
    a(f"v_max3_f32 v244, v244, v{vS+3}, v{vS+4}")
    a(f"v_max3_f32 v244, v244, v{vS+5}, v{vS+6}")
    a(f"v_max_f32 v244, v244, v{vS+7}")
    red_hi(244, 28, "max")
    a(f"ds_write_b32 v29, v244 offset:{L_M}")
    work = A.items
    A.items = real
    slots = list(range(qn, 48)) if fine else [qn, qn + 3, qn + 6]
    cuts = [round(len(work) * k / len(slots)) for k in range(len(slots) + 1)] if fine else [0, 76, 152, len(work)]
    def after(k):
        if k == qn:
            a(f"s_cmp_ge_u32 {sWAVE}, 4")
            a("s_cbranch_scc1 L_skipq")
            stamp(1)
            a("s_barrier")
            stamp(2)
            a("L_skipq:")
            a(f"v_lshlrev_b32 v28, 4, {vC}")
            for i in range(3):
                a(f"ds_read_b128 {vr(vQ + 4*i)}, v28 offset:{L_Q + 128*i}")
            for j in range(8):
                a(f"v_mov_b32 v{vS+j}, 0")
            a(f"s_lshl_b32 s7, {sWAVE}, 2")
            a("v_mov_b32 v29, s7")
            a("s_waitcnt lgkmcnt(0)")
        if k in slots:
            j = slots.index(k)
            if not nocomp:
                for t in work[cuts[j]:cuts[j+1]]: a(t)
    for g in range(8): kv_load("k", g)
    stamp(6)
    for g in range(8): kv_load("v", g)
    stamp(7)
    a("s_waitcnt lgkmcnt(0)")
    a("s_barrier")
    stamp(8)
    for j in range(8): a(f"v_sub_f32 v{vS+j}, v{vS+j}, v244")
    for j in range(8): a(f"v_mul_f32 v{vS+j}, {LOG2E}, v{vS+j}")
    for j in range(8): a(f"v_exp_f32 v{vS+j}, v{vS+j}")
    a(f"v_add_f32 v33, v{vS}, v{vS+1}")
    for j in range(2, 8): a(f"v_add_f32 v33, v33, v{vS+j}")
    red_hi(33, 28, "add")
    a(f"s_mul_i32 s7, {sWAVE}, {2*ROWS}")
    a(f"v_lshrrev_b32 v29, 5, {vL}")
    a(f"v_mul_u32_u24 v29, {ROWS}, v29")
    a("v_add_u32 v29, s7, v29")
    a(f"v_and_b32 v28, 16, {vL}")
    a(f"v_lshl_add_u32 v28, {vC}, 5, v28")
    a("v_add_u32 v30, v28, v29")
    a(f"v_cmp_gt_u32 vcc, 32, {vL}")
    a("v_mov_b32 v32, 0")
    a("v_mov_b32 v34, 0")
    a("v_mov_b32 v35, 0")
    a("v_cndmask_b32 v33, 0, v33, vcc")
    a(f"ds_write_b128 v29, v[32:35] offset:{L_ROW + 768}")
    for g in range(8):
        aa = vA + 4 * (g % 2)
        mkA(aa, vS + g)
        for i in range(3):
            k = 23 - 3*g - i
            if k < W2: a(f"s_waitcnt vmcnt({k})")
            mfma(vD + 4*i, aa, vV + 12*g + 4*i, g == 0)
    stamp(9)
    a("s_mov_b32 exec_lo, 0x00ff00ff")
    a("s_mov_b32 exec_hi, 0xff00ff00")
    a(f"s_cmp_lt_u32 {sWAVE}, 4")
    for i in range(3):
        a(f"ds_write_b128 v30, {vr(vD + 4*i)} offset:{L_ROW + 256*i}")
    a("s_cbranch_scc1 L_early")
    a("s_waitcnt lgkmcnt(0)")
    a("s_barrier")
    stamp(10)
    if stamps and not notail:
        a(f"s_cmp_ge_u32 {sI}, 30")
        a("s_cbranch_scc1 L_done")
        if b2: a("s_barrier")
        a("s_barrier")
    end_wave()

    a("L_early:")
    exec_all()
    srd(sWS, 38, WS_USED)
    a(f"v_lshlrev_b32 v31, 4, {vL}")
    a(f"s_mul_i32 s12, {sX8}, {TEAM}")
    a(f"s_add_u32 s12, s12, {TO}")
    a(f"s_cmp_ge_u32 {sI}, 30")
    a("s_cbranch_scc1 L_notile")
    srd(sA, 24, 7864320)
    a(f"s_mul_i32 s13, {sI}, 52")
    a("s_lshr_b32 s13, s13, 8")
    a("s_mul_i32 s7, s13, 5")
    a(f"s_sub_u32 s7, {sI}, s7")
    a(f"s_lshl2_add_u32 s6, s13, {sWAVE}")
    a("s_lshl_b32 s7, s7, 8")
    a(f"s_mul_i32 s8, {sX8}, 24")
    a("s_add_u32 s8, s8, s6")
    a("s_mul_i32 s8, s8, 40960")
    a("s_add_u32 s8, s8, s7")
    a(f"v_mul_u32_u24 v248, 5120, {vR}")
    a(f"v_lshl_add_u32 v248, {vC}, 4, v248")
    a(f"v_lshlrev_b32 v250, 4, {vC}")
    a("s_mul_i32 s10, s6, 43")
    a("s_lshr_b32 s10, s10, 8")
    a("s_mul_i32 s11, s10, 6")
    a("s_sub_u32 s11, s6, s11")
    a("s_lshl_b32 s11, s11, 10")
    a(f"s_mul_i32 s10, s10, {HO}")
    a("s_add_u32 s10, s10, s12")
    a("s_add_u32 s11, s11, s10")
    a("s_addk_i32 s10, 6144")
    a(f"s_lshl_b32 s6, {sWAVE}, 9")
    a(f"v_add_u32 v246, s6, v{vPUB}")
    srd(sX, 16, 1280)
    srd(sOUT, 34, 1280)
    a(f"s_mul_i32 s6, {sWAVE}, 3")
    a(f"v_lshrrev_b32 v28, 4, {vL}")
    a("v_add_u32 v28, s6, v28")
    a(f"v_and_b32 v29, 15, {vL}")
    a("v_mad_u32_u24 v252, v28, 15, v29")
    a("v_lshlrev_b32 v253, 2, v29")
    a("v_min_u32 v28, 8, v28")
    a(f"v_mul_u32_u24 v28, {accs}, v28")
    a("v_add_u32 v253, v28, v253")
    a("v_cmp_gt_u32 vcc, 0x80, v252")
    a("s_and_b32 s26, vcc_lo, 0x7fff7fff")
    a("s_and_b32 s27, vcc_hi, 0x7fff")
    a("s_or_b32 s28, s26, 0x80008000")
    a("s_or_b32 s29, s27, 0x8000")
    a("v_lshrrev_b32 v28, 6, v252")
    a("v_bfe_u32 v29, v252, 2, 3")
    a("v_lshl_add_u32 v28, v28, 3, v29")
    a("v_bfe_u32 v29, v252, 5, 1")
    a("v_lshl_add_u32 v28, v28, 1, v29")
    a("v_and_b32 v29, 3, v252")
    a("v_lshl_add_u32 v28, v28, 2, v29")
    a("v_lshl_add_u32 v254, v28, 1, s7")
    a("v_lshlrev_b32 v252, 2, v252")
    a(f"buffer_load_ushort v255, v254, {sX}, 0 offen")
    a("s_lshr_b32 s30, s7, 8")
    a(f"s_mul_i32 s30, s30, {9*accs}")
    a(f"s_add_u32 s30, s30, {AM}")
    a(f"s_add_u32 s31, s30, {AS-AM}")
    a(f"s_cmp_eq_u32 {sWAVE}, 3")
    if not nomlp2: a("s_cbranch_scc1 L_mlp2")
    a("v_mov_b32 v28, 1.0")
    a("s_waitcnt lgkmcnt(0)")
    a("s_barrier")
    stamp(3)
    if not notail:
        a("s_mov_b64 exec, s[26:27]")
        a(f"ds_read_b32 v28, v252 offset:{L_TM}")
        a("s_mov_b64 exec, s[28:29]")
        a("s_waitcnt lgkmcnt(0)")
        if "am" not in abl: a(f"buffer_atomic_add_f32 v28, v253, {sWS}, s30 offen")
        exec_all()
    a("L_ea:")
    def wo_load(k):
        rb, li = k // 2, k % 2
        a(f"buffer_load_dwordx4 {vr(vK + 8*rb + 4*li)}, v248, {sA}, s8 offen offset:{rb*1280 + li*128} {nt}")
    for k in range(8 - defer): wo_load(k)
    a(f"s_cmp_eq_u32 {sWAVE}, 0")
    a("s_cbranch_scc1 L_pub")
    a("s_barrier")
    stamp(4)
    a("s_branch L_og")

    a("L_pub:")
    a("v_mov_b32 v28, 0")
    a("s_mov_b32 exec_hi, 0x1ffff")
    a(f"ds_read_b32 v137, v28 offset:{L_MODE}")
    a(f"ds_read_b128 v[128:131], v28 offset:{L_M}")
    a(f"ds_read_b128 v[132:135], v28 offset:{L_M+16}")
    for j in range(8):
        a(f"ds_read_b128 {vr(160 + 4*j)}, v31 offset:{L_ROW + ROWS*j}")
    a("s_waitcnt lgkmcnt(0)")
    a("v_readfirstlane_b32 s13, v137")
    a(f"s_lshr_b32 s6, {sI}, 3")
    a(f"s_mul_i32 s6, s6, {HO}")
    a(f"s_and_b32 s7, {sI}, 7")
    a("s_lshl4_add_u32 s6, s7, s6")
    a("s_add_u32 s6, s6, s12")
    a(f"v_lshlrev_b32 v30, 7, {vL}")
    a("v_max3_f32 v136, v128, v129, v130")
    a("v_max3_f32 v136, v136, v131, v132")
    a("v_max3_f32 v136, v136, v133, v134")
    a("v_max_f32 v136, v136, v135")
    for j in range(8): a(f"v_sub_f32 v{128+j}, v{128+j}, v136")
    for j in range(8): a(f"v_mul_f32 v{128+j}, {LOG2E}, v{128+j}")
    for j in range(8): a(f"v_exp_f32 v{140+2*j}, v{128+j}")
    a(f"v_cmp_eq_u32 vcc, 48, {vL}")
    a("v_mov_b32 v157, 0")
    a("v_mov_b32 v158, 0")
    a("v_mov_b32 v159, 0")
    a("v_cndmask_b32 v156, 0, v136, vcc")
    def rows_acc(w0):
        for w in range(4):
            for h in (0, 2):
                a(f"v_pk_add_f32 {vr(160+8*w+h,2)}, {vr(160+8*w+h,2)}, {vr(164+8*w+h,2)}")
        for w in range(4):
            for h in (0, 2):
                a(f"v_pk_fma_f32 {vr(156+h,2)}, {vr(160+8*w+h,2)}, {vr(140+2*(w0+w),2)}, {vr(156+h,2)} op_sel_hi:[1,0,1]")
    rows_acc(0)
    a("s_barrier")
    stamp(4)
    for j in range(8):
        a(f"ds_read_b128 {vr(160 + 4*j)}, v31 offset:{L_ROW + ROWS*(8+j)}")
    a("s_waitcnt lgkmcnt(0)")
    rows_acc(4)
    if not notail: team_store(f"buffer_store_dwordx4 v[156:159], v30, {sWS}, s6 offen", "s13")
    exec_all()
    a(f"s_cmp_ge_u32 {sI}, 30")
    a("s_cbranch_scc1 L_done")
    a("L_og:")
    if b2: a("s_barrier")
    else: a("s_waitcnt vmcnt(0)")
    stamp(10)
    if notail:
        a("s_waitcnt vmcnt(0)")
        stamp(11)
        end_wave()
    def body():
        a(f"buffer_load_dwordx4 v[8:11], v31, {sWS}, s11 offen sc1")
        a(f"buffer_load_dwordx2 v[12:13], v250, {sWS}, s10 offen sc1")
        a("s_waitcnt vmcnt(0)")
    if defer:
        a(f"buffer_load_dwordx4 v[8:11], v31, {sWS}, s11 offen sc1")
        a(f"buffer_load_dwordx2 v[12:13], v250, {sWS}, s10 offen sc1")
        for k in range(8 - defer, 8): wo_load(k)
        a(f"s_waitcnt vmcnt({defer})")
        chk_invalid([8, 9, 10, 11, 12, 13], 28)
        a("s_cbranch_vccz L_got")
    poll(body, lambda: chk_invalid([8, 9, 10, 11, 12, 13], 28))
    a("L_got:")
    stamp(11)
    if "amr" not in abl: a(f"buffer_load_dword v15, v253, {sWS}, s30 offen sc1")
    a("v_max_f32_dpp v14, v12, v12 quad_perm:[1,0,3,2] " + DPP)
    a("v_max_f32_dpp v14, v14, v14 quad_perm:[2,3,0,1] " + DPP)
    a("v_max_f32_dpp v14, v14, v14 row_half_mirror " + DPP)
    a("v_sub_f32 v12, v12, v14")
    a(f"v_mul_f32 v12, {LOG2E}, v12")
    a("v_exp_f32 v12, v12")
    a("v_mul_f32 v13, v13, v12")
    a("v_pk_mul_f32 v[8:9], v[8:9], v[12:13] op_sel_hi:[1,0]")
    a("v_pk_mul_f32 v[10:11], v[10:11], v[12:13] op_sel_hi:[1,0]")
    red8([13, 8, 9, 10, 11])
    a("v_rcp_f32 v12, v13")
    a("v_pk_mul_f32 v[8:9], v[8:9], v[12:13] op_sel_hi:[1,0]")
    a("v_pk_mul_f32 v[10:11], v[10:11], v[12:13] op_sel_hi:[1,0]")
    mkA(128, 8)
    for rb in range(4):
        if rb < 3: mkA(132 + 4*rb, 9 + rb)
        for li in range(2):
            if 2*rb + li >= 8 - defer: a(f"s_waitcnt vmcnt({8 - 2*rb - li})")
            mfma(vD + 4*li, 128 + 4*rb, vK + 8*rb + 4*li, rb == 0)
    comb2(vD, vD + 4)
    exec_pub()
    a(f"ds_write_b128 v246, {vr(vD)} offset:{L_TS}")
    a(f"s_cmp_eq_u32 {sWAVE}, 3")
    a("s_mov_b64 exec, s[28:29]")
    a("v_mov_b32 v8, 1.0")
    a("s_mov_b64 exec, s[26:27]")
    a("s_waitcnt lgkmcnt(0)")
    a("s_barrier")
    a("s_cbranch_scc1 L_done")
    a(f"ds_read2st64_b32 v[8:9], v252 offset0:{L_TS//256} offset1:{L_TS//256+2}")
    a(f"ds_read2st64_b32 v[10:11], v252 offset0:{L_TS//256+4} offset1:{L_TS//256+6}")
    a("s_waitcnt lgkmcnt(0)")
    a("v_pk_add_f32 v[8:9], v[8:9], v[10:11]")
    a("v_add_f32 v8, v8, v9")
    a("s_mov_b64 exec, s[28:29]")
    a("v_mov_b32 v9, v8")
    a(f"buffer_atomic_add_f32 v9, v253, {sWS}, s31 offen sc0")
    stamp(12)
    a("v_lshlrev_b32 v255, 16, v255")
    a(f"s_mov_b32 {sCNT}, {BOUND}")
    a("s_waitcnt vmcnt(1)")
    a("L_g:")
    a(f"v_mov_b32_dpp v16, v15 row_newbcast:15 {DPP}")
    rnd1(15)
    a("v_cmp_neq_f32 vcc, 0x42400000, v16")
    silu(15, 17)
    a("s_mov_b64 s[6:7], vcc")
    rnd1(15)
    a("s_waitcnt vmcnt(0)")
    a("v_add_f32 v10, v8, v9")
    a(f"v_mov_b32_dpp v16, v10 row_newbcast:15 {DPP}")
    rnd1(10)
    a("v_cmp_eq_f32 vcc, 0x42400000, v16")
    a("v_mul_f32 v10, v10, v15")
    rnd1(10)
    a("s_and_b64 s[6:7], s[6:7], vcc")
    if "am" not in abl and "amr" not in abl: a("s_cbranch_scc1 L_gslow")
    a("L_gok:")
    a("s_and_b64 exec, vcc, s[26:27]")
    a("s_cbranch_scc0 L_done")
    a("v_add_f32 v10, v10, v255")
    a("v_cvt_pk_bf16_f32 v10, v10, v10")
    a(f"buffer_store_short v10, v254, {sOUT}, 0 offen {outsc}")
    stamp(13)
    a("L_done:")
    end_wave()

    a("L_gslow:")
    a(f"s_sub_u32 {sCNT}, {sCNT}, 1")
    a("s_cbranch_scc1 L_gok")
    a(f"buffer_load_dword v15, v253, {sWS}, s30 offen sc1")
    a("s_waitcnt vmcnt(0)")
    a("s_branch L_g")

    a("L_mlp2:")
    srd(sBB, 32, 1966080)
    srd(sDBG, 36, 256)
    a("s_mov_b64 exec, 1")
    def body():
        a(f"buffer_load_dword v28, off, {sDBG}, 0 offset:4 sc1")
        a("s_waitcnt vmcnt(0)")
    if not (nosync or "chk" in abl): poll(body, lambda: a("v_cmp_gt_u32 vcc, 8, v28"), 4)
    exec_all()
    a("s_lshr_b32 s6, s13, 1")
    a(f"s_mul_i32 s9, {sX8}, 48")
    a("s_lshl4_add_u32 s9, s6, s9")
    a("s_and_b32 s6, s13, 1")
    a("s_add_u32 s9, s9, s6")
    a("s_mul_i32 s9, s9, 5120")
    a("s_add_u32 s9, s9, s7")
    a(f"v_mul_u32_u24 v251, 10240, {vR}")
    a(f"v_lshl_add_u32 v251, {vC}, 4, v251")
    a("s_lshl_b32 s13, s13, 11")
    a("s_add_u32 s13, s13, s12")
    a(f"s_sub_u32 s13, s13, {TO-TG}")
    a("s_add_u32 s6, s13, 12288")
    a(f"v_lshl_add_u32 v249, {vR}, 8, v250")
    def body():
        for j in range(4):
            a(f"buffer_load_dwordx4 {vr(128+4*j)}, v249, {sWS}, {'s13' if j < 2 else 's6'} offen offset:{128*(j%2)} sc1")
        a("s_waitcnt vmcnt(0)")
    if not (nopub or nos1): poll(body, lambda: chk_invalid(range(128, 144), 28), 4)
    for rb in range(4):
        for li in range(2):
            if w2win and 2*rb + li >= w2win: a(f"s_waitcnt vmcnt({w2win-1})")
            a(f"buffer_load_dwordx4 {vr(64 + 8*rb + 4*li)}, v251, {sBB}, s9 offen offset:{rb*1280 + li*128} {nt}")
    for j in (0, 2):
        a(f"v_pk_add_f32 {vr(128+j,2)}, {vr(128+j,2)}, {vr(132+j,2)}")
        a(f"v_pk_add_f32 {vr(132+j,2)}, {vr(136+j,2)}, {vr(140+j,2)}")
    red8(range(128, 136))
    for j in range(128, 136, 2): rnd2(j, j + 1)
    for j in range(4): silu(128 + j, 136 + j)
    for j in (128, 130): rnd2(j, j + 1)
    for j in range(4): a(f"v_mul_f32 v{128+j}, v{128+j}, v{132+j}")
    for j in range(4): mkA(144 + 4*j, 128 + j)
    a("s_waitcnt vmcnt(0)")
    for rb in range(4):
        for li in range(2):
            mfma(vD + 4*li, 144 + 4*rb, 64 + 8*rb + 4*li, rb == 0)
    comb2(vD, vD + 4)
    exec_pub()
    a(f"ds_write_b128 v246, {vr(vD)} offset:{L_TM-1536}")
    exec_all()
    stamp(5)
    a("s_waitcnt lgkmcnt(0)")
    a("s_barrier")
    stamp(3)
    a("s_branch L_ea")

    a("L_notile:")
    srd(sOUT, 34, 1280)
    srd(sA, 24, 7864320)
    for r in (248, 250, 253, 254): a(f"v_mov_b32 v{r}, 0")
    a(f"s_cmp_eq_u32 {sWAVE}, 0")
    a("s_waitcnt lgkmcnt(0)")
    a("s_barrier")
    a("s_cbranch_scc1 L_pub")
    end_wave()

    a(".p2align 6")
    a("L_late:")
    estamp(4)
    zero_stamps()
    a("s_setprio 3")
    a("v_mov_b32 v31, 0")
    a(f"ds_write_b32 v31, v31 offset:{L_MODE}")
    a("s_add_u32 s9, s9, 252")
    if nos1:
        lane_consts()
        a("s_waitcnt lgkmcnt(0)")
        a("s_barrier")
        a("s_branch L_lq")
    a(f"v_mul_u32_u24 v26, 20, {vL}")
    a(f"v_mul_u32_u24 v27, 20, {vR}")
    a(f"v_mul_u32_u24 v30, 122880, {vR}")
    a(f"v_lshl_add_u32 v30, {vC}, 4, v30")
    a("s_mul_i32 s10, s7, 160")
    a("s_mul_i32 s11, s7, 983040")
    a("s_mul_i32 s12, s6, 384")
    a(f"s_lshl_b32 s13, {sWAVE}, 7")
    a("s_add_u32 s11, s11, s12")
    a("s_sub_u32 s13, s13, 512")
    a("s_add_u32 s11, s11, s13")
    a("s_movk_i32 s12, 12288")
    a("s_mov_b32 s54, 1280")
    a("s_mov_b32 s55, 0x20000")
    a("s_mov_b32 s58, 7864320")
    a("s_mov_b32 s59, 0x20000")
    a("s_waitcnt lgkmcnt(0)")
    a("s_mov_b64 s[52:53], s[16:17]")
    a("s_mov_b64 s[56:57], s[22:23]")
    estamp(5)
    if not nox:
        a(f"buffer_load_dwordx4 v[128:131], v26, {sX}, 0 offen")
        a(f"buffer_load_dword v132, v26, {sX}, 0 offen offset:16")
    a(f"buffer_load_dwordx4 v[134:137], v27, {sX}, s10 offen")
    a(f"buffer_load_dword v138, v27, {sX}, s10 offen offset:16")
    for rb in range(10):
        a(f"buffer_load_dwordx4 {vr(vK + 4*rb)}, v30, {sA}, s11 offen {nt}")
        if rb < 9: a("s_add_u32 s11, s11, s12")
    estamp(6)
    a(f"s_cmp_ge_u32 {sI}, 16")
    a("s_cselect_b64 s[60:61], s[30:31], s[28:29]")
    a("s_mov_b32 s62, 1966080")
    a("s_mov_b32 s63, 0x20000")
    a(f"v_mul_u32_u24 v30, 30720, {vR}")
    a(f"v_lshl_add_u32 v30, {vC}, 4, v30")
    a("s_mul_i32 s11, s7, 245760")
    a("s_and_b32 s10, s6, 1")
    a("s_mul_i32 s12, s10, 15360")
    a("s_add_u32 s11, s11, s12")
    a(f"s_mul_i32 s12, {sX8}, 384")
    a("s_add_u32 s11, s11, s12")
    a("s_add_u32 s11, s11, s13")
    for rb in range(5):
        a(f"buffer_load_dwordx4 {vr(vK + 40 + 4*rb)}, v30, {sBB}, s11 offen offset:{(rb%2)*3072} {nt}")
        if rb % 2 == 1: a("s_addk_i32 s11, 6144")
    estamp(7)
    srd(sWS, 38, WS_USED)
    lane_consts()
    a(f"s_mul_i32 s11, {sI}, 768")
    a("s_lshl1_add_u32 s11, s13, s11")
    a(f"v_add_u32 v30, s11, v{vPUB}")
    a(f"s_lshr_b32 s11, {sI}, 4")
    a("s_mul_i32 s11, s11, 12288")
    a("s_lshl_b32 s12, s13, 5")
    a("s_add_u32 s11, s11, s12")
    a(f"s_and_b32 s12, {sI}, 15")
    a("s_lshl4_add_u32 s11, s12, s11")
    a(f"s_add_u32 s11, s11, {TG-4096}")
    a(f"v_lshl_add_u32 v28, v{vPUB}, 4, s11")
    a(f"v_cmp_gt_u32 vcc, 32, {vL}")
    a(f"s_mul_i32 s11, {sX8}, {TEAM}")
    a("v_cndmask_b32 v30, v28, v30, vcc")
    a("s_waitcnt vmcnt(15)")
    stamp(1)
    for i in range(5):
        a(f"v_lshlrev_b32 v{140+2*i}, 16, v{128+i}")
        a(f"v_and_b32 v{141+2*i}, 0xffff0000, v{128+i}")
    a("v_add_f32 v160, v140, v141")
    for i in range(2, 10): a(f"v_add_f32 v160, v160, v{140+i}")
    red8([160]); red_hi(160, 161)
    a(f"v_mul_f32 v160, {INV640}, v160")
    for i in range(10): a(f"v_sub_f32 v{140+i}, v{140+i}, v160")
    a("v_mul_f32 v162, v140, v140")
    for i in range(1, 10): a(f"v_fmac_f32 v162, v{140+i}, v{140+i}")
    red8([162]); red_hi(162, 161)
    a(f"v_mul_f32 v162, {INV640}, v162")
    rnd2(160, 162)
    a(f"v_add_f32 v162, {EPS}, v162")
    rnd1(162)
    a("v_sqrt_f32 v162, v162")
    rnd1(162)
    a("v_rcp_f32 v162, v162")
    a("s_barrier")
    for i in range(5):
        a(f"v_lshlrev_b32 v{150+2*i}, 16, v{134+i}")
        a(f"v_and_b32 v{151+2*i}, 0xffff0000, v{134+i}")
    for i in range(10): a(f"v_sub_f32 v{150+i}, v{150+i}, v160")
    for i in range(0, 10, 2): rnd2(150 + i, 151 + i)
    for i in range(10): a(f"v_mul_f32 v{150+i}, v{150+i}, v162")
    for i in range(10): mkA(164 + 4*i, 150 + i)
    estamp(8)
    a("s_waitcnt vmcnt(5)")
    estamp(9)
    for rb in range(10):
        mfma(vD, 164 + 4*rb, vK + 4*rb, rb == 0)
    a("s_cmp_lg_u32 s10, 0")
    a("s_waitcnt vmcnt(0)")
    a("s_cbranch_scc1 L_mh1")
    for rb in range(5):
        mfma(vD + 4, 164 + 4*rb, vK + 40 + 4*rb, rb == 0)
    a("s_branch L_mh2")
    a("L_mh1:")
    for rb in range(5):
        mfma(vD + 4, 184 + 4*rb, vK + 40 + 4*rb, rb == 0)
    a("L_mh2:")
    stamp(2)
    if nopub: a("s_branch L_lq")
    comb2(vD, vD + 4)
    def body():
        a(f"ds_read_b32 v28, v31 offset:{L_MODE}")
        a("s_waitcnt lgkmcnt(0)")
    poll(body, lambda: a("v_cmp_eq_u32 vcc, 0, v28"), 1)
    a("v_readfirstlane_b32 s12, v28")
    exec_pub()
    team_store(f"buffer_store_dwordx4 {vr(vD)}, v30, {sWS}, s11 offen", "s12")
    stamp(3)
    a(f"s_cmp_lg_u32 {sWAVE}, 4")
    a("s_cbranch_scc1 L_lq")
    a("s_mov_b32 exec_lo, -1")
    a("s_mov_b32 exec_hi, 0xffff")
    a(f"v_lshlrev_b32 v30, 4, {vL}")
    a(f"s_lshr_b32 s12, {sI}, 3")
    a("s_mul_i32 s12, s12, 6144")
    a("s_add_u32 s11, s11, s12")
    a("s_add_u32 s12, s11, 3072")
    a("s_waitcnt vmcnt(0)")
    stamp(4)
    def body():
        for j in range(8):
            a(f"buffer_load_dwordx4 {vr(vK + 4*j)}, v30, {sWS}, {'s11' if j < 4 else 's12'} offen offset:{768*(j%4)} sc1")
        a("s_waitcnt vmcnt(0)")
    poll(body, lambda: chk_invalid(range(vK, vK + 32), 28))
    for step in (16, 8, 4):
        for j in range(0, step, 2):
            a(f"v_pk_add_f32 {vr(vK+j,2)}, {vr(vK+j,2)}, {vr(vK+step+j,2)}")
    a(f"v_cvt_pk_bf16_f32 v{vK}, v{vK}, v{vK+1}")
    a(f"v_cvt_pk_bf16_f32 v{vK+1}, v{vK+2}, v{vK+3}")
    a(f"v_and_b32 v30, 8, {vL}")
    a(f"v_add_u32 v30, v30, v{vPUB}")
    a(f"ds_write_b64 v30, {vr(vK,2)} offset:{L_Q}")
    stamp(5)
    a("L_lq:")
    exec_all()
    a("s_waitcnt lgkmcnt(0)")
    a("s_barrier")
    a("s_setprio 0")
    a("s_barrier")
    a("s_branch L_stream")

    a("L_w7:")
    estamp(4)
    a("s_setprio 3")
    a(f"s_lshl_b32 s70, {sX8}, 5")
    a(f"s_add_u32 s70, s70, {sI}")
    a(f"s_mulk_i32 s70, {SLICE}")
    for r in range(4): a(f"v_mov_b32 v{140+r}, -1")
    a(f"v_lshlrev_b32 v30, 4, {vL}")
    a(f"s_mov_b32 s50, {WS_USED}")
    a("s_mov_b32 s51, 0x20000")
    def clears(fl):
        a(f"buffer_store_dwordx4 v[140:143], v30, {sWS}, s70 offen {fl}")
        a(f"buffer_store_dwordx4 v[140:143], v30, {sWS}, s70 offen offset:1024 {fl}")
        a("s_mov_b64 exec, 0xffffff")
        a(f"buffer_store_dwordx4 v[140:143], v30, {sWS}, s70 offen offset:2048 {fl}")
        exec_all()
    a("s_waitcnt lgkmcnt(0)")
    a("s_mov_b64 s[48:49], s[38:39]")
    if "clr" not in abl and clr1 and not nosync: clears("")
    zero_stamps()
    a("v_mov_b32 v31, 0")
    a("s_add_u32 s9, s9, 252")
    if nosync:
        lane_consts()
        a("s_barrier")
        a("v_mov_b32 v28, 1")
        a("s_branch L_w7m")
    a("s_cmpk_ge_u32 s2, 90")
    a("s_cbranch_scc1 L_w7e")
    a(f"s_mul_i32 s71, s2, {accs}")
    a(f"s_add_u32 s71, s71, {AM}")
    for r in range(4): a(f"v_mov_b32 v{144+r}, 0")
    a("s_mov_b64 exec, 15")
    if "scclr" not in abl: a(f"buffer_store_dwordx4 v[144:147], v30, {sWS}, s71 offen sc1")
    exec_all()
    a("L_w7e:")
    a("s_getreg_b32 s10, hwreg(HW_REG_XCC_ID, 0, 4)")
    a(f"s_mul_i32 s13, {sX8}, {CTS}")
    a(f"s_add_u32 s13, s13, {CT}")
    a(f"s_lshl_b32 s12, {sX8}, 5")
    a("s_add_u32 s10, s10, 1")
    a(f"s_cmp_lg_u32 {sI}, {leader}")
    a("s_cbranch_scc1 L_w7c")
    for r in (64, 66, 68, 6): a(f"s_mov_b64 s[{r}:{r+1}], 0")
    a("s_add_u32 s60, s38, s13")
    a("s_addc_u32 s61, s39, 0")
    for k, r in enumerate((64, 66, 68, 6)):
        a(f"s_atomic_swap_x2 s[{r}:{r+1}], s[60:61], {8*k} glc")
    a("s_mov_b32 s11, s10")
    a("s_waitcnt lgkmcnt(0)")
    a("s_atomic_add s11, s[36:37], s12")
    a("L_w7c:")
    if "clr" not in abl and not clr1: clears("")
    estamp(5)
    lane_consts()
    a("s_waitcnt lgkmcnt(0)")
    srd(sDBG, 36, 256)
    a(f"v_lshlrev_b32 v133, 2, {vC}")
    a("v_mov_b32 v134, 1")
    a(f"s_add_u32 s14, s13, {sI}")
    if not early0: a("s_barrier")
    a("s_waitcnt vmcnt(0)")
    stamp(1)
    a("s_load_dword s11, s[36:37], s12")
    if early0: a("s_barrier")
    a("s_mov_b64 exec, 1")
    a("s_waitcnt lgkmcnt(0)")
    a("s_cmp_lg_u32 s11, 0")
    a("s_cbranch_scc1 L_w7f")
    def body():
        a(f"buffer_load_dword v28, off, {sDBG}, s12 sc1")
        a("s_waitcnt vmcnt(0)")
    poll(body, lambda: a("v_cmp_eq_u32 vcc, 0, v28"), 2)
    a("v_readfirstlane_b32 s11, v28")
    a("L_w7f:")
    stamp(2)
    a(f"s_cmp_lg_u32 s11, {'0' if force_global else 's10'}")
    a("s_cbranch_scc1 L_w7g")
    a(f"buffer_store_byte v134, off, {sWS}, s14")
    a("s_mov_b64 exec, 0xff")
    a(f"s_mov_b32 {sCNT}, {BOUND}")
    if hwait: a("s_waitcnt vmcnt(0)")
    a("L_w7h:")
    a(f"buffer_load_dword v28, v133, {sWS}, s13 offen sc1")
    a("s_waitcnt vmcnt(0)")
    a("v_cmp_ne_u32 vcc, 0x01010101, v28")
    a("v_mov_b32 v28, 1")
    a("s_cbranch_vccz L_w7k")
    a(f"s_sub_u32 {sCNT}, {sCNT}, 1")
    a("s_cbranch_scc1 L_w7k")
    a(f"s_cmp_gt_u32 {sCNT}, {BOUND-4}")
    a("s_cbranch_scc1 L_w7h")
    a(f"buffer_load_dword v28, off, {sDBG}, s12 offset:8 sc1")
    a("s_waitcnt vmcnt(0)")
    a("v_cmp_eq_u32 vcc, 0, v28")
    a("s_cbranch_vccnz L_w7h")
    a("L_w7g:")
    exec_all()
    clears("sc1")
    a("s_mov_b32 s11, 1")
    a("s_add_u32 s14, s12, 8")
    a("s_waitcnt vmcnt(0)")
    a("s_atomic_add s11, s[36:37], s14 glc")
    a("s_waitcnt lgkmcnt(0)")
    a("s_mov_b64 exec, 1")
    def body():
        a(f"buffer_load_dword v28, off, {sDBG}, s12 offset:8 sc1")
        a("s_waitcnt vmcnt(0)")
    poll(body, lambda: a("v_cmp_gt_u32 vcc, 32, v28"), 4)
    a("v_mov_b32 v28, 2")
    a("L_w7k:")
    stamp(3)
    a("s_mov_b64 exec, 1")
    a(f"s_cmp_lg_u32 {sI}, 0")
    a("s_cbranch_scc1 L_w7m")
    a("s_mov_b32 s6, 1")
    a("s_atomic_add s6, s[36:37], 4")
    a("L_w7m:")
    a(f"ds_write_b32 v31, v28 offset:{L_MODE}")
    a("s_branch L_lq")

    if stamps:
        a("L_dump:")
        exec_all()
        a("s_waitcnt vmcnt(0)")
        stamp(14)
        a("s_waitcnt lgkmcnt(0)")
        a("v_mov_b32 v4, 0")
        for i in range(15):
            a(f"v_mov_b32 v5, s{72+2*i}")
            a(f"v_cmp_eq_u32 vcc, {i}, v0")
            a("v_cndmask_b32 v4, v4, v5, vcc")
        srd(sWS, 38, "0x10000000")
        a("s_lshl_b32 s7, s2, 3")
        a(f"s_add_u32 s7, s7, {sWAVE}")
        a("s_lshl_b32 s7, s7, 6")
        a(f"s_add_u32 s7, s7, {STAMP_OFF}")
        a("v_lshlrev_b32 v3, 2, v0")
        a("s_mov_b64 exec, 0xffff")
        a(f"buffer_store_dword v4, v3, {sWS}, s7 offen")
    a("L_end:")
    a("s_endpgm")
    A.raw('.section .rodata,"a"')
    A.raw(".p2align 6")
    A.raw(f".amdhsa_kernel {KNAME}")
    A.raw("  .amdhsa_next_free_vgpr 256")
    A.raw("  .amdhsa_next_free_sgpr 102")
    A.raw("  .amdhsa_accum_offset 256")
    A.raw("  .amdhsa_group_segment_fixed_size 0")
    A.raw("  .amdhsa_kernarg_size 96")
    A.raw("  .amdhsa_user_sgpr_count 2")
    A.raw("  .amdhsa_user_sgpr_kernarg_segment_ptr 1")
    A.raw("  .amdhsa_system_sgpr_workgroup_id_x 1")
    A.raw("  .amdhsa_float_denorm_mode_32 3")
    A.raw(".end_amdhsa_kernel")
    return A.finalize()

if __name__ == "__main__":
    out = sys.argv[1]
    kw = {}
    for x in sys.argv[2:]:
        k, v = x.split("=")
        kw[k] = eval(v) if v[0].isdigit() or v in ("True", "False") else v
    open(out, "w").write(gen(**kw))
```

```python
import sys, os
sys.path.insert(0, os.path.dirname(os.path.abspath(__file__)))
from asmlib import Asm

KNAME = "recurrent_scan__sliding_block_cached__glu_gated_swiglu__decode_kernel"
TQ, TG, TO, TML = 0, 24576, 49152, 98304
TEAM = TML + 2048
CT = 8 * TEAM
CTS = 4352
AM = CT + 8 * CTS
AS = AM + 45 * 128
WS_USED = AM + 96 * 128
STAMP_OFF = 2 << 20
BOUND = 200000
L_MODE, L_FQ, L_CNT, L_Q, L_ROW = 0, 4, 8, 128, 1024
ROWS = 768
L_TS = (L_ROW + 16 * ROWS + 255) // 256 * 256
L_TM = L_TS + 8 * 768
L_W2 = L_TM + 768
L_ST = L_W2 + 8192
LDS_BYTES = L_ST + 1536
DPP = "row_mask:0xf bank_mask:0xf"
LOG2E = "0x3fb8aa3b"
SCALE = "0x3d93cd3a"
INV640 = "0x3acccccd"
EPS = "0x3727c5ac"

sWAVE, sX8, sI = "s3", "s4", "s5"
sK, sV, sWS, sX, sA, sBB, sDBG, sOUT = ("s[40:43]", "s[44:47]", "s[48:51]", "s[52:55]", "s[56:59]", "s[60:63]", "s[64:67]", "s[68:71]")
sCNT = "s15"
OFF = ["s8", "s18", "s19", "s20", "s21", "s22", "s23", "s26"]
vL, vKV, vR, vC = "v0", "v1", "v2", "v3"
vM = [4, 5, 6, 7]
vQ = 8
vS = 20
vK, vV, vD, vA = 32, 128, 224, 236
vPUB = 247

def vr(a, n=4):
    return f"v[{a}:{a+n-1}]"

HEADER = """; Fused decode step: out = x + (attention(LN(x)) @ wo) * silu(swiglu(LN(x))), one launch, 256 workgroups of 8 waves (one per CU).
; The last sum goes through returning f32 atomic adds whose 64-byte request also carries a count; the last adder writes the output."""

def gen(stamps=False, nt="nt", W=5, W2=6, n1=9, Ws=None, lprio=0, trot=True, est=False, force_global=False, notail=False,
        b0=8, fill=2, relay=True, pre=False, prepoll=True, who=7, afirst=False, warm=3):
    A = Asm()
    a = A
    def Wof(n):
        if Ws: return [w for k, w in Ws if n >= k][-1]
        return W2 if n >= n1 else W
    Wmax = max(Wof(n) for n in range(24))
    assert Wmax <= 9
    def c(text):
        a("; " + text)
    def estamp(i):
        if stamps and est:
            a(f"s_memrealtime s[{72+2*i}:{73+2*i}]")
    def stamp(i):
        if stamps and (not est or i in (0, 1, 2, 3, 13, 14)):
            a(f"s_memrealtime s[{72+2*i}:{73+2*i}]")
    def srd(dst, ptr, nbytes):
        d = int(dst[2:dst.index(":")])
        a(f"s_mov_b64 s[{d}:{d+1}], s[{ptr}:{ptr+1}]")
        a(f"s_mov_b32 s{d+2}, {nbytes}")
        a(f"s_mov_b32 s{d+3}, 0x20000")
    def red8(regs, op="add_f32"):
        for ctl in ("quad_perm:[1,0,3,2]", "quad_perm:[2,3,0,1]", "row_half_mirror"):
            for r in regs:
                a(f"v_{op}_dpp v{r}, v{r}, v{r} {ctl} {DPP}")
    def red_hi(r, t, op="add"):
        a(f"v_{op}_f32_dpp v{r}, v{r}, v{r} row_ror:8 {DPP}")
        a(f"v_mov_b32 v{t}, v{r}")
        a(f"v_permlane16_swap_b32 v{r}, v{t}")
        a(f"v_{op}_f32 v{r}, v{r}, v{t}")
        a(f"v_mov_b32 v{t}, v{r}")
        a(f"v_permlane32_swap_b32 v{r}, v{t}")
        a(f"v_{op}_f32 v{r}, v{r}, v{t}")
    def rnd1(r):
        a(f"v_cvt_pk_bf16_f32 v{r}, v{r}, v{r}")
        a(f"v_lshlrev_b32 v{r}, 16, v{r}")
    def rnd2(r0, r1):
        a(f"v_cvt_pk_bf16_f32 v{r1}, v{r0}, v{r1}")
        a(f"v_lshlrev_b32 v{r0}, 16, v{r1}")
        a(f"v_and_b32 v{r1}, 0xffff0000, v{r1}")
    def cvtA(dst, val):
        a(f"v_cvt_pk_bf16_f32 v{dst+3}, v{val}, v{val}")
    def andA(dst):
        for w in range(4):
            a(f"v_and_b32 v{dst+w}, v{vM[w]}, v{dst+3}")
    def mkA(dst, val):
        cvtA(dst, val); andA(dst)
    def mfma(d, aa, b, first=False):
        a(f"v_mfma_f32_16x16x32_bf16 {vr(d)}, {vr(aa)}, {vr(b)}, {'0' if first else vr(d)}")
    def lane_consts():
        a(f"v_and_b32 v28, 1, {vC}")
        a("v_lshlrev_b32 v28, 4, v28")
        a("v_mov_b32 v29, 0xffff")
        a("v_lshlrev_b32 v28, v28, v29")
        a(f"v_lshrrev_b32 v29, 1, {vC}")
        for w in range(4):
            a(f"v_cmp_eq_u32 vcc, {w}, v29")
            a(f"v_cndmask_b32 v{vM[w]}, 0, v28, vcc")
        a(f"v_lshrrev_b32 v28, 4, {vL}")
        a("v_lshlrev_b32 v28, 7, v28")
        a(f"v_lshl_add_u32 v{vPUB}, {vC}, 4, v28")
    lab = [0]
    def poll(body, check, sleep=0):
        lab[0] += 1
        n = lab[0]
        mark = len(A.items)
        a(f"s_mov_b32 {sCNT}, {BOUND}")
        a(f"Lpoll{n}:")
        body()
        if A.items[mark + 2].startswith("ds_read"): A.items[mark] = f"s_mov_b32 {sCNT}, 0x4000000"
        check()
        a(f"s_cbranch_vccz Lpdone{n}")
        if sleep: a(f"s_sleep {sleep}")
        a(f"s_sub_u32 {sCNT}, {sCNT}, 1")
        a(f"s_cbranch_scc0 Lpoll{n}")
        a(f"Lpdone{n}:")
    def chk_invalid(regs, t):
        regs = list(regs)
        a(f"v_max3_u32 v{t}, v{regs[0]}, v{regs[1]}, v{regs[2]}")
        i = 3
        while i < len(regs):
            if i + 1 < len(regs):
                a(f"v_max3_u32 v{t}, v{t}, v{regs[i]}, v{regs[i+1]}"); i += 2
            else:
                a(f"v_max_u32 v{t}, v{t}, v{regs[i]}"); i += 1
        a(f"v_cmp_eq_u32 vcc, -1, v{t}")
    def silu(r, t):
        a(f"v_mul_f32 v{t}, 0xbfb8aa3b, v{r}")
        a(f"v_exp_f32 v{t}, v{t}")
        a(f"v_add_f32 v{t}, 1.0, v{t}")
        a(f"v_rcp_f32 v{t}, v{t}")
        a(f"v_mul_f32 v{r}, v{r}, v{t}")
    def comb2(d, e):
        for r in range(4): a(f"v_permlane32_swap_b32 v{d+r}, v{e+r}")
        for r in range(4): a(f"v_add_f32_dpp v{d+r}, v{e+r}, v{d+r} row_ror:8 {DPP}")
    def set_exec(lo, hi):
        a(f"s_mov_b32 exec_lo, {lo}")
        a(f"s_mov_b32 exec_hi, {hi}")
    def exec_all():
        a("s_mov_b64 exec, -1")
    def pad(k, ret, inline=False):
        if not (warm & (1 if k <= 3 else 2)): return
        if inline: a(f"s_branch L_po{k}")
        a(f"L_pad{k}:")
        a(f"s_branch {ret}")
        if inline: a(f"L_po{k}:")
    def dots(gs):
        for i in range(12):
            for g in gs:
                a(f"v_dot2c_f32_bf16 v{vS+g}, v{vK + 12*g + i}, v{vQ+i}")
    def score_post(gs):
        red8([vS + g for g in gs])
        for j in range(0, len(gs), 2): rnd2(vS + gs[j], vS + gs[j+1])
        for g in gs: a(f"v_mul_f32 v{vS+g}, {SCALE}, v{vS+g}")
        for j in range(0, len(gs), 2): rnd2(vS + gs[j], vS + gs[j+1])
    def end_wave():
        if stamps: a("s_branch L_dump")
        else: a("s_endpgm")
    def zero_stamps():
        if stamps and not est:
            for j in range(1, 15): a(f"s_mov_b64 s[{72+2*j}:{73+2*j}], 0")

    A.raw(f"; @launch grid=(256,1,1) block=(512,1,1) lds={LDS_BYTES}")
    A.raw(HEADER)
    A.raw('.amdgcn_target "amdgcn-amd-amdhsa--gfx950"')
    A.raw(".text")
    A.raw(f".globl {KNAME}")
    A.raw(".p2align 12")
    A.raw(".p2align 8")
    A.raw(f".type {KNAME},@function")
    a(f"{KNAME}:")
    stamp(0)
    a("s_load_dwordx2 s[40:41], s[0:1], 8")
    a("s_load_dwordx2 s[44:45], s[0:1], 16")
    a("s_load_dwordx16 s[16:31], s[0:1], 0")
    a("s_load_dwordx8 s[32:39], s[0:1], 64")
    a("v_lshrrev_b32 v1, 6, v0")
    a("s_cmpk_ge_u32 s2, 256")
    a("s_cbranch_scc1 L_end")
    a(f"v_readfirstlane_b32 {sWAVE}, v1")
    a("v_and_b32 v0, 63, v0")
    a(f"v_lshrrev_b32 {vR}, 3, {vL}")
    a(f"v_and_b32 {vC}, 7, {vL}")
    a(f"s_and_b32 {sX8}, s2, 7")
    a(f"s_lshr_b32 {sI}, s2, 3")
    a("s_lshr_b32 s6, s2, 7")
    a(f"s_lshl1_add_u32 s8, {sX8}, s6")
    a(f"s_and_b32 s9, {sI}, 15")
    a("s_mov_b32 s42, 402653184")
    a("s_mov_b32 s43, 0x20000")
    a(f"s_cmp_eq_u32 {sWAVE}, 7")
    a("s_cbranch_scc1 L_w7")
    a(f"s_cmp_ge_u32 {sWAVE}, 4")
    a("s_cbranch_scc1 L_late")

    c("---- waves 0-3 at the start: members 0-29 fetch their tile of w2 into LDS")
    zero_stamps()
    a(f"s_cmp_ge_u32 {sI}, 30")
    a("s_cbranch_scc1 L_ann")
    a(f"s_mul_i32 s13, {sI}, 52")
    a("s_lshr_b32 s13, s13, 8")
    a("s_mul_i32 s12, s13, 5")
    a(f"s_sub_u32 s12, {sI}, s12")
    a("s_lshl_b32 s12, s12, 8")
    a(f"s_mul_i32 s10, {sX8}, 6")
    a("s_add_u32 s10, s10, s13")
    a("s_lshr_b32 s10, s10, 1")
    a("s_and_b32 s13, s13, 1")
    a("s_lshl4_add_u32 s10, s10, s13")
    a(f"s_lshl2_add_u32 s10, s10, {sWAVE}")
    a("s_mulk_i32 s10, 1280")
    a("s_add_u32 s10, s10, s12")
    a(f"v_mul_u32_u24 v30, 10240, {vR}")
    a(f"v_lshl_add_u32 v30, {vC}, 4, v30")
    a("s_mov_b32 s62, 1966080")
    a("s_mov_b32 s63, s43")
    a(f"s_lshl_b32 s13, {sWAVE}, 11")
    a(f"s_add_u32 m0, s13, {L_W2}")
    a("s_waitcnt lgkmcnt(0)")
    a("s_mov_b64 s[60:61], s[32:33]")
    a(f"buffer_load_dwordx4 v30, {sBB}, s10 offen {nt} lds")
    a(f"s_add_u32 m0, s13, {L_W2 + 896}")
    a(f"buffer_load_dwordx4 v30, {sBB}, s10 offen offset:128 {nt} lds")
    a("L_e3:")
    if warm & 1:
        for k in (1, 2, 3):
            a(f"s_cmp_eq_u32 {sWAVE}, {k}")
            a(f"s_cbranch_scc1 L_pad{k}")
    a("s_branch L_e0")
    c("wave 0 of member 31 zeroes the team's roll-call line, then announces its XCD through d_debug")
    a("L_ann:")
    a(f"s_sub_u32 s10, {sI}, {sWAVE}")
    a("s_cmp_lg_u32 s10, 31")
    a("s_cbranch_scc1 L_e3")
    a("s_setprio 3")
    a("s_getreg_b32 s62, hwreg(HW_REG_XCC_ID, 0, 4)")
    a(f"s_mul_i32 s13, {sX8}, {CTS}")
    a(f"s_add_u32 s13, s13, {CT}")
    a(f"s_lshl_b32 s12, {sX8}, 5")
    a("s_add_u32 s62, s62, 1")
    a(f"v_lshlrev_b32 v28, 1, {vL}")
    a("v_mov_b32 v29, 0")
    a(f"s_mov_b32 s50, {WS_USED}")
    a("s_mov_b32 s51, s43")
    a("s_waitcnt lgkmcnt(0)")
    a("s_mov_b64 s[48:49], s[38:39]")
    a(f"buffer_store_short v29, v28, {sWS}, s13 offen")
    a("s_waitcnt vmcnt(0)")
    a("s_atomic_add s62, s[36:37], s12")
    a("s_setprio 0")
    a("@@start_end")
    a("L_e0:")
    estamp(4)
    lane_consts()
    a("s_barrier")
    stamp(13)

    c("---- K pass, scores, V pass: 8 groups of 8 keys per wave; waves 4-7 run it one barrier behind waves 0-3")
    a("L_stream:")
    a(f"s_and_b32 s11, {sWAVE}, 3")
    a("s_mul_i32 s8, s8, 12582912")
    a("s_lshl2_add_u32 s11, s9, s11")
    a(f"s_add_u32 s8, s8, {28672*384}")
    a("s_mulk_i32 s11, 3072")
    a(f"v_mul_u32_u24 {vKV}, 384, {vR}")
    a("s_add_u32 s8, s8, s11")
    a(f"v_lshl_add_u32 {vKV}, {vC}, 4, {vKV}")
    a(f"s_mov_b32 s10, {208896 if trot else 196608}")
    a("s_mov_b64 s[46:47], s[42:43]")
    a("s_waitcnt lgkmcnt(0)")
    def kv_load(which, g):
        base, s = (vK, sK) if which == "k" else (vV, sV)
        for i in range(3):
            n = 3*g + i
            if n >= Wof(n): a(f"s_waitcnt vmcnt({Wof(n)-1})")
            a(f"buffer_load_dwordx4 {vr(base + 12*g + 4*i)}, {vKV}, {s}, {OFF[g]} offen offset:{i*128} {nt}")
            if fill and which == "v":
                for j in range(n*fill, min(8, (n+1)*fill)): mkA(vK + 4*j, vS + j)
        if which == "k" and g < 7:
            if trot:
                a(f"s_cmp_eq_u32 s9, {15-g}")
                a("s_cselect_b32 s11, 12288, s10")
                a(f"s_add_u32 {OFF[g+1]}, {OFF[g]}, s11")
            else:
                a(f"s_add_u32 {OFF[g+1]}, {OFF[g]}, s10")
    for g in range(8):
        kv_load("k", g)
        if g == 6:
            srd(sWS, 38, WS_USED)
            a(f"s_mul_i32 s13, {sX8}, {CTS}")
            a(f"s_add_u32 s13, s13, {CT}")
            a(f"v_lshlrev_b32 v29, 2, {vC}")
            if prepoll:
                a("v_mov_b32 v31, 0")
                a(f"ds_read_b32 v27, v31 offset:{L_MODE}")
    stamp(6)
    a(f"s_cmp_eq_u32 {sWAVE}, 0")
    if prepoll:
        a("s_waitcnt lgkmcnt(0)")
        a("v_readfirstlane_b32 s27, v27")
        a("s_cbranch_scc0 L_x1")
        a("s_mov_b64 exec, 0xff")
        a(f"buffer_load_dword v27, v29, {sWS}, s13 offen sc1")
        exec_all()
        a("L_x1:")
    a("s_barrier")
    a("s_cbranch_scc1 L_qg")
    a("L_qw:")
    a("v_mov_b32 v31, 0")
    def body():
        a(f"ds_read_b32 v28, v31 offset:{L_FQ}")
        a("s_waitcnt lgkmcnt(0)")
    poll(body, lambda: a("v_cmp_eq_u32 vcc, 0, v28"), 2)
    stamp(1)
    c("scores (bf16-rounded like the reference), the wave's max, p = exp(s - max), row sum")
    a("v_readfirstlane_b32 s27, v28")
    a(f"s_lshr_b32 s7, {sWAVE}, 2")
    a("s_mul_i32 s11, s7, 384")
    a(f"v_lshl_add_u32 v28, {vC}, 4, s11")
    for i in range(3):
        a(f"ds_read_b128 {vr(vQ + 4*i)}, v28 offset:{L_Q + 128*i}")
    a(f"s_lshl_b32 s7, s7, 5")
    a(f"s_add_u32 s7, s7, {sI}")
    a(f"s_and_b32 s11, {sWAVE}, 3")
    a("s_lshl2_add_u32 s7, s7, s11")
    a(f"s_mul_i32 s11, {sX8}, {TEAM}")
    a("s_lshl3_add_u32 s7, s7, s11")
    a(f"s_add_u32 s12, s7, {TML}")
    for j in range(8):
        a(f"v_mov_b32 v{vS+j}, 0")
    a("s_waitcnt vmcnt(0) lgkmcnt(0)")
    dots(range(8)); score_post(list(range(8)))
    a(f"v_max3_f32 v244, v{vS}, v{vS+1}, v{vS+2}")
    a(f"v_max3_f32 v244, v244, v{vS+3}, v{vS+4}")
    a(f"v_max3_f32 v244, v244, v{vS+5}, v{vS+6}")
    a(f"v_max_f32 v244, v244, v{vS+7}")
    red_hi(244, 28, "max")
    pad(1, "L_e0", True)
    for j in range(8): a(f"v_sub_f32 v{vS+j}, v{vS+j}, v244")
    for j in range(8): a(f"v_mul_f32 v{vS+j}, {LOG2E}, v{vS+j}")
    for j in range(8): a(f"v_exp_f32 v{vS+j}, v{vS+j}")
    a(f"v_add_f32 v9, v{vS}, v{vS+1}")
    for j in range(2, 8): a(f"v_add_f32 v9, v9, v{vS+j}")
    red_hi(9, 28, "add")
    a(f"s_mul_i32 s7, {sWAVE}, {2*ROWS}")
    a(f"v_lshrrev_b32 v29, 5, {vL}")
    a(f"v_mul_u32_u24 v29, {ROWS}, v29")
    a("v_add_u32 v29, s7, v29")
    a(f"v_and_b32 v28, 16, {vL}")
    a(f"v_lshl_add_u32 v28, {vC}, 5, v28")
    a("v_add_u32 v30, v28, v29")
    a(f"v_mul_f32 v8, {LOG2E}, v244")
    a("s_cmp_eq_u32 s27, 1")
    a("s_mov_b64 exec, 1")
    a("s_cbranch_scc0 L_mlg")
    a(f"buffer_store_dwordx2 v[8:9], off, {sWS}, s12")
    a("L_mld:")
    exec_all()
    if not fill:
        for g in range(8): mkA(vK + 4*g, vS + g)
    stamp(2)
    a("s_barrier")
    def pv(g, wait):
        for i in range(3):
            k = 23 - 3*g - i
            if wait and k < Wmax: a(f"s_waitcnt vmcnt({k})")
            mfma(vD + 4*i, vK + 4*g, vV + 12*g + 4*i, g == 0)
    for g in range(8):
        kv_load("v", g)
        if 3 <= g < 7: pv(g - 3, False)
    stamp(7)
    a("s_barrier")
    stamp(8)
    for g in range(4, 8): pv(g, True)
    stamp(9)
    set_exec("0x00ff00ff", "0xff00ff00")
    a(f"s_cmp_lt_u32 {sWAVE}, 4")
    for i in range(3):
        a(f"ds_write_b128 v30, {vr(vD + 4*i)} offset:{L_ROW + 256*i}")
    a("s_cbranch_scc1 L_early")
    a("s_waitcnt lgkmcnt(0)")
    a("s_barrier")
    stamp(10)
    if stamps and not notail:
        a(f"s_cmp_ge_u32 {sI}, 30")
        a("s_cbranch_scc1 L_done")
        a("s_barrier")
        a("s_barrier")
    end_wave()
    a("L_mlg:")
    a(f"buffer_store_dwordx2 v[8:9], off, {sWS}, s12 sc1")
    a("s_branch L_mld")

    a("@@early_begin")
    c("---- waves 0-3 after their pass: members 0-29 own a tile of 128 wo rows (32 w2 rows) x 128 columns")
    a(".p2align 12")
    pad(4, "L_lq2")
    a("L_early:")
    a("s_mov_b64 exec, 1")
    a("v_mov_b32 v28, 0")
    a("v_mov_b32 v29, 1")
    a("s_waitcnt lgkmcnt(0)")
    a(f"ds_add_u32 v28, v29 offset:{L_CNT}")
    exec_all()
    a("s_mov_b32 s14, s27")
    srd(sA, 24, 7864320)
    srd(sX, 16, 1280)
    srd(sOUT, 34, 1280)
    a(f"v_lshlrev_b32 v31, 4, {vL}")
    a(f"s_mul_i32 s12, {sX8}, {TEAM}")
    a(f"s_add_u32 s12, s12, {TO}")
    a(f"s_mul_i32 s13, {sI}, 52")
    a("s_lshr_b32 s13, s13, 8")
    a("s_mul_i32 s7, s13, 5")
    a(f"s_sub_u32 s7, {sI}, s7")
    a(f"s_mul_i32 s30, s7, {9*128}")
    a(f"s_add_u32 s30, s30, {AM}")
    a(f"s_add_u32 s31, s30, {AS-AM}")
    a(f"s_lshl2_add_u32 s6, s13, {sWAVE}")
    a("s_lshl_b32 s7, s7, 8")
    a(f"v_lshlrev_b32 v250, 4, {vC}")
    a(f"v_mul_u32_u24 v248, 5120, {vR}")
    a("v_add_u32 v248, v248, v250")
    a(f"v_lshl_add_u32 v249, {vR}, 8, v250")
    a("s_lshl_b32 s11, s6, 11")
    a("s_add_u32 s11, s11, s12")
    a(f"s_mul_i32 s8, {sX8}, 12")
    a("s_add_u32 s8, s8, s6")
    a("s_cmp_ge_u32 s6, 12")
    a("s_cselect_b32 s10, 84, 0")
    a("s_add_u32 s8, s8, s10")
    a("s_mul_i32 s8, s8, 40960")
    a("s_add_u32 s8, s8, s7")
    a(f"s_mul_i32 s6, {sWAVE}, 1536")
    a(f"v_lshrrev_b32 v28, 5, {vL}")
    a("v_mul_u32_u24 v28, 768, v28")
    a("v_add_u32 v28, s6, v28")
    a("v_mov_b32 v29, 0x3e000000")
    a(f"ds_write_b32 v28, v29 offset:{L_TS+512}")
    a(f"v_and_b32 v29, 0xff, v{vPUB}")
    a("v_add_u32 v246, v28, v29")
    c("lane map of the finishing step: segment = 3*wave + (lane>>4), n = 15*segment + (lane&15), lane 15 of a row counts")
    a(f"s_mul_i32 s6, {sWAVE}, 3")
    a(f"v_lshrrev_b32 v28, 4, {vL}")
    a("v_add_u32 v28, s6, v28")
    a(f"v_and_b32 v29, 15, {vL}")
    a("v_mad_u32_u24 v252, v28, 15, v29")
    a("v_lshlrev_b32 v253, 2, v29")
    a("v_min_u32 v28, 8, v28")
    a("v_lshl_add_u32 v253, v28, 7, v253")
    a("v_cmp_gt_u32 vcc, 0x80, v252")
    a("s_and_b32 s26, vcc_lo, 0x7fff7fff")
    a("s_and_b32 s27, vcc_hi, 0x7fff")
    a("s_or_b32 s28, s26, 0x80008000")
    a("s_or_b32 s29, s27, 0x8000")
    a("v_cmp_eq_u32 vcc, 15, v29")
    a("v_lshrrev_b32 v28, 6, v252")
    a("v_bfe_u32 v29, v252, 2, 3")
    a("v_lshl_add_u32 v28, v28, 3, v29")
    a("v_bfe_u32 v29, v252, 5, 1")
    a("v_lshl_add_u32 v28, v28, 1, v29")
    a("v_and_b32 v29, 3, v252")
    a("v_lshl_add_u32 v28, v28, 2, v29")
    a("v_lshl_add_u32 v254, v28, 1, s7")
    a("v_mov_b32 v28, 0x80")
    a("v_cndmask_b32 v252, v252, v28, vcc")
    a("v_lshlrev_b32 v252, 2, v252")
    a(f"s_cmp_ge_u32 {sWAVE}, 2")
    a("s_cbranch_scc1 L_e2")
    c("wave 1 hands over the partial of waves 0-3 now, wave 0 that of waves 4-7 later; both scale by exp(max_w - max) / sum")
    a(f"s_xor_b32 s6, {sWAVE}, 1")
    a(f"s_lshr_b32 s10, {sI}, 4")
    a("s_lshl1_add_u32 s6, s6, s10")
    a("s_lshl_b32 s10, s6, 9")
    a("s_add_u32 s10, s10, s12")
    a(f"s_add_u32 s10, s10, {TML-TO}")
    a("s_mul_i32 s6, s6, 12288")
    a("s_lshl4_add_u32 s6, s9, s6")
    a("s_add_u32 s6, s6, s12")
    a(f"v_lshlrev_b32 v30, 3, {vL}")
    def body():
        a(f"buffer_load_dwordx2 v[8:9], v30, {sWS}, s10 offen sc1")
        a("s_waitcnt vmcnt(0)")
        a("v_max_u32 v28, v8, v9")
    poll(body, lambda: a("v_cmp_eq_u32 vcc, -1, v28"), 2)
    a("v_mov_b32 v10, v8")
    red8([10], "max_f32"); red_hi(10, 28, "max")
    a("v_sub_f32 v8, v8, v10")
    a("v_exp_f32 v8, v8")
    a("v_mul_f32 v9, v9, v8")
    red8([9]); red_hi(9, 28)
    a("v_rcp_f32 v9, v9")
    a("s_lshl_b32 s10, s9, 2")
    a(f"v_lshlrev_b32 v30, 8, {vL}")
    a("v_mul_f32 v8, v8, v9")
    for w in range(4):
        a(f"v_readlane_b32 s{60+2*w}, v8, s10")
        if w < 3: a("s_add_u32 s10, s10, 1")
    def rows_sum(r0):
        for j in range(8):
            a(f"ds_read_b128 {vr(160 + 4*j)}, v31 offset:{L_ROW + ROWS*(r0+j)}")
        for w in range(4):
            a(f"s_waitcnt lgkmcnt({0 if stamps else 6-2*w})")
            for h in (0, 2):
                a(f"v_pk_add_f32 {vr(160+8*w+h,2)}, {vr(160+8*w+h,2)}, {vr(164+8*w+h,2)}")
            for h in (0, 2):
                if w == 0: a(f"v_pk_mul_f32 {vr(156+h,2)}, {vr(160+h,2)}, s[60:61] op_sel_hi:[1,0]")
                else: a(f"v_pk_fma_f32 {vr(156+h,2)}, {vr(160+8*w+h,2)}, s[{60+2*w}:{61+2*w}], {vr(156+h,2)} op_sel_hi:[1,0,1]")
    a(f"s_cmp_eq_u32 {sWAVE}, 0")
    a("s_cbranch_scc1 L_e2")
    a("v_mov_b32 v29, 0")
    def body():
        a(f"ds_read_b32 v28, v29 offset:{L_CNT}")
        a("s_waitcnt lgkmcnt(0)")
    poll(body, lambda: a("v_cmp_gt_u32 vcc, 4, v28"), 2)
    a("s_mov_b32 exec_hi, 0xffff")
    rows_sum(0)
    a("s_cmp_eq_u32 s14, 1")
    a("s_cbranch_scc0 L_pub1g")
    a(f"buffer_store_dwordx4 v[156:159], v30, {sWS}, s6 offen")
    a("L_pub1d:")
    exec_all()
    a("L_e2:")
    a(f"s_cmp_ge_u32 {sI}, 30")
    a("s_cbranch_scc1 L_notile")
    a(f"s_cmp_eq_u32 {sWAVE}, 3")
    a("s_cbranch_scc1 L_mlp2")
    a(f"buffer_load_ushort v255, v254, {sX}, 0 offen")
    a("s_mov_b64 exec, s[28:29]")
    a("s_waitcnt vmcnt(0) lgkmcnt(0)")
    a("v_lshlrev_b32 v255, 16, v255")
    a("s_barrier")
    stamp(3)
    if not notail:
        a(f"ds_read_b32 v28, v252 offset:{L_TM}")
        a("s_waitcnt lgkmcnt(0)")
        a(f"buffer_atomic_add_f32 v28, v253, {sWS}, s30 offen")
    exec_all()
    a("L_ea:")
    for k in range(8):
        rb, li = k // 2, k % 2
        a(f"buffer_load_dwordx4 {vr(vK + 8*rb + 4*li)}, v248, {sA}, s8 offen offset:{rb*1280 + li*128} {nt}")
    a(f"s_cmp_eq_u32 {sWAVE}, 0")
    a("s_cbranch_scc1 L_pub")
    a("s_barrier")
    stamp(4)
    a("s_branch L_og")

    pad(5, "L_lq2")
    a("L_pub:")
    a("s_mov_b32 exec_hi, 0xffff")
    a("s_cmp_eq_u32 s14, 1")
    a("s_barrier")
    stamp(4)
    rows_sum(8)
    if not notail:
        a("s_cbranch_scc0 L_pubg")
        a(f"buffer_store_dwordx4 v[156:159], v30, {sWS}, s6 offen")
    a("L_pubd:")
    exec_all()
    a(f"s_cmp_ge_u32 {sI}, 30")
    a("s_cbranch_scc1 L_done")
    c("gather the sixteen partials of 32 attention outputs, add, multiply with the wo rows")
    a("L_og:")
    a(f"s_mov_b32 {sCNT}, {BOUND}")
    if notail:
        a("s_waitcnt vmcnt(0)")
        stamp(11)
        end_wave()
    a("s_barrier")
    stamp(10)
    a("L_poll:")
    a(f"buffer_load_dwordx4 v[8:11], v249, {sWS}, s11 offen sc1")
    a(f"buffer_load_dwordx4 v[12:15], v249, {sWS}, s11 offen offset:128 sc1")
    a("s_waitcnt vmcnt(0)")
    a("v_pk_add_f32 v[16:17], v[8:9], v[12:13]")
    a("v_pk_add_f32 v[18:19], v[10:11], v[14:15]")
    a("v_max3_u32 v28, v8, v9, v10")
    a(f"v_add_f32_dpp v16, v16, v16 quad_perm:[1,0,3,2] {DPP}")
    a("v_max3_u32 v29, v11, v12, v13")
    a(f"v_add_f32_dpp v17, v17, v17 quad_perm:[1,0,3,2] {DPP}")
    a("v_max3_u32 v28, v28, v14, v15")
    a(f"v_add_f32_dpp v16, v16, v16 quad_perm:[2,3,0,1] {DPP}")
    a("v_max_u32 v28, v28, v29")
    a(f"v_add_f32_dpp v17, v17, v17 quad_perm:[2,3,0,1] {DPP}")
    a("v_cmp_eq_u32 vcc, -1, v28")
    a(f"v_add_f32_dpp v16, v16, v16 row_half_mirror {DPP}")
    a("s_cbranch_vccnz L_retry")
    a("L_got:")
    stamp(11)
    cvtA(128, 16); andA(128)
    a(f"v_add_f32_dpp v17, v17, v17 row_half_mirror {DPP}")
    a(f"v_add_f32_dpp v18, v18, v18 quad_perm:[1,0,3,2] {DPP}")
    mfma(vD, 128, vK, True)
    cvtA(132, 17)
    a(f"v_add_f32_dpp v18, v18, v18 quad_perm:[2,3,0,1] {DPP}")
    mfma(vD + 4, 128, vK + 4, True)
    andA(132)
    a(f"v_add_f32_dpp v18, v18, v18 row_half_mirror {DPP}")
    a(f"v_add_f32_dpp v19, v19, v19 quad_perm:[1,0,3,2] {DPP}")
    mfma(vD, 132, vK + 8)
    cvtA(136, 18)
    a(f"v_add_f32_dpp v19, v19, v19 quad_perm:[2,3,0,1] {DPP}")
    mfma(vD + 4, 132, vK + 12)
    andA(136)
    a(f"v_add_f32_dpp v19, v19, v19 row_half_mirror {DPP}")
    a(f"buffer_load_dword v15, v253, {sWS}, s30 offen sc1")
    mfma(vD, 136, vK + 16)
    cvtA(140, 19)
    andA(140)
    mfma(vD + 4, 136, vK + 20)
    a(f"s_cmp_eq_u32 {sWAVE}, 3")
    mfma(vD, 140, vK + 24)
    mfma(vD + 4, 140, vK + 28)
    set_exec("0x00ff00ff", "0xff00ff00")
    a(f"ds_write_b128 v246, {vr(vD)} offset:{L_TS}")
    a(f"ds_write_b128 v246, {vr(vD+4)} offset:{L_TS+256}")
    a("s_mov_b64 exec, s[28:29]")
    a("s_waitcnt lgkmcnt(0)")
    a("s_barrier")
    a("s_cbranch_scc1 L_done")
    c("add this tile to the chip-wide sums; whoever adds last finishes the columns")
    for j in range(4):
        a(f"ds_read2st64_b32 {vr(16+2*j,2)}, v252 offset0:{L_TS//256+6*j} offset1:{L_TS//256+6*j+3}")
    a("s_waitcnt lgkmcnt(0)")
    a("v_pk_add_f32 v[16:17], v[16:17], v[18:19]")
    a("v_pk_add_f32 v[20:21], v[20:21], v[22:23]")
    a("v_pk_add_f32 v[16:17], v[16:17], v[20:21]")
    a("v_add_f32 v9, v16, v17")
    a(f"buffer_atomic_add_f32 v9, v253, {sWS}, s31 offen sc0")
    stamp(12)
    a("v_add_f32 v8, v16, v17")
    a(f"s_mov_b32 {sCNT}, {BOUND}")
    a("s_waitcnt vmcnt(1)")
    a("L_g:")
    a(f"v_mov_b32_dpp v16, v15 row_newbcast:15 {DPP}")
    rnd1(15)
    a("v_cmp_neq_f32 vcc, 0x42400000, v16")
    silu(15, 17)
    a("s_mov_b64 s[6:7], vcc")
    rnd1(15)
    a("s_waitcnt vmcnt(0)")
    a("v_add_f32 v10, v8, v9")
    a("v_cvt_pk_bf16_f32 v11, v10, v10")
    a("v_lshlrev_b32 v11, 16, v11")
    a(f"v_mov_b32_dpp v16, v10 row_newbcast:15 {DPP}")
    a("v_mul_f32 v11, v11, v15")
    a("v_cmp_eq_f32 vcc, 0x42400000, v16")
    rnd1(11)
    a("s_and_b64 s[6:7], s[6:7], vcc")
    a("v_add_f32 v11, v11, v255")
    a("s_cbranch_scc1 L_gslow")
    a("L_gok:")
    a("s_and_b64 exec, vcc, s[26:27]")
    a("v_cvt_pk_bf16_f32 v11, v11, v11")
    a("s_cbranch_scc0 L_done")
    a(f"buffer_store_short v11, v254, {sOUT}, 0 offen")
    stamp(13)
    a("L_done:")
    end_wave()
    a("L_retry:")
    a(f"s_sub_u32 {sCNT}, {sCNT}, 1")
    a("s_cbranch_scc0 L_poll")
    a("s_branch L_got")
    a("L_gslow:")
    a(f"s_sub_u32 {sCNT}, {sCNT}, 1")
    a("s_cbranch_scc1 L_gok")
    a(f"buffer_load_dword v15, v253, {sWS}, s30 offen sc1")
    a("s_waitcnt vmcnt(0)")
    a("s_branch L_g")
    a("L_pubg:")
    a(f"buffer_store_dwordx4 v[156:159], v30, {sWS}, s6 offen sc1")
    a("s_branch L_pubd")
    a("L_pub1g:")
    a(f"buffer_store_dwordx4 v[156:159], v30, {sWS}, s6 offen sc1")
    a("s_branch L_pub1d")
    a("L_notile:")
    a(f"s_cmp_eq_u32 {sWAVE}, 0")
    a("s_waitcnt lgkmcnt(0)")
    a("s_barrier")
    a("s_cbranch_scc1 L_pub")
    end_wave()

    c("wave 3: second MLP stage for F rows 192*team + 64*(part>>1) + 4*(part&1) + 8*r + rb")
    pad(6, "L_lq2")
    a("L_mlp2:")
    srd(sDBG, 36, 256)
    a("s_lshl_b32 s13, s13, 11")
    a("s_add_u32 s13, s13, s12")
    a(f"s_sub_u32 s13, s13, {TO-TG}")
    a("s_add_u32 s6, s13, 12288")
    def body():
        for j in range(4):
            a(f"buffer_load_dwordx4 {vr(128+4*j)}, v249, {sWS}, {'s13' if j < 2 else 's6'} offen offset:{128*(j%2)} sc1")
        a(f"buffer_load_dword v29, off, {sDBG}, 0 offset:4 sc1")
        a("s_waitcnt vmcnt(0)")
    def chk():
        a("v_cmp_gt_u32 vcc, 8, v29")
        a("v_cndmask_b32 v29, 0, -1, vcc")
        chk_invalid(list(range(128, 144)) + [29], 28)
    poll(body, chk, 4)
    for k in range(8):
        a(f"ds_read_b128 {vr(64 + 4*k)}, v31 offset:{L_W2 + 1024*k}")
    for j in (0, 2):
        a(f"v_pk_add_f32 {vr(128+j,2)}, {vr(128+j,2)}, {vr(132+j,2)}")
        a(f"v_pk_add_f32 {vr(132+j,2)}, {vr(136+j,2)}, {vr(140+j,2)}")
    red8(range(128, 136))
    for j in range(128, 136, 2): rnd2(j, j + 1)
    for j in range(4): silu(128 + j, 136 + j)
    for j in (128, 130): rnd2(j, j + 1)
    for j in range(4): a(f"v_mul_f32 v{128+j}, v{128+j}, v{132+j}")
    for j in range(4): mkA(144 + 4*j, 128 + j)
    a("v_mov_b32 v28, 0")
    a("v_mov_b32 v29, 1.0")
    a(f"ds_write_b32 v28, v29 offset:{L_TM+512}")
    a("s_waitcnt lgkmcnt(0)")
    for rb in range(4):
        for li in range(2):
            mfma(vD + 4*li, 144 + 4*rb, 64 + 8*rb + 4*li, rb == 0)
    comb2(vD, vD + 4)
    set_exec("0x00ff00ff", "0x00ff00ff")
    a(f"ds_write_b128 v{vPUB}, {vr(vD)} offset:{L_TM}")
    exec_all()
    stamp(5)
    a("s_waitcnt lgkmcnt(0)")
    a("s_barrier")
    stamp(3)
    a("s_branch L_ea")

    c("---- waves 4-6 at the start: mark this member's share of the team area, LayerNorm, 80 rows of wq and 40 rows of w1 or w3")
    a("@@late_begin")
    a("L_late:")
    estamp(4)
    zero_stamps()
    if lprio: a(f"s_setprio {lprio}")
    a("v_mov_b32 v31, 0")
    a(f"v_lshlrev_b32 v30, 2, {vC}")
    a("ds_write_b32 v30, v31")
    a("s_add_u32 s8, s8, 16")
    a(f"s_and_b32 s7, {sI}, 7")
    a(f"s_bfe_u32 s10, {sI}, 0x10003")
    a("s_lshl4_add_u32 s6, s6, s10")
    a(f"s_lshl1_add_u32 s6, {sX8}, s6")
    a(f"s_sub_u32 s13, {sWAVE}, 4")
    a(f"s_mul_i32 s14, {sX8}, {TEAM}")
    a(f"s_mul_i32 s10, {sI}, 768")
    a("s_mul_i32 s11, s10, 3")
    a("s_lshl_b32 s12, s13, 10")
    a("s_add_u32 s11, s11, s12")
    a(f"s_addk_i32 s11, {TG-1024}")
    a(f"s_lshl1_add_u32 s12, s10, {TG+1280}")
    a("s_cmp_eq_u32 s13, 0")
    a("s_cselect_b32 s10, s10, s11")
    a("s_cselect_b32 s12, s12, 0")
    a("s_add_u32 s70, s10, s14")
    a(f"s_lshl_b32 s71, {sI}, 7")
    a("s_add_u32 s71, s71, s14")
    a(f"s_add_u32 s71, s71, {TML}")
    a(f"v_cmp_lt_u32 vcc, 47, {vL}")
    a("v_mov_b32 v24, s12")
    for r in range(4): a(f"v_mov_b32 v{140+r}, -1")
    a("v_cndmask_b32 v24, 0, v24, vcc")
    a(f"v_lshl_add_u32 v25, {vL}, 4, v24")
    a(f"v_mul_u32_u24 v26, 20, {vL}")
    a(f"v_mul_u32_u24 v27, 20, {vR}")
    a(f"v_mul_u32_u24 v30, 122880, {vR}")
    a(f"v_lshl_add_u32 v30, {vC}, 4, v30")
    a("s_mul_i32 s10, s7, 160")
    a("s_mul_i32 s11, s7, 983040")
    a("s_mul_i32 s12, s6, 384")
    a("s_lshl_b32 s13, s13, 7")
    a("s_add_u32 s11, s11, s12")
    a("s_add_u32 s11, s11, s13")
    a("s_movk_i32 s12, 12288")
    a(f"s_mov_b32 s50, {WS_USED}")
    a("s_mov_b32 s51, 0x20000")
    a("s_mov_b32 s54, 1280")
    a("s_mov_b32 s55, 0x20000")
    a("s_mov_b32 s58, 7864320")
    a("s_mov_b32 s59, 0x20000")
    a(f"s_lshl4_add_u32 s60, {sWAVE}, {sI}")
    a("s_cmpk_lt_u32 s60, 80")
    a("s_waitcnt lgkmcnt(0)")
    a("s_mov_b64 s[48:49], s[38:39]")
    a("s_mov_b64 s[52:53], s[16:17]")
    a("s_mov_b64 s[56:57], s[22:23]")
    estamp(5)
    a(f"buffer_store_dwordx4 v[140:143], v25, {sWS}, s70 offen")
    a("s_cbranch_scc0 L_l1")
    a("s_mov_b64 exec, 0xff")
    a(f"buffer_store_dwordx4 v[140:143], v25, {sWS}, s71 offen")
    exec_all()
    a("L_l1:")
    a(f"buffer_load_dwordx4 v[128:131], v26, {sX}, 0 offen")
    a(f"buffer_load_dword v132, v26, {sX}, 0 offen offset:16")
    a(f"buffer_load_dwordx4 v[134:137], v27, {sX}, s10 offen")
    a(f"buffer_load_dword v138, v27, {sX}, s10 offen offset:16")
    for rb in range(10):
        a(f"buffer_load_dwordx4 {vr(vK + 4*rb)}, v30, {sA}, s11 offen {nt}")
        if rb < 9: a("s_add_u32 s11, s11, s12")
    estamp(6)
    a(f"s_cmp_ge_u32 {sI}, 16")
    a("s_cselect_b64 s[60:61], s[30:31], s[28:29]")
    a("s_mov_b32 s62, 1966080")
    a("s_mov_b32 s63, 0x20000")
    a(f"v_mul_u32_u24 v30, 30720, {vR}")
    a(f"v_lshl_add_u32 v30, {vC}, 4, v30")
    a("s_mul_i32 s11, s7, 245760")
    a(f"s_bfe_u32 s10, {sI}, 0x10003")
    a("s_mul_i32 s12, s10, 15360")
    a("s_add_u32 s11, s11, s12")
    a(f"s_mul_i32 s12, {sX8}, 384")
    a("s_add_u32 s11, s11, s12")
    a("s_add_u32 s11, s11, s13")
    for rb in range(5):
        a(f"buffer_load_dwordx4 {vr(vK + 40 + 4*rb)}, v30, {sBB}, s11 offen offset:{(rb%2)*3072} {nt}")
        if rb % 2 == 1: a("s_addk_i32 s11, 6144")
    estamp(7)
    lane_consts()
    a(f"s_mul_i32 s11, {sI}, 768")
    a("s_lshl1_add_u32 s11, s13, s11")
    a(f"v_add_u32 v30, s11, v{vPUB}")
    a("s_lshl_b32 s11, s13, 2")
    a(f"v_add_u32 v24, s11, v{vPUB}")
    a("s_waitcnt vmcnt(15)")
    if pre:
        if b0 < 15: a(f"s_waitcnt vmcnt({b0})")
        a("s_barrier")
    stamp(3)
    for i in range(5):
        a(f"v_lshlrev_b32 v{140+2*i}, 16, v{128+i}")
        a(f"v_and_b32 v{141+2*i}, 0xffff0000, v{128+i}")
    a("v_add_f32 v160, v140, v141")
    for i in range(2, 10): a(f"v_add_f32 v160, v160, v{140+i}")
    red8([160]); red_hi(160, 161)
    a(f"v_mul_f32 v160, {INV640}, v160")
    for i in range(10): a(f"v_sub_f32 v{140+i}, v{140+i}, v160")
    a("v_mul_f32 v162, v140, v140")
    for i in range(1, 10): a(f"v_fmac_f32 v162, v{140+i}, v{140+i}")
    red8([162]); red_hi(162, 161)
    a(f"v_mul_f32 v162, {INV640}, v162")
    rnd2(160, 162)
    a(f"v_add_f32 v162, {EPS}, v162")
    rnd1(162)
    a("v_sqrt_f32 v162, v162")
    rnd1(162)
    a("v_rcp_f32 v162, v162")
    if not pre:
        a(f"s_waitcnt vmcnt({b0})")
        a("s_barrier")
    for i in range(5):
        a(f"v_lshlrev_b32 v{150+2*i}, 16, v{134+i}")
        a(f"v_and_b32 v{151+2*i}, 0xffff0000, v{134+i}")
    for i in range(10): a(f"v_sub_f32 v{150+i}, v{150+i}, v160")
    for i in range(0, 10, 2): rnd2(150 + i, 151 + i)
    for i in range(10): a(f"v_mul_f32 v{150+i}, v{150+i}, v162")
    for i in range(10): mkA(164 + 4*i, 150 + i)
    a(f"s_lshl_b32 s12, {sX8}, 5")
    estamp(8)
    a("s_waitcnt vmcnt(5)")
    estamp(9)
    for rb in range(10):
        mfma(vD, 164 + 4*rb, vK + 4*rb, rb == 0)
    if who == 6: a("s_load_dword s11, s[36:37], s12")
    a("s_cmp_lg_u32 s10, 0")
    a("s_waitcnt vmcnt(0)")
    a("s_cbranch_scc1 L_mh1")
    for rb in range(5):
        mfma(vD + 4, 164 + 4*rb, vK + 40 + 4*rb, rb == 0)
    a("s_branch L_mh2")
    a("L_mh1:")
    for rb in range(5):
        mfma(vD + 4, 184 + 4*rb, vK + 40 + 4*rb, rb == 0)
    a("L_mh2:")
    stamp(4)
    comb2(vD, vD + 4)
    set_exec("0x00ff00ff", "0x00ff00ff")
    a(f"ds_write_b128 v24, {vr(vD)} offset:{L_ST}")
    a("s_mov_b32 exec_hi, 0")
    a(f"buffer_store_dwordx4 {vr(vD)}, v30, {sWS}, s14 offen")
    if who == 6:
        a(f"s_cmp_lg_u32 {sWAVE}, 6")
        a("s_cbranch_scc1 L_lq")
    else: a("s_branch L_lq")
    c("answer the roll call if this workgroup runs on the XCD that member 31 announced")
    a("L_ans:")
    srd(sDBG, 36, 256)
    a("s_getreg_b32 s10, hwreg(HW_REG_XCC_ID, 0, 4)")
    a(f"s_mul_i32 s13, {sX8}, {CTS}")
    a(f"s_add_u32 s13, s13, {sI}")
    a(f"s_add_u32 s13, s13, {CT}")
    a("s_add_u32 s10, s10, 1")
    a("s_mov_b64 exec, 1")
    a("v_mov_b32 v29, 1")
    a("s_waitcnt lgkmcnt(0)")
    a("s_cmp_lg_u32 s11, 0")
    a("s_cbranch_scc1 L_r1")
    def body():
        a(f"buffer_load_dword v28, off, {sDBG}, s12 sc1")
        a("s_waitcnt vmcnt(0)")
    poll(body, lambda: a("v_cmp_eq_u32 vcc, 0, v28"), 8)
    a("v_readfirstlane_b32 s11, v28")
    a("L_r1:")
    a(f"s_cmp_eq_u32 s11, {'0' if force_global else 's10'}")
    a("s_cbranch_scc1 L_r2")
    a(f"ds_write_b32 v31, v29 offset:{L_MODE}")
    a("s_branch L_r3")
    a("L_r2:")
    a(f"buffer_store_byte v29, off, {sWS}, s13")
    if prepoll:
        a("v_mov_b32 v28, 2")
        a(f"ds_write_b32 v31, v28 offset:{L_MODE}")
    a("L_r3:")
    stamp(5)
    if who == 7:
        a(f"s_cmp_eq_u32 {sI}, 31")
        a("s_cbranch_scc1 L_w7z")
    a("L_lq:")
    if warm & 2:
        for k in (4, 5, 6):
            a(f"s_cmp_eq_u32 {sWAVE}, {k}")
            a(f"s_cbranch_scc1 L_pad{k}")
    a("L_lq2:")
    exec_all()
    a("s_setprio 0")
    a("s_waitcnt lgkmcnt(0)")
    a("s_barrier")
    a("s_branch L_stream")

    c("---- wave 7 at the start: member 31 zeroes 12 accumulator segments and counts its team as ready")
    a("L_w7:")
    zero_stamps()
    a("s_add_u32 s8, s8, 16")
    lane_consts()
    a("s_waitcnt lgkmcnt(0)")
    srd(sWS, 38, WS_USED)
    a(f"s_lshl_b32 s12, {sX8}, 5")
    a("v_mov_b32 v31, 0")
    a(f"s_cmp_lg_u32 {sI}, 31")
    a("s_barrier")
    if who == 7:
        a("s_load_dword s11, s[36:37], s12")
        a("s_branch L_ans")
    else: a("s_cbranch_scc1 L_lq")
    a("L_w7z:")
    exec_all()
    for r in range(4): a(f"v_mov_b32 v{144+r}, 0")
    a(f"v_lshrrev_b32 v28, 2, {vL}")
    a("v_lshlrev_b32 v28, 2, v28")
    a(f"v_add_lshl_u32 v28, v28, {vL}, 4")
    a(f"s_mul_i32 s11, {sX8}, {12*128}")
    a(f"s_add_u32 s11, s11, {AM}")
    a("s_mov_b32 exec_hi, 0xffff")
    a(f"buffer_store_dwordx4 v[144:147], v28, {sWS}, s11 offen sc1")
    a("s_mov_b32 s6, 1")
    a("s_waitcnt vmcnt(0)")
    a("s_atomic_add s6, s[36:37], 4")
    a("s_branch L_lq")

    a("@@late_end")
    c("---- wave 0 after its K pass: wait until all 32 members have answered or someone has called it off")
    pad(2, "L_e0")
    a("L_qg:")
    srd(sDBG, 36, 256)
    a("v_mov_b32 v31, 0")
    a(f"ds_read_b32 v28, v31 offset:{L_MODE}")
    for j in range(3):
        a(f"ds_read_b128 {vr(vV + 64 + 4*j)}, v{vPUB} offset:{L_ST + 512*j}")
    a(f"s_lshl_b32 s12, {sX8}, 5")
    a(f"s_mul_i32 s14, {sX8}, {TEAM}")
    a(f"v_lshlrev_b32 v31, 4, {vL}")
    a(f"s_lshr_b32 s11, {sI}, 4")
    a("s_mul_i32 s11, s11, 12288")
    a(f"s_and_b32 s7, {sI}, 15")
    a("s_lshl4_add_u32 s11, s7, s11")
    a("s_add_u32 s11, s11, s14")
    a(f"s_add_u32 s70, s11, {TG-4096}")
    a(f"v_lshlrev_b32 v30, 4, v{vPUB}")
    a(f"s_mov_b32 {sCNT}, {BOUND}")
    a("s_waitcnt lgkmcnt(0)")
    a("v_cmp_eq_u32 vcc, 1, v28")
    a("s_cbranch_vccnz L_qgg")
    a("s_mov_b64 exec, 0xff")
    if prepoll:
        a("s_cmp_eq_u32 s27, 2")
        a("s_cbranch_scc1 L_qgi")
    a("L_qgh:")
    a(f"buffer_load_dword v27, v29, {sWS}, s13 offen sc1")
    a("L_qgi:")
    a("s_waitcnt vmcnt(0)")
    a("v_cmp_ne_u32 vcc, 0x01010101, v27")
    a("s_cbranch_vccz L_qgl")
    a(f"s_sub_u32 {sCNT}, {sCNT}, 1")
    a("s_cbranch_scc1 L_qgl")
    a(f"s_cmp_gt_u32 {sCNT}, {BOUND-2}")
    a("s_cbranch_scc1 L_qgh")
    a(f"buffer_load_dword v28, off, {sDBG}, s12 offset:8 sc1")
    a("s_waitcnt vmcnt(0)")
    a("v_cmp_eq_u32 vcc, 0, v28")
    a("s_cbranch_vccnz L_qgh")
    c("the team spans several XCDs: mark again with write-through stores, count the arrivals in d_debug, send again")
    a("L_qgg:")
    exec_all()
    for r in range(4): a(f"v_mov_b32 v{vV+r}, -1")
    a(f"s_mul_i32 s71, {sI}, 768")
    a("s_add_u32 s71, s71, s14")
    a(f"s_mul_i32 s11, {sI}, 2304")
    a("s_add_u32 s11, s11, s14")
    a(f"s_add_u32 s11, s11, {TG}")
    a(f"buffer_store_dwordx4 {vr(vV)}, v31, {sWS}, s11 offen sc1")
    a(f"buffer_store_dwordx4 {vr(vV)}, v31, {sWS}, s11 offen offset:1024 sc1")
    a("s_mov_b64 exec, 0xffff")
    a(f"buffer_store_dwordx4 {vr(vV)}, v31, {sWS}, s11 offen offset:2048 sc1")
    a(f"s_cmp_ge_u32 {sI}, 16")
    a("s_cbranch_scc1 L_qgm")
    a(f"s_lshl_b32 s11, {sI}, 7")
    a("s_add_u32 s11, s11, s14")
    a(f"s_add_u32 s11, s11, {TML}")
    a("s_mov_b64 exec, 0xff")
    a(f"buffer_store_dwordx4 {vr(vV)}, v31, {sWS}, s11 offen sc1")
    a("L_qgm:")
    a("s_mov_b64 exec, 0x00ff00ff")
    for j in range(3):
        a(f"buffer_store_dwordx4 {vr(vV + 64 + 4*j)}, v{vPUB}, {sWS}, s71 offen offset:{256*j} sc1")
    a("s_mov_b32 s11, 1")
    a("s_add_u32 s7, s12, 8")
    a("s_waitcnt vmcnt(0)")
    a("s_atomic_add s11, s[36:37], s7 glc")
    a("s_waitcnt lgkmcnt(0)")
    a("s_mov_b64 exec, 1")
    def body():
        a(f"buffer_load_dword v28, off, {sDBG}, s12 offset:8 sc1")
        a("s_waitcnt vmcnt(0)")
    poll(body, lambda: a("v_cmp_gt_u32 vcc, 32, v28"), 4)
    def gu_store(fl):
        set_exec(0, "0x00ff00ff")
        for j in range(3):
            a(f"buffer_store_dwordx4 {vr(vV + 64 + 4*j)}, v30, {sWS}, s70 offen {fl}")
            if j < 2: a("s_addk_i32 s70, 4096")
    gu_store("sc1")
    a("s_mov_b32 s27, 2")
    a("s_branch L_qgd")
    pad(3, "L_e0")
    a("L_qgl:")
    if not afirst: gu_store("")
    a("s_mov_b32 s27, 1")
    a("L_qgd:")
    stamp(5)
    c("sum the eight q partials of both heads")
    set_exec(-1, "0xffff")
    a(f"s_lshr_b32 s12, {sI}, 4")
    a("s_mul_i32 s12, s12, 6144")
    a("s_add_u32 s11, s14, s12")
    a("s_add_u32 s12, s11, 3072")
    a("s_add_u32 s13, s11, 12288")
    a("s_add_u32 s14, s11, 15360")
    a(f"v_and_b32 v29, 8, {vL}")
    a(f"v_add_u32 v29, v29, v{vPUB}")
    def q_sum(hb):
        for step in (16, 8, 4):
            for j in range(0, step, 2):
                a(f"v_pk_add_f32 {vr(vV+hb+j,2)}, {vr(vV+hb+j,2)}, {vr(vV+hb+step+j,2)}")
        a(f"v_cvt_pk_bf16_f32 v{vV+hb}, v{vV+hb}, v{vV+hb+1}")
        a(f"v_cvt_pk_bf16_f32 v{vV+hb+1}, v{vV+hb+2}, v{vV+hb+3}")
        a(f"ds_write_b64 v29, {vr(vV+hb,2)} offset:{L_Q + 12*hb}")
    def q_flag():
        a("v_mov_b32 v26, 0")
        a("v_mov_b32 v27, s27")
        a("s_waitcnt lgkmcnt(0)")
        a(f"ds_write_b32 v26, v27 offset:{L_FQ}")
    def q_loads(j0, j1):
        for j in range(j0, j1):
            a(f"buffer_load_dwordx4 {vr(vV + 4*j)}, v31, {sWS}, s{11 + j//4} offen offset:{768*(j%4)} sc1")
    if afirst:
        def body():
            q_loads(0, 16)
            a("s_waitcnt vmcnt(8)")
        poll(body, lambda: chk_invalid(range(vV, vV + 32), 28))
        q_sum(0); q_flag()
        a("s_waitcnt vmcnt(0)")
        chk_invalid(range(vV + 32, vV + 64), 28)
        a("s_cbranch_vccz L_qb")
        def body():
            q_loads(8, 16)
            a("s_waitcnt vmcnt(0)")
        poll(body, lambda: chk_invalid(range(vV + 32, vV + 64), 28))
        a("L_qb:")
        q_sum(32)
        a("s_cmp_lg_u32 s27, 1")
        a("s_cbranch_scc1 L_qc")
        gu_store("")
        a("L_qc:")
    else:
        def body():
            q_loads(0, 16)
            a("s_waitcnt vmcnt(0)")
        poll(body, lambda: chk_invalid(range(vV, vV + 64), 28))
        q_sum(0); q_sum(32); q_flag()
    exec_all()
    a("s_branch L_qw")

    a("@@qg_end")
    if stamps:
        a("L_dump:")
        exec_all()
        a("s_waitcnt vmcnt(0)")
        stamp(14)
        a("s_waitcnt lgkmcnt(0)")
        a("v_mov_b32 v4, 0")
        for i in range(15):
            a(f"v_mov_b32 v5, s{72+2*i}")
            a(f"v_cmp_eq_u32 vcc, {i}, v0")
            a("v_cndmask_b32 v4, v4, v5, vcc")
        srd(sWS, 38, "0x10000000")
        a("s_lshl_b32 s7, s2, 3")
        a(f"s_add_u32 s7, s7, {sWAVE}")
        a("s_lshl_b32 s7, s7, 6")
        a(f"s_add_u32 s7, s7, {STAMP_OFF}")
        a("v_lshlrev_b32 v3, 2, v0")
        a("s_mov_b64 exec, 0xffff")
        a(f"buffer_store_dword v4, v3, {sWS}, s7 offen")
    a("L_end:")
    a("s_endpgm")
    A.raw('.section .rodata,"a"')
    A.raw(".p2align 6")
    A.raw(f".amdhsa_kernel {KNAME}")
    A.raw("  .amdhsa_next_free_vgpr 256")
    A.raw("  .amdhsa_next_free_sgpr 102")
    A.raw("  .amdhsa_accum_offset 256")
    A.raw("  .amdhsa_group_segment_fixed_size 0")
    A.raw("  .amdhsa_kernarg_size 96")
    A.raw("  .amdhsa_user_sgpr_count 2")
    A.raw("  .amdhsa_user_sgpr_kernarg_segment_ptr 1")
    A.raw("  .amdhsa_system_sgpr_workgroup_id_x 1")
    A.raw("  .amdhsa_float_denorm_mode_32 3")
    A.raw(".end_amdhsa_kernel")
    it = A.items
    ix = {k: it.index("@@" + k) for k in ("start_end", "early_begin", "late_begin", "late_end", "qg_end")}
    head, stream = it[:ix["start_end"]], it[ix["start_end"]+1:ix["early_begin"]]
    early, late = it[ix["early_begin"]+1:ix["late_begin"]], it[ix["late_begin"]+1:ix["late_end"]]
    qg, rest = it[ix["late_end"]+1:ix["qg_end"]], it[ix["qg_end"]+1:]
    if relay:
        note = early.pop()
        A.items = head + ["s_branch L_e0", note] + late + [".p2align 12"] + stream + qg + early + rest
    else:
        A.items = head + stream + early + [".p2align 12"] + late + qg + rest
    return A.finalize()

if __name__ == "__main__":
    out = sys.argv[1]
    kw = {}
    for x in sys.argv[2:]:
        k, v = x.split("=")
        kw[k] = eval(v) if v[0].isdigit() or v[0] in "([" or v in ("True", "False") else v
    open(out, "w").write(gen(**kw))
```

```python
import sys, os
sys.path.insert(0, os.path.dirname(os.path.abspath(__file__)))
from asmlib import Asm

KNAME = "recurrent_scan__sliding_block_cached__glu_gated_swiglu__decode_kernel"
TQ, TG, TO, TML = 0, 24576, 49152, 98304
TEAM = TML + 2048
CT = 8 * TEAM
CTS = 4352
AM = CT + 8 * CTS
AS = AM + 45 * 128
WS_USED = AM + 96 * 128
STAMP_OFF = 2 << 20
BOUND = 200000
L_MODE, L_FQ, L_CNT, L_LVL, L_Q, L_ROW = 0, 4, 8, 12, 128, 1024
ROWS = 768
L_TS = (L_ROW + 16 * ROWS + 255) // 256 * 256
L_TM = L_TS + 8 * 768
L_W2 = L_TM + 768
L_ST = L_W2 + 8192
LDS_BYTES = L_ST + 1536
DPP = "row_mask:0xf bank_mask:0xf"
LOG2E = "0x3fb8aa3b"
SCALE = "0x3d93cd3a"
INV640 = "0x3acccccd"
EPS = "0x3727c5ac"

sWAVE, sX8, sI = "s3", "s4", "s5"
sK, sV, sWS, sX, sA, sBB, sDBG, sOUT = ("s[40:43]", "s[44:47]", "s[48:51]", "s[52:55]", "s[56:59]", "s[60:63]", "s[64:67]", "s[68:71]")
sCNT = "s15"
OFF = ["s8", "s18", "s19", "s20", "s21", "s22", "s23", "s26"]
vL, vKV, vR, vC = "v0", "v1", "v2", "v3"
vM = [4, 5, 6, 7]
vQ = 8
vS = 20
vK, vV, vD, vA = 32, 128, 224, 236
vPUB = 247

def vr(a, n=4):
    return f"v[{a}:{a+n-1}]"

HEADER = """; Fused decode step: out = x + (attention(LN(x)) @ wo) * silu(swiglu(LN(x))), one launch, 256 workgroups of 8 waves (one per CU).
; The last sum goes through returning f32 atomic adds whose 64-byte request also carries a count; the last adder writes the output."""

def gen(stamps=False, nt="nt", est=False, force_global=False, notail=False,
        b0=8, fill=2, warm=3, fb=7, Wl=(5, 6, 7), th=(11, 21), rd=(8, 11), Wend=None, nend=24):
    A = Asm()
    a = A
    Wmax = max(Wl[2], Wend or 0)
    assert Wmax <= 9
    def c(text):
        a("; " + text)
    def estamp(i):
        if stamps and est:
            a(f"s_memrealtime s[{72+2*i}:{73+2*i}]")
    def stamp(i):
        if stamps and (not est or i in (0, 1, 2, 3, 13, 14)):
            a(f"s_memrealtime s[{72+2*i}:{73+2*i}]")
    def srd(dst, ptr, nbytes):
        d = int(dst[2:dst.index(":")])
        a(f"s_mov_b64 s[{d}:{d+1}], s[{ptr}:{ptr+1}]")
        a(f"s_mov_b32 s{d+2}, {nbytes}")
        a(f"s_mov_b32 s{d+3}, 0x20000")
    def red8(regs, op="add_f32"):
        for ctl in ("quad_perm:[1,0,3,2]", "quad_perm:[2,3,0,1]", "row_half_mirror"):
            for r in regs:
                a(f"v_{op}_dpp v{r}, v{r}, v{r} {ctl} {DPP}")
    def red_hi(r, t, op="add"):
        a(f"v_{op}_f32_dpp v{r}, v{r}, v{r} row_ror:8 {DPP}")
        a(f"v_mov_b32 v{t}, v{r}")
        a(f"v_permlane16_swap_b32 v{r}, v{t}")
        a(f"v_{op}_f32 v{r}, v{r}, v{t}")
        a(f"v_mov_b32 v{t}, v{r}")
        a(f"v_permlane32_swap_b32 v{r}, v{t}")
        a(f"v_{op}_f32 v{r}, v{r}, v{t}")
    def rnd1(r):
        a(f"v_cvt_pk_bf16_f32 v{r}, v{r}, v{r}")
        a(f"v_lshlrev_b32 v{r}, 16, v{r}")
    def rnd2(r0, r1):
        a(f"v_cvt_pk_bf16_f32 v{r1}, v{r0}, v{r1}")
        a(f"v_lshlrev_b32 v{r0}, 16, v{r1}")
        a(f"v_and_b32 v{r1}, 0xffff0000, v{r1}")
    def cvtA(dst, val):
        a(f"v_cvt_pk_bf16_f32 v{dst+3}, v{val}, v{val}")
    def andA(dst):
        for w in range(4):
            a(f"v_and_b32 v{dst+w}, v{vM[w]}, v{dst+3}")
    def mkA(dst, val):
        cvtA(dst, val); andA(dst)
    def mfma(d, aa, b, first=False):
        a(f"v_mfma_f32_16x16x32_bf16 {vr(d)}, {vr(aa)}, {vr(b)}, {'0' if first else vr(d)}")
    def lane_consts():
        a(f"v_and_b32 v28, 1, {vC}")
        a("v_lshlrev_b32 v28, 4, v28")
        a("v_mov_b32 v29, 0xffff")
        a("v_lshlrev_b32 v28, v28, v29")
        a(f"v_lshrrev_b32 v29, 1, {vC}")
        for w in range(4):
            a(f"v_cmp_eq_u32 vcc, {w}, v29")
            a(f"v_cndmask_b32 v{vM[w]}, 0, v28, vcc")
        a(f"v_lshrrev_b32 v28, 4, {vL}")
        a("v_lshlrev_b32 v28, 7, v28")
        a(f"v_lshl_add_u32 v{vPUB}, {vC}, 4, v28")
    lab = [0]
    def poll(body, check, sleep=0):
        lab[0] += 1
        n = lab[0]
        mark = len(A.items)
        a(f"s_mov_b32 {sCNT}, {BOUND}")
        a(f"Lpoll{n}:")
        body()
        if A.items[mark + 2].startswith("ds_read"): A.items[mark] = f"s_mov_b32 {sCNT}, 0x4000000"
        check()
        a(f"s_cbranch_vccz Lpdone{n}")
        if sleep: a(f"s_sleep {sleep}")
        a(f"s_sub_u32 {sCNT}, {sCNT}, 1")
        a(f"s_cbranch_scc0 Lpoll{n}")
        a(f"Lpdone{n}:")
    def chk_invalid(regs, t):
        regs = list(regs)
        a(f"v_max3_u32 v{t}, v{regs[0]}, v{regs[1]}, v{regs[2]}")
        i = 3
        while i < len(regs):
            if i + 1 < len(regs):
                a(f"v_max3_u32 v{t}, v{t}, v{regs[i]}, v{regs[i+1]}"); i += 2
            else:
                a(f"v_max_u32 v{t}, v{t}, v{regs[i]}"); i += 1
        a(f"v_cmp_eq_u32 vcc, -1, v{t}")
    def silu(r, t):
        a(f"v_mul_f32 v{t}, 0xbfb8aa3b, v{r}")
        a(f"v_exp_f32 v{t}, v{t}")
        a(f"v_add_f32 v{t}, 1.0, v{t}")
        a(f"v_rcp_f32 v{t}, v{t}")
        a(f"v_mul_f32 v{r}, v{r}, v{t}")
    def comb2(d, e):
        for r in range(4): a(f"v_permlane32_swap_b32 v{d+r}, v{e+r}")
        for r in range(4): a(f"v_add_f32_dpp v{d+r}, v{e+r}, v{d+r} row_ror:8 {DPP}")
    def set_exec(lo, hi):
        a(f"s_mov_b32 exec_lo, {lo}")
        a(f"s_mov_b32 exec_hi, {hi}")
    def exec_all():
        a("s_mov_b64 exec, -1")
    def pad(k, ret, inline=False):
        if not (warm & (1 if k <= 3 else 2)): return
        if inline: a(f"s_branch L_po{k}")
        a(f"L_pad{k}:")
        a(f"s_branch {ret}")
        if inline: a(f"L_po{k}:")
    def rank_issue(off):
        a("s_mov_b32 exec_hi, 0")
        a(f"s_add_u32 s6, s13, {off}")
        a(f"buffer_load_ubyte v243, {vL}, {sWS}, s6 offen sc1")
        a("s_mov_b32 exec_lo, 1")
        a(f"s_add_u32 s6, s6, {sI}")
        a("v_mov_b32 v241, 1")
        a(f"buffer_store_byte v241, off, {sWS}, s6")
        exec_all()
    def rank_use(wait=True):
        if wait: a("s_waitcnt vmcnt(1)")
        a("v_cmp_ne_u32 s[6:7], 0, v243")
        a("v_mov_b32 v243, 0")
        a("s_bcnt1_i32_b32 s6, s6")
        a(f"s_cmp_ge_u32 s6, {th[1]}")
        a("s_cselect_b32 s7, 2, 0")
        a(f"s_cmp_lt_u32 s6, {th[0]}")
        a("s_cselect_b32 s7, 1, s7")
        a("v_mov_b32 v241, s7")
        a(f"ds_write_b32 v243, v241 offset:{L_LVL}")
    def dots(gs):
        for i in range(12):
            for g in gs:
                a(f"v_dot2c_f32_bf16 v{vS+g}, v{vK + 12*g + i}, v{vQ+i}")
    def score_post(gs):
        red8([vS + g for g in gs])
        for j in range(0, len(gs), 2): rnd2(vS + gs[j], vS + gs[j+1])
        for g in gs: a(f"v_mul_f32 v{vS+g}, {SCALE}, v{vS+g}")
        for j in range(0, len(gs), 2): rnd2(vS + gs[j], vS + gs[j+1])
    def end_wave():
        if stamps: a("s_branch L_dump")
        else: a("s_endpgm")
    def zero_stamps():
        if stamps and not est:
            for j in range(1, 15): a(f"s_mov_b64 s[{72+2*j}:{73+2*j}], 0")

    A.raw(f"; @launch grid=(256,1,1) block=(512,1,1) lds={LDS_BYTES}")
    A.raw(HEADER)
    A.raw('.amdgcn_target "amdgcn-amd-amdhsa--gfx950"')
    A.raw(".text")
    A.raw(f".globl {KNAME}")
    A.raw(".p2align 12")
    A.raw(".p2align 8")
    A.raw(f".type {KNAME},@function")
    a(f"{KNAME}:")
    stamp(0)
    a("s_load_dwordx2 s[40:41], s[0:1], 8")
    a("s_load_dwordx2 s[44:45], s[0:1], 16")
    a("s_load_dwordx16 s[16:31], s[0:1], 0")
    a("s_load_dwordx8 s[32:39], s[0:1], 64")
    a("v_lshrrev_b32 v1, 6, v0")
    a("s_cmpk_ge_u32 s2, 256")
    a("s_cbranch_scc1 L_end")
    a(f"v_readfirstlane_b32 {sWAVE}, v1")
    a("v_and_b32 v0, 63, v0")
    a(f"v_lshrrev_b32 {vR}, 3, {vL}")
    a(f"v_and_b32 {vC}, 7, {vL}")
    a(f"s_and_b32 {sX8}, s2, 7")
    a(f"s_lshr_b32 {sI}, s2, 3")
    a("s_lshr_b32 s6, s2, 7")
    a(f"s_lshl1_add_u32 s8, {sX8}, s6")
    a(f"s_and_b32 s9, {sI}, 15")
    a("s_mov_b32 s42, 402653184")
    a("s_mov_b32 s43, 0x20000")
    a(f"s_cmp_eq_u32 {sWAVE}, 7")
    a("s_cbranch_scc1 L_w7")
    a(f"s_cmp_ge_u32 {sWAVE}, 4")
    a("s_cbranch_scc1 L_late")

    c("---- waves 0-3 at the start: members 0-29 fetch their tile of w2 into LDS")
    zero_stamps()
    a(f"s_cmp_ge_u32 {sI}, 30")
    a("s_cbranch_scc1 L_ann")
    a(f"s_mul_i32 s13, {sI}, 52")
    a("s_lshr_b32 s13, s13, 8")
    a("s_mul_i32 s12, s13, 5")
    a(f"s_sub_u32 s12, {sI}, s12")
    a("s_lshl_b32 s12, s12, 8")
    a(f"s_mul_i32 s10, {sX8}, 6")
    a("s_add_u32 s10, s10, s13")
    a("s_lshr_b32 s10, s10, 1")
    a("s_and_b32 s13, s13, 1")
    a("s_lshl4_add_u32 s10, s10, s13")
    a(f"s_lshl2_add_u32 s10, s10, {sWAVE}")
    a("s_mulk_i32 s10, 1280")
    a("s_add_u32 s10, s10, s12")
    a(f"v_mul_u32_u24 v30, 10240, {vR}")
    a(f"v_lshl_add_u32 v30, {vC}, 4, v30")
    a("s_mov_b32 s62, 1966080")
    a("s_mov_b32 s63, s43")
    a(f"s_lshl_b32 s13, {sWAVE}, 11")
    a(f"s_add_u32 m0, s13, {L_W2}")
    a("s_waitcnt lgkmcnt(0)")
    a("s_mov_b64 s[60:61], s[32:33]")
    a(f"buffer_load_dwordx4 v30, {sBB}, s10 offen {nt} lds")
    a(f"s_add_u32 m0, s13, {L_W2 + 896}")
    a(f"buffer_load_dwordx4 v30, {sBB}, s10 offen offset:128 {nt} lds")
    a("L_e3:")
    if warm & 1:
        for k in (1, 2, 3):
            a(f"s_cmp_eq_u32 {sWAVE}, {k}")
            a(f"s_cbranch_scc1 L_pad{k}")
    a("s_branch L_e0")
    c("wave 0 of member 31 zeroes the team's roll-call line, then announces its XCD through d_debug")
    a("L_ann:")
    a(f"s_sub_u32 s10, {sI}, {sWAVE}")
    a("s_cmp_lg_u32 s10, 31")
    a("s_cbranch_scc1 L_e3")
    a("s_setprio 3")
    a("s_getreg_b32 s62, hwreg(HW_REG_XCC_ID, 0, 4)")
    a(f"s_mul_i32 s13, {sX8}, {CTS}")
    a(f"s_add_u32 s13, s13, {CT}")
    a(f"s_lshl_b32 s12, {sX8}, 5")
    a("s_add_u32 s62, s62, 1")
    a(f"v_lshlrev_b32 v28, 3, {vL}")
    a("v_mov_b32 v30, 0")
    a("v_mov_b32 v31, 0")
    a(f"s_mov_b32 s50, {WS_USED}")
    a("s_mov_b32 s51, s43")
    a("s_waitcnt lgkmcnt(0)")
    a("s_mov_b64 s[48:49], s[38:39]")
    a(f"buffer_store_dwordx2 v[30:31], v28, {sWS}, s13 offen")
    a("s_waitcnt vmcnt(0)")
    a("s_atomic_add s62, s[36:37], s12")
    a("s_setprio 0")
    a("@@start_end")
    a("L_e0:")
    estamp(4)
    lane_consts()
    a("s_barrier")
    stamp(13)

    c("---- K pass, scores, V pass: 8 groups of 8 keys per wave; waves 4-7 run it one barrier behind waves 0-3")
    a("L_stream:")
    a(f"s_and_b32 s11, {sWAVE}, 3")
    a("s_mul_i32 s8, s8, 12582912")
    a("s_lshl2_add_u32 s11, s9, s11")
    a(f"s_add_u32 s8, s8, {28672*384}")
    a("s_mulk_i32 s11, 3072")
    a(f"v_mul_u32_u24 {vKV}, 384, {vR}")
    a("s_add_u32 s8, s8, s11")
    a(f"v_lshl_add_u32 {vKV}, {vC}, 4, {vKV}")
    a(f"s_mov_b32 s10, 208896")
    a("s_mov_b64 s[46:47], s[42:43]")
    a("s_waitcnt lgkmcnt(0)")
    def kv_load(which, g):
        base, s = (vK, sK) if which == "k" else (vV, sV)
        for i in range(3):
            n = 3*g + i
            if fb and (n == Wl[0] or n in rd):
                a("s_waitcnt lgkmcnt(0)")
                a("v_readfirstlane_b32 s12, v242")
                a("s_cmp_lg_u32 s12, 2")
                a("s_cselect_b64 vcc, -1, 0")
            if fb and Wl[0] <= n < nend:
                k = f"{which}{n}"
                a("s_cmp_eq_u32 s12, 1")
                a(f"s_cbranch_scc0 Lw{k}a")
                a(f"s_waitcnt vmcnt({Wl[0]-1})")
                a(f"Lw{k}a:")
                a(f"s_cbranch_vccz Lw{k}b")
                a(f"s_waitcnt vmcnt({Wl[1]-1})")
                a(f"Lw{k}b:")
                if n >= Wl[2]: a(f"s_waitcnt vmcnt({Wl[2]-1})")
            elif n >= Wl[1]: a(f"s_waitcnt vmcnt({(Wend if n >= nend else Wl[1])-1})")
            a(f"buffer_load_dwordx4 {vr(base + 12*g + 4*i)}, {vKV}, {s}, {OFF[g]} offen offset:{i*128} {nt}")
            if fb and (n == 0 or n + 1 in rd):
                a("v_mov_b32 v242, 0")
                a(f"ds_read_b32 v242, v242 offset:{L_LVL}")
            if which == "k" and n == 4:
                srd(sWS, 38, WS_USED)
                a(f"s_mul_i32 s13, {sX8}, {CTS}")
                a(f"s_add_u32 s13, s13, {CT}")
                a(f"v_lshlrev_b32 v29, 2, {vC}")
            if fill and which == "v":
                for j in range(n*fill, min(8, (n+1)*fill)): mkA(vK + 4*j, vS + j)
        if which == "k" and g < 7:
            a(f"s_cmp_eq_u32 s9, {15-g}")
            a("s_cselect_b32 s11, 12288, s10")
            a(f"s_add_u32 {OFF[g+1]}, {OFF[g]}, s11")
    for g in range(8):
        kv_load("k", g)
        if g == 6:
            a("v_mov_b32 v31, 0")
            a(f"ds_read_b32 v27, v31 offset:{L_MODE}")
    stamp(6)
    a(f"s_cmp_eq_u32 {sWAVE}, 0")
    a("s_waitcnt lgkmcnt(0)")
    a("v_readfirstlane_b32 s27, v27")
    a("s_cbranch_scc0 L_x1")
    a("s_mov_b64 exec, 0xff")
    a(f"buffer_load_dword v27, v29, {sWS}, s13 offen sc1")
    exec_all()
    a("L_x1:")
    def who1():
        a(f"s_lshl2_add_u32 s7, {sWAVE}, s27")
        if fb & 3 == 3: a("s_and_b32 s7, s7, 15")
        a(f"s_cmp_lg_u32 s7, {26 if fb & 3 == 2 else 10}")
    if fb & 3:
        who1()
        a("s_cbranch_scc1 L_x2")
        a(f"s_lshl3_add_u32 s7, {sWAVE}, 16")
        rank_issue("s7")
        a("L_x2:")
        a(f"s_cmp_eq_u32 {sWAVE}, 0")
    a("s_barrier")
    a("s_cbranch_scc1 L_qg")
    if fb & 3:
        who1()
        a("s_cbranch_scc1 L_qw")
        rank_use()
    a("L_qw:")
    a("v_mov_b32 v31, 0")
    def body():
        a(f"ds_read_b32 v28, v31 offset:{L_FQ}")
        a("s_waitcnt lgkmcnt(0)")
    poll(body, lambda: a("v_cmp_eq_u32 vcc, 0, v28"), 2)
    stamp(1)
    c("scores (bf16-rounded like the reference), the wave's max, p = exp(s - max), row sum")
    a("v_readfirstlane_b32 s27, v28")
    a(f"s_lshr_b32 s7, {sWAVE}, 2")
    a("s_mul_i32 s11, s7, 384")
    a(f"v_lshl_add_u32 v28, {vC}, 4, s11")
    for i in range(3):
        a(f"ds_read_b128 {vr(vQ + 4*i)}, v28 offset:{L_Q + 128*i}")
    a(f"s_lshl_b32 s7, s7, 5")
    a(f"s_add_u32 s7, s7, {sI}")
    a(f"s_and_b32 s11, {sWAVE}, 3")
    a("s_lshl2_add_u32 s7, s7, s11")
    a(f"s_mul_i32 s11, {sX8}, {TEAM}")
    a("s_lshl3_add_u32 s7, s7, s11")
    a(f"s_add_u32 s12, s7, {TML}")
    for j in range(8):
        a(f"v_mov_b32 v{vS+j}, 0")
    a("s_waitcnt vmcnt(0) lgkmcnt(0)")
    dots(range(8)); score_post(list(range(8)))
    a(f"v_max3_f32 v244, v{vS}, v{vS+1}, v{vS+2}")
    a(f"v_max3_f32 v244, v244, v{vS+3}, v{vS+4}")
    a(f"v_max3_f32 v244, v244, v{vS+5}, v{vS+6}")
    a(f"v_max_f32 v244, v244, v{vS+7}")
    red_hi(244, 28, "max")
    pad(1, "L_e0", True)
    for j in range(8): a(f"v_sub_f32 v{vS+j}, v{vS+j}, v244")
    for j in range(8): a(f"v_mul_f32 v{vS+j}, {LOG2E}, v{vS+j}")
    for j in range(8): a(f"v_exp_f32 v{vS+j}, v{vS+j}")
    a(f"v_add_f32 v9, v{vS}, v{vS+1}")
    for j in range(2, 8): a(f"v_add_f32 v9, v9, v{vS+j}")
    red_hi(9, 28, "add")
    a(f"s_mul_i32 s7, {sWAVE}, {2*ROWS}")
    a(f"v_lshrrev_b32 v29, 5, {vL}")
    a(f"v_mul_u32_u24 v29, {ROWS}, v29")
    a("v_add_u32 v29, s7, v29")
    a(f"v_and_b32 v28, 16, {vL}")
    a(f"v_lshl_add_u32 v28, {vC}, 5, v28")
    a("v_add_u32 v30, v28, v29")
    a(f"v_mul_f32 v8, {LOG2E}, v244")
    a("s_cmp_eq_u32 s27, 1")
    a("s_mov_b64 exec, 1")
    a("s_cbranch_scc0 L_mlg")
    a(f"buffer_store_dwordx2 v[8:9], off, {sWS}, s12")
    a("L_mld:")
    exec_all()
    if not fill:
        for g in range(8): mkA(vK + 4*g, vS + g)
    stamp(2)
    a("s_barrier")
    def pv(g, wait):
        for i in range(3):
            k = 23 - 3*g - i
            if wait and k < Wmax: a(f"s_waitcnt vmcnt({k})")
            mfma(vD + 4*i, vK + 4*g, vV + 12*g + 4*i, g == 0)
    for g in range(8):
        kv_load("v", g)
        if 3 <= g < 7: pv(g - 3, False)
    stamp(7)
    if fb & 4:
        a(f"s_lshl2_add_u32 s7, {sWAVE}, s27")
        a("s_cmp_lg_u32 s7, 9")
        a("s_cbranch_scc1 L_x4")
        rank_issue(96)
        a("L_x4:")
        a("s_cmp_lg_u32 s7, 9")
    a("s_barrier")
    if fb & 4:
        a("s_cbranch_scc1 L_x3")
        rank_use()
        a("L_x3:")
    stamp(8)
    for g in range(4, 8): pv(g, True)
    stamp(9)
    set_exec("0x00ff00ff", "0xff00ff00")
    a(f"s_cmp_lt_u32 {sWAVE}, 4")
    for i in range(3):
        a(f"ds_write_b128 v30, {vr(vD + 4*i)} offset:{L_ROW + 256*i}")
    a("s_cbranch_scc1 L_early")
    a("s_waitcnt lgkmcnt(0)")
    a("s_barrier")
    stamp(10)
    if stamps and not notail:
        a(f"s_cmp_ge_u32 {sI}, 30")
        a("s_cbranch_scc1 L_done")
        a("s_barrier")
        a("s_barrier")
    end_wave()
    a("L_mlg:")
    a(f"buffer_store_dwordx2 v[8:9], off, {sWS}, s12 sc1")
    a("s_branch L_mld")

    a("@@early_begin")
    c("---- waves 0-3 after their pass: members 0-29 own a tile of 128 wo rows (32 w2 rows) x 128 columns")
    a(".p2align 12")
    pad(4, "L_lq2")
    a("L_early:")
    a("s_mov_b64 exec, 1")
    a("v_mov_b32 v28, 0")
    a("v_mov_b32 v29, 1")
    a("s_waitcnt lgkmcnt(0)")
    a(f"ds_add_u32 v28, v29 offset:{L_CNT}")
    exec_all()
    a("s_mov_b32 s14, s27")
    srd(sA, 24, 7864320)
    srd(sX, 16, 1280)
    srd(sOUT, 34, 1280)
    a(f"v_lshlrev_b32 v31, 4, {vL}")
    a(f"s_mul_i32 s12, {sX8}, {TEAM}")
    a(f"s_add_u32 s12, s12, {TO}")
    a(f"s_mul_i32 s13, {sI}, 52")
    a("s_lshr_b32 s13, s13, 8")
    a("s_mul_i32 s7, s13, 5")
    a(f"s_sub_u32 s7, {sI}, s7")
    a(f"s_mul_i32 s30, s7, {9*128}")
    a(f"s_add_u32 s30, s30, {AM}")
    a(f"s_add_u32 s31, s30, {AS-AM}")
    a(f"s_lshl2_add_u32 s6, s13, {sWAVE}")
    a("s_lshl_b32 s7, s7, 8")
    a(f"v_lshlrev_b32 v250, 4, {vC}")
    a(f"v_mul_u32_u24 v248, 5120, {vR}")
    a("v_add_u32 v248, v248, v250")
    a(f"v_lshl_add_u32 v249, {vR}, 8, v250")
    a("s_lshl_b32 s11, s6, 11")
    a("s_add_u32 s11, s11, s12")
    a(f"s_mul_i32 s8, {sX8}, 12")
    a("s_add_u32 s8, s8, s6")
    a("s_cmp_ge_u32 s6, 12")
    a("s_cselect_b32 s10, 84, 0")
    a("s_add_u32 s8, s8, s10")
    a("s_mul_i32 s8, s8, 40960")
    a("s_add_u32 s8, s8, s7")
    a(f"s_mul_i32 s6, {sWAVE}, 1536")
    a(f"v_lshrrev_b32 v28, 5, {vL}")
    a("v_mul_u32_u24 v28, 768, v28")
    a("v_add_u32 v28, s6, v28")
    a("v_mov_b32 v29, 0x3e000000")
    a(f"ds_write_b32 v28, v29 offset:{L_TS+512}")
    a(f"v_and_b32 v29, 0xff, v{vPUB}")
    a("v_add_u32 v246, v28, v29")
    c("lane map of the finishing step: segment = 3*wave + (lane>>4), n = 15*segment + (lane&15), lane 15 of a row counts")
    a(f"s_mul_i32 s6, {sWAVE}, 3")
    a(f"v_lshrrev_b32 v28, 4, {vL}")
    a("v_add_u32 v28, s6, v28")
    a(f"v_and_b32 v29, 15, {vL}")
    a("v_mad_u32_u24 v252, v28, 15, v29")
    a("v_lshlrev_b32 v253, 2, v29")
    a("v_min_u32 v28, 8, v28")
    a("v_lshl_add_u32 v253, v28, 7, v253")
    a("v_cmp_gt_u32 vcc, 0x80, v252")
    a("s_and_b32 s26, vcc_lo, 0x7fff7fff")
    a("s_and_b32 s27, vcc_hi, 0x7fff")
    a("s_or_b32 s28, s26, 0x80008000")
    a("s_or_b32 s29, s27, 0x8000")
    a("v_cmp_eq_u32 vcc, 15, v29")
    a("v_lshrrev_b32 v28, 6, v252")
    a("v_bfe_u32 v29, v252, 2, 3")
    a("v_lshl_add_u32 v28, v28, 3, v29")
    a("v_bfe_u32 v29, v252, 5, 1")
    a("v_lshl_add_u32 v28, v28, 1, v29")
    a("v_and_b32 v29, 3, v252")
    a("v_lshl_add_u32 v28, v28, 2, v29")
    a("v_lshl_add_u32 v254, v28, 1, s7")
    a("v_mov_b32 v28, 0x80")
    a("v_cndmask_b32 v252, v252, v28, vcc")
    a("v_lshlrev_b32 v252, 2, v252")
    a(f"s_cmp_ge_u32 {sWAVE}, 2")
    a("s_cbranch_scc1 L_e2")
    c("wave 1 hands over the partial of waves 0-3 now, wave 0 that of waves 4-7 later; both scale by exp(max_w - max) / sum")
    a(f"s_xor_b32 s6, {sWAVE}, 1")
    a(f"s_lshr_b32 s10, {sI}, 4")
    a("s_lshl1_add_u32 s6, s6, s10")
    a("s_lshl_b32 s10, s6, 9")
    a("s_add_u32 s10, s10, s12")
    a(f"s_add_u32 s10, s10, {TML-TO}")
    a("s_mul_i32 s6, s6, 12288")
    a("s_lshl4_add_u32 s6, s9, s6")
    a("s_add_u32 s6, s6, s12")
    a(f"v_lshlrev_b32 v30, 3, {vL}")
    def body():
        a(f"buffer_load_dwordx2 v[8:9], v30, {sWS}, s10 offen sc1")
        a("s_waitcnt vmcnt(0)")
        a("v_max_u32 v28, v8, v9")
    poll(body, lambda: a("v_cmp_eq_u32 vcc, -1, v28"), 2)
    a("v_mov_b32 v10, v8")
    red8([10], "max_f32"); red_hi(10, 28, "max")
    a("v_sub_f32 v8, v8, v10")
    a("v_exp_f32 v8, v8")
    a("v_mul_f32 v9, v9, v8")
    red8([9]); red_hi(9, 28)
    a("v_rcp_f32 v9, v9")
    a("s_lshl_b32 s10, s9, 2")
    a(f"v_lshlrev_b32 v30, 8, {vL}")
    a("v_mul_f32 v8, v8, v9")
    for w in range(4):
        a(f"v_readlane_b32 s{60+2*w}, v8, s10")
        if w < 3: a("s_add_u32 s10, s10, 1")
    def rows_sum(r0):
        for j in range(8):
            a(f"ds_read_b128 {vr(160 + 4*j)}, v31 offset:{L_ROW + ROWS*(r0+j)}")
        for w in range(4):
            a(f"s_waitcnt lgkmcnt({0 if stamps else 6-2*w})")
            for h in (0, 2):
                a(f"v_pk_add_f32 {vr(160+8*w+h,2)}, {vr(160+8*w+h,2)}, {vr(164+8*w+h,2)}")
            for h in (0, 2):
                if w == 0: a(f"v_pk_mul_f32 {vr(156+h,2)}, {vr(160+h,2)}, s[60:61] op_sel_hi:[1,0]")
                else: a(f"v_pk_fma_f32 {vr(156+h,2)}, {vr(160+8*w+h,2)}, s[{60+2*w}:{61+2*w}], {vr(156+h,2)} op_sel_hi:[1,0,1]")
    a(f"s_cmp_eq_u32 {sWAVE}, 0")
    a("s_cbranch_scc1 L_e2")
    a("v_mov_b32 v29, 0")
    def body():
        a(f"ds_read_b32 v28, v29 offset:{L_CNT}")
        a("s_waitcnt lgkmcnt(0)")
    poll(body, lambda: a("v_cmp_gt_u32 vcc, 4, v28"), 2)
    a("s_mov_b32 exec_hi, 0xffff")
    rows_sum(0)
    a("s_cmp_eq_u32 s14, 1")
    a("s_cbranch_scc0 L_pub1g")
    a(f"buffer_store_dwordx4 v[156:159], v30, {sWS}, s6 offen")
    a("L_pub1d:")
    exec_all()
    a("L_e2:")
    a(f"s_cmp_ge_u32 {sI}, 30")
    a("s_cbranch_scc1 L_notile")
    a(f"s_cmp_eq_u32 {sWAVE}, 3")
    a("s_cbranch_scc1 L_mlp2")
    a(f"buffer_load_ushort v255, v254, {sX}, 0 offen")
    a("s_mov_b64 exec, s[28:29]")
    a("s_waitcnt vmcnt(0) lgkmcnt(0)")
    a("v_lshlrev_b32 v255, 16, v255")
    a("s_barrier")
    stamp(3)
    if not notail:
        a(f"ds_read_b32 v28, v252 offset:{L_TM}")
        a("s_waitcnt lgkmcnt(0)")
        a(f"buffer_atomic_add_f32 v28, v253, {sWS}, s30 offen")
    exec_all()
    a("L_ea:")
    for k in range(8):
        rb, li = k // 2, k % 2
        a(f"buffer_load_dwordx4 {vr(vK + 8*rb + 4*li)}, v248, {sA}, s8 offen offset:{rb*1280 + li*128} {nt}")
    a(f"s_cmp_eq_u32 {sWAVE}, 0")
    a("s_cbranch_scc1 L_pub")
    a("s_barrier")
    stamp(4)
    a("s_branch L_og")

    pad(5, "L_lq2")
    a("L_pub:")
    a("s_mov_b32 exec_hi, 0xffff")
    a("s_cmp_eq_u32 s14, 1")
    a("s_barrier")
    stamp(4)
    rows_sum(8)
    if not notail:
        a("s_cbranch_scc0 L_pubg")
        a(f"buffer_store_dwordx4 v[156:159], v30, {sWS}, s6 offen")
    a("L_pubd:")
    exec_all()
    a(f"s_cmp_ge_u32 {sI}, 30")
    a("s_cbranch_scc1 L_done")
    c("gather the sixteen partials of 32 attention outputs, add, multiply with the wo rows")
    a("L_og:")
    a(f"s_mov_b32 {sCNT}, {BOUND}")
    if notail:
        a("s_waitcnt vmcnt(0)")
        stamp(11)
        end_wave()
    a("s_barrier")
    stamp(10)
    a("L_poll:")
    a(f"buffer_load_dwordx4 v[8:11], v249, {sWS}, s11 offen sc1")
    a(f"buffer_load_dwordx4 v[12:15], v249, {sWS}, s11 offen offset:128 sc1")
    a("s_waitcnt vmcnt(0)")
    a("v_pk_add_f32 v[16:17], v[8:9], v[12:13]")
    a("v_pk_add_f32 v[18:19], v[10:11], v[14:15]")
    a("v_max3_u32 v28, v8, v9, v10")
    a(f"v_add_f32_dpp v16, v16, v16 quad_perm:[1,0,3,2] {DPP}")
    a("v_max3_u32 v29, v11, v12, v13")
    a(f"v_add_f32_dpp v17, v17, v17 quad_perm:[1,0,3,2] {DPP}")
    a("v_max3_u32 v28, v28, v14, v15")
    a(f"v_add_f32_dpp v16, v16, v16 quad_perm:[2,3,0,1] {DPP}")
    a("v_max_u32 v28, v28, v29")
    a(f"v_add_f32_dpp v17, v17, v17 quad_perm:[2,3,0,1] {DPP}")
    a("v_cmp_eq_u32 vcc, -1, v28")
    a(f"v_add_f32_dpp v16, v16, v16 row_half_mirror {DPP}")
    a("s_cbranch_vccnz L_retry")
    a("L_got:")
    stamp(11)
    cvtA(128, 16); andA(128)
    a(f"v_add_f32_dpp v17, v17, v17 row_half_mirror {DPP}")
    a(f"v_add_f32_dpp v18, v18, v18 quad_perm:[1,0,3,2] {DPP}")
    mfma(vD, 128, vK, True)
    cvtA(132, 17)
    a(f"v_add_f32_dpp v18, v18, v18 quad_perm:[2,3,0,1] {DPP}")
    mfma(vD + 4, 128, vK + 4, True)
    andA(132)
    a(f"v_add_f32_dpp v18, v18, v18 row_half_mirror {DPP}")
    a(f"v_add_f32_dpp v19, v19, v19 quad_perm:[1,0,3,2] {DPP}")
    mfma(vD, 132, vK + 8)
    cvtA(136, 18)
    a(f"v_add_f32_dpp v19, v19, v19 quad_perm:[2,3,0,1] {DPP}")
    mfma(vD + 4, 132, vK + 12)
    andA(136)
    a(f"v_add_f32_dpp v19, v19, v19 row_half_mirror {DPP}")
    a(f"buffer_load_dword v15, v253, {sWS}, s30 offen sc1")
    mfma(vD, 136, vK + 16)
    cvtA(140, 19)
    andA(140)
    mfma(vD + 4, 136, vK + 20)
    a(f"s_cmp_eq_u32 {sWAVE}, 3")
    mfma(vD, 140, vK + 24)
    mfma(vD + 4, 140, vK + 28)
    set_exec("0x00ff00ff", "0xff00ff00")
    a(f"ds_write_b128 v246, {vr(vD)} offset:{L_TS}")
    a(f"ds_write_b128 v246, {vr(vD+4)} offset:{L_TS+256}")
    a("s_mov_b64 exec, s[28:29]")
    a("s_waitcnt lgkmcnt(0)")
    a("s_barrier")
    a("s_cbranch_scc1 L_done")
    c("add this tile to the chip-wide sums; whoever adds last finishes the columns")
    for j in range(4):
        a(f"ds_read2st64_b32 {vr(16+2*j,2)}, v252 offset0:{L_TS//256+6*j} offset1:{L_TS//256+6*j+3}")
    a("s_waitcnt lgkmcnt(0)")
    a("v_pk_add_f32 v[16:17], v[16:17], v[18:19]")
    a("v_pk_add_f32 v[20:21], v[20:21], v[22:23]")
    a("v_pk_add_f32 v[16:17], v[16:17], v[20:21]")
    a("v_add_f32 v9, v16, v17")
    a(f"buffer_atomic_add_f32 v9, v253, {sWS}, s31 offen sc0")
    stamp(12)
    a("v_add_f32 v8, v16, v17")
    a(f"s_mov_b32 {sCNT}, {BOUND}")
    a("s_waitcnt vmcnt(1)")
    a("L_g:")
    a(f"v_mov_b32_dpp v16, v15 row_newbcast:15 {DPP}")
    rnd1(15)
    a("v_cmp_neq_f32 vcc, 0x42400000, v16")
    silu(15, 17)
    a("s_mov_b64 s[6:7], vcc")
    rnd1(15)
    a("s_waitcnt vmcnt(0)")
    a("v_add_f32 v10, v8, v9")
    a("v_cvt_pk_bf16_f32 v11, v10, v10")
    a("v_lshlrev_b32 v11, 16, v11")
    a(f"v_mov_b32_dpp v16, v10 row_newbcast:15 {DPP}")
    a("v_mul_f32 v11, v11, v15")
    a("v_cmp_eq_f32 vcc, 0x42400000, v16")
    rnd1(11)
    a("s_and_b64 s[6:7], s[6:7], vcc")
    a("v_add_f32 v11, v11, v255")
    a("s_cbranch_scc1 L_gslow")
    a("L_gok:")
    a("s_and_b64 exec, vcc, s[26:27]")
    a("v_cvt_pk_bf16_f32 v11, v11, v11")
    a("s_cbranch_scc0 L_done")
    a(f"buffer_store_short v11, v254, {sOUT}, 0 offen")
    stamp(13)
    a("L_done:")
    end_wave()
    a("L_retry:")
    a(f"s_sub_u32 {sCNT}, {sCNT}, 1")
    a("s_cbranch_scc0 L_poll")
    a("s_branch L_got")
    a("L_gslow:")
    a(f"s_sub_u32 {sCNT}, {sCNT}, 1")
    a("s_cbranch_scc1 L_gok")
    a(f"buffer_load_dword v15, v253, {sWS}, s30 offen sc1")
    a("s_waitcnt vmcnt(0)")
    a("s_branch L_g")
    a("L_pubg:")
    a(f"buffer_store_dwordx4 v[156:159], v30, {sWS}, s6 offen sc1")
    a("s_branch L_pubd")
    a("L_pub1g:")
    a(f"buffer_store_dwordx4 v[156:159], v30, {sWS}, s6 offen sc1")
    a("s_branch L_pub1d")
    a("L_notile:")
    a(f"s_cmp_eq_u32 {sWAVE}, 0")
    a("s_waitcnt lgkmcnt(0)")
    a("s_barrier")
    a("s_cbranch_scc1 L_pub")
    end_wave()

    c("wave 3: second MLP stage for F rows 192*team + 64*(part>>1) + 4*(part&1) + 8*r + rb")
    pad(6, "L_lq2")
    a("L_mlp2:")
    srd(sDBG, 36, 256)
    a("s_lshl_b32 s13, s13, 11")
    a("s_add_u32 s13, s13, s12")
    a(f"s_sub_u32 s13, s13, {TO-TG}")
    a("s_add_u32 s6, s13, 12288")
    def body():
        for j in range(4):
            a(f"buffer_load_dwordx4 {vr(128+4*j)}, v249, {sWS}, {'s13' if j < 2 else 's6'} offen offset:{128*(j%2)} sc1")
        a(f"buffer_load_dword v29, off, {sDBG}, 0 offset:4 sc1")
        a("s_waitcnt vmcnt(0)")
    def chk():
        a("v_cmp_gt_u32 vcc, 8, v29")
        a("v_cndmask_b32 v29, 0, -1, vcc")
        chk_invalid(list(range(128, 144)) + [29], 28)
    poll(body, chk, 4)
    for k in range(8):
        a(f"ds_read_b128 {vr(64 + 4*k)}, v31 offset:{L_W2 + 1024*k}")
    for j in (0, 2):
        a(f"v_pk_add_f32 {vr(128+j,2)}, {vr(128+j,2)}, {vr(132+j,2)}")
        a(f"v_pk_add_f32 {vr(132+j,2)}, {vr(136+j,2)}, {vr(140+j,2)}")
    red8(range(128, 136))
    for j in range(128, 136, 2): rnd2(j, j + 1)
    for j in range(4): silu(128 + j, 136 + j)
    for j in (128, 130): rnd2(j, j + 1)
    for j in range(4): a(f"v_mul_f32 v{128+j}, v{128+j}, v{132+j}")
    for j in range(4): mkA(144 + 4*j, 128 + j)
    a("v_mov_b32 v28, 0")
    a("v_mov_b32 v29, 1.0")
    a(f"ds_write_b32 v28, v29 offset:{L_TM+512}")
    a("s_waitcnt lgkmcnt(0)")
    for rb in range(4):
        for li in range(2):
            mfma(vD + 4*li, 144 + 4*rb, 64 + 8*rb + 4*li, rb == 0)
    comb2(vD, vD + 4)
    set_exec("0x00ff00ff", "0x00ff00ff")
    a(f"ds_write_b128 v{vPUB}, {vr(vD)} offset:{L_TM}")
    exec_all()
    stamp(5)
    a("s_waitcnt lgkmcnt(0)")
    a("s_barrier")
    stamp(3)
    a("s_branch L_ea")

    c("---- waves 4-6 at the start: mark this member's share of the team area, LayerNorm, 80 rows of wq and 40 rows of w1 or w3")
    a("@@late_begin")
    a("L_late:")
    estamp(4)
    zero_stamps()
    a("v_mov_b32 v31, 0")
    a(f"v_lshlrev_b32 v30, 2, {vC}")
    a("ds_write_b32 v30, v31")
    a("s_add_u32 s8, s8, 16")
    a(f"s_and_b32 s7, {sI}, 7")
    a(f"s_bfe_u32 s10, {sI}, 0x10003")
    a("s_lshl4_add_u32 s6, s6, s10")
    a(f"s_lshl1_add_u32 s6, {sX8}, s6")
    a(f"s_sub_u32 s13, {sWAVE}, 4")
    a(f"s_mul_i32 s14, {sX8}, {TEAM}")
    a(f"s_mul_i32 s10, {sI}, 768")
    a("s_mul_i32 s11, s10, 3")
    a("s_lshl_b32 s12, s13, 10")
    a("s_add_u32 s11, s11, s12")
    a(f"s_addk_i32 s11, {TG-1024}")
    a(f"s_lshl1_add_u32 s12, s10, {TG+1280}")
    a("s_cmp_eq_u32 s13, 0")
    a("s_cselect_b32 s10, s10, s11")
    a("s_cselect_b32 s12, s12, 0")
    a("s_add_u32 s70, s10, s14")
    a(f"s_lshl_b32 s71, {sI}, 7")
    a("s_add_u32 s71, s71, s14")
    a(f"s_add_u32 s71, s71, {TML}")
    a(f"v_cmp_lt_u32 vcc, 47, {vL}")
    a("v_mov_b32 v24, s12")
    for r in range(4): a(f"v_mov_b32 v{140+r}, -1")
    a("v_cndmask_b32 v24, 0, v24, vcc")
    a(f"v_lshl_add_u32 v25, {vL}, 4, v24")
    a(f"v_mul_u32_u24 v26, 20, {vL}")
    a(f"v_mul_u32_u24 v27, 20, {vR}")
    a(f"v_mul_u32_u24 v30, 122880, {vR}")
    a(f"v_lshl_add_u32 v30, {vC}, 4, v30")
    a("s_mul_i32 s10, s7, 160")
    a("s_mul_i32 s11, s7, 983040")
    a("s_mul_i32 s12, s6, 384")
    a("s_lshl_b32 s13, s13, 7")
    a("s_add_u32 s11, s11, s12")
    a("s_add_u32 s11, s11, s13")
    a("s_movk_i32 s12, 12288")
    a(f"s_mov_b32 s50, {WS_USED}")
    a("s_mov_b32 s51, 0x20000")
    a("s_mov_b32 s54, 1280")
    a("s_mov_b32 s55, 0x20000")
    a("s_mov_b32 s58, 7864320")
    a("s_mov_b32 s59, 0x20000")
    a(f"s_lshl4_add_u32 s60, {sWAVE}, {sI}")
    a("s_cmpk_lt_u32 s60, 80")
    a("s_waitcnt lgkmcnt(0)")
    a("s_mov_b64 s[48:49], s[38:39]")
    a("s_mov_b64 s[52:53], s[16:17]")
    a("s_mov_b64 s[56:57], s[22:23]")
    estamp(5)
    a(f"buffer_store_dwordx4 v[140:143], v25, {sWS}, s70 offen")
    a("s_cbranch_scc0 L_l1")
    a("s_mov_b64 exec, 0xff")
    a(f"buffer_store_dwordx4 v[140:143], v25, {sWS}, s71 offen")
    exec_all()
    a("L_l1:")
    a(f"buffer_load_dwordx4 v[128:131], v26, {sX}, 0 offen")
    a(f"buffer_load_dword v132, v26, {sX}, 0 offen offset:16")
    a(f"buffer_load_dwordx4 v[134:137], v27, {sX}, s10 offen")
    a(f"buffer_load_dword v138, v27, {sX}, s10 offen offset:16")
    for rb in range(10):
        a(f"buffer_load_dwordx4 {vr(vK + 4*rb)}, v30, {sA}, s11 offen {nt}")
        if rb < 9: a("s_add_u32 s11, s11, s12")
    estamp(6)
    a(f"s_cmp_ge_u32 {sI}, 16")
    a("s_cselect_b64 s[60:61], s[30:31], s[28:29]")
    a("s_mov_b32 s62, 1966080")
    a("s_mov_b32 s63, 0x20000")
    a(f"v_mul_u32_u24 v30, 30720, {vR}")
    a(f"v_lshl_add_u32 v30, {vC}, 4, v30")
    a("s_mul_i32 s11, s7, 245760")
    a(f"s_bfe_u32 s10, {sI}, 0x10003")
    a("s_mul_i32 s12, s10, 15360")
    a("s_add_u32 s11, s11, s12")
    a(f"s_mul_i32 s12, {sX8}, 384")
    a("s_add_u32 s11, s11, s12")
    a("s_add_u32 s11, s11, s13")
    for rb in range(5):
        a(f"buffer_load_dwordx4 {vr(vK + 40 + 4*rb)}, v30, {sBB}, s11 offen offset:{(rb%2)*3072} {nt}")
        if rb % 2 == 1: a("s_addk_i32 s11, 6144")
    estamp(7)
    lane_consts()
    a(f"s_mul_i32 s11, {sI}, 768")
    a("s_lshl1_add_u32 s11, s13, s11")
    a(f"v_add_u32 v30, s11, v{vPUB}")
    a("s_lshl_b32 s11, s13, 2")
    a(f"v_add_u32 v24, s11, v{vPUB}")
    a("s_waitcnt vmcnt(15)")
    stamp(3)
    for i in range(5):
        a(f"v_lshlrev_b32 v{140+2*i}, 16, v{128+i}")
        a(f"v_and_b32 v{141+2*i}, 0xffff0000, v{128+i}")
    a("v_add_f32 v160, v140, v141")
    for i in range(2, 10): a(f"v_add_f32 v160, v160, v{140+i}")
    red8([160]); red_hi(160, 161)
    a(f"v_mul_f32 v160, {INV640}, v160")
    for i in range(10): a(f"v_sub_f32 v{140+i}, v{140+i}, v160")
    a("v_mul_f32 v162, v140, v140")
    for i in range(1, 10): a(f"v_fmac_f32 v162, v{140+i}, v{140+i}")
    red8([162]); red_hi(162, 161)
    a(f"v_mul_f32 v162, {INV640}, v162")
    rnd2(160, 162)
    a(f"v_add_f32 v162, {EPS}, v162")
    rnd1(162)
    a("v_sqrt_f32 v162, v162")
    rnd1(162)
    a("v_rcp_f32 v162, v162")
    a(f"s_waitcnt vmcnt({b0})")
    a("s_barrier")
    for i in range(5):
        a(f"v_lshlrev_b32 v{150+2*i}, 16, v{134+i}")
        a(f"v_and_b32 v{151+2*i}, 0xffff0000, v{134+i}")
    for i in range(10): a(f"v_sub_f32 v{150+i}, v{150+i}, v160")
    for i in range(0, 10, 2): rnd2(150 + i, 151 + i)
    for i in range(10): a(f"v_mul_f32 v{150+i}, v{150+i}, v162")
    for i in range(10): mkA(164 + 4*i, 150 + i)
    estamp(8)
    a("s_waitcnt vmcnt(5)")
    estamp(9)
    for rb in range(10):
        mfma(vD, 164 + 4*rb, vK + 4*rb, rb == 0)
    a("s_cmp_lg_u32 s10, 0")
    a("s_waitcnt vmcnt(0)")
    a("s_cbranch_scc1 L_mh1")
    for rb in range(5):
        mfma(vD + 4, 164 + 4*rb, vK + 40 + 4*rb, rb == 0)
    a("s_branch L_mh2")
    a("L_mh1:")
    for rb in range(5):
        mfma(vD + 4, 184 + 4*rb, vK + 40 + 4*rb, rb == 0)
    a("L_mh2:")
    stamp(4)
    comb2(vD, vD + 4)
    set_exec("0x00ff00ff", "0x00ff00ff")
    a(f"ds_write_b128 v24, {vr(vD)} offset:{L_ST}")
    a("s_mov_b32 exec_hi, 0")
    a(f"buffer_store_dwordx4 {vr(vD)}, v30, {sWS}, s14 offen")
    a("L_lq:")
    if warm & 2:
        for k in (4, 5, 6):
            a(f"s_cmp_eq_u32 {sWAVE}, {k}")
            a(f"s_cbranch_scc1 L_pad{k}")
    a("L_lq2:")
    exec_all()
    a("s_waitcnt lgkmcnt(0)")
    a("s_barrier")
    a("s_branch L_stream")

    c("---- wave 7 at the start")
    a("L_w7:")
    zero_stamps()
    a("s_add_u32 s8, s8, 16")
    lane_consts()
    a("s_waitcnt lgkmcnt(0)")
    srd(sWS, 38, WS_USED)
    a(f"s_lshl_b32 s12, {sX8}, 5")
    a("v_mov_b32 v31, 0")
    a("s_barrier")
    a("s_load_dword s11, s[36:37], s12")
    c("answer the roll call if this workgroup runs on the XCD that member 31 announced")
    srd(sDBG, 36, 256)
    a("s_getreg_b32 s10, hwreg(HW_REG_XCC_ID, 0, 4)")
    a(f"s_mul_i32 s13, {sX8}, {CTS}")
    a(f"s_add_u32 s13, s13, {CT}")
    a("s_add_u32 s10, s10, 1")
    a("s_mov_b64 exec, 1")
    a("v_mov_b32 v29, 1")
    a("s_waitcnt lgkmcnt(0)")
    a("s_cmp_lg_u32 s11, 0")
    a("s_cbranch_scc1 L_r1")
    def body():
        a(f"buffer_load_dword v28, off, {sDBG}, s12 sc1")
        a("s_waitcnt vmcnt(0)")
    poll(body, lambda: a("v_cmp_eq_u32 vcc, 0, v28"), 8)
    a("v_readfirstlane_b32 s11, v28")
    a("L_r1:")
    a(f"s_cmp_eq_u32 s11, {'0' if force_global else 's10'}")
    a("s_cbranch_scc1 L_r2")
    a(f"ds_write_b32 v31, v29 offset:{L_MODE}")
    a("s_branch L_r3")
    a("L_r2:")
    a("v_mov_b32 v28, 2")
    a(f"ds_write_b32 v31, v28 offset:{L_MODE}")
    a(f"s_add_u32 s13, s13, {sI}")
    a(f"buffer_store_byte v29, off, {sWS}, s13")
    a("L_r3:")
    stamp(5)
    a(f"s_cmp_lg_u32 {sI}, 31")
    a("s_cbranch_scc1 L_lq")
    c("member 31 zeroes 12 accumulator segments and counts its team as ready")
    exec_all()
    for r in range(4): a(f"v_mov_b32 v{144+r}, 0")
    a(f"v_lshrrev_b32 v28, 2, {vL}")
    a("v_lshlrev_b32 v28, 2, v28")
    a(f"v_add_lshl_u32 v28, v28, {vL}, 4")
    a(f"s_mul_i32 s11, {sX8}, {12*128}")
    a(f"s_add_u32 s11, s11, {AM}")
    a("s_mov_b32 exec_hi, 0xffff")
    a(f"buffer_store_dwordx4 v[144:147], v28, {sWS}, s11 offen sc1")
    a("s_mov_b32 s6, 1")
    a("s_waitcnt vmcnt(0)")
    a("s_atomic_add s6, s[36:37], 4")
    a("s_branch L_lq")

    a("@@late_end")
    c("---- wave 0 after its K pass: wait until all 32 members have answered or someone has called it off")
    pad(2, "L_e0")
    a("L_qg:")
    srd(sDBG, 36, 256)
    a("v_mov_b32 v31, 0")
    a(f"ds_read_b32 v28, v31 offset:{L_MODE}")
    for j in range(3):
        a(f"ds_read_b128 {vr(vV + 64 + 4*j)}, v{vPUB} offset:{L_ST + 512*j}")
    a(f"s_lshl_b32 s12, {sX8}, 5")
    a(f"s_mul_i32 s14, {sX8}, {TEAM}")
    a(f"v_lshlrev_b32 v31, 4, {vL}")
    a(f"s_lshr_b32 s11, {sI}, 4")
    a("s_mul_i32 s11, s11, 12288")
    a(f"s_and_b32 s7, {sI}, 15")
    a("s_lshl4_add_u32 s11, s7, s11")
    a("s_add_u32 s11, s11, s14")
    a(f"s_add_u32 s70, s11, {TG-4096}")
    a(f"v_lshlrev_b32 v30, 4, v{vPUB}")
    a(f"s_mov_b32 {sCNT}, {BOUND}")
    a("s_waitcnt lgkmcnt(0)")
    a("v_cmp_eq_u32 vcc, 1, v28")
    a("s_cbranch_vccnz L_qgg")
    a("s_mov_b64 exec, 0xff")
    a("s_cmp_eq_u32 s27, 2")
    a("s_cbranch_scc1 L_qgi")
    a("L_qgh:")
    a(f"buffer_load_dword v27, v29, {sWS}, s13 offen sc1")
    a("L_qgi:")
    a("s_waitcnt vmcnt(0)")
    a("v_cmp_ne_u32 vcc, 0x01010101, v27")
    a("s_cbranch_vccz L_qgl")
    a(f"s_sub_u32 {sCNT}, {sCNT}, 1")
    a("s_cbranch_scc1 L_qgl")
    a(f"s_cmp_gt_u32 {sCNT}, {BOUND-2}")
    a("s_cbranch_scc1 L_qgh")
    a(f"buffer_load_dword v28, off, {sDBG}, s12 offset:8 sc1")
    a("s_waitcnt vmcnt(0)")
    a("v_cmp_eq_u32 vcc, 0, v28")
    a("s_cbranch_vccnz L_qgh")
    c("the team spans several XCDs: mark again with write-through stores, count the arrivals in d_debug, send again")
    a("L_qgg:")
    exec_all()
    for r in range(4): a(f"v_mov_b32 v{vV+r}, -1")
    a(f"s_mul_i32 s71, {sI}, 768")
    a("s_add_u32 s71, s71, s14")
    a(f"s_mul_i32 s11, {sI}, 2304")
    a("s_add_u32 s11, s11, s14")
    a(f"s_add_u32 s11, s11, {TG}")
    a(f"buffer_store_dwordx4 {vr(vV)}, v31, {sWS}, s11 offen sc1")
    a(f"buffer_store_dwordx4 {vr(vV)}, v31, {sWS}, s11 offen offset:1024 sc1")
    a("s_mov_b64 exec, 0xffff")
    a(f"buffer_store_dwordx4 {vr(vV)}, v31, {sWS}, s11 offen offset:2048 sc1")
    a(f"s_cmp_ge_u32 {sI}, 16")
    a("s_cbranch_scc1 L_qgm")
    a(f"s_lshl_b32 s11, {sI}, 7")
    a("s_add_u32 s11, s11, s14")
    a(f"s_add_u32 s11, s11, {TML}")
    a("s_mov_b64 exec, 0xff")
    a(f"buffer_store_dwordx4 {vr(vV)}, v31, {sWS}, s11 offen sc1")
    a("L_qgm:")
    a("s_mov_b64 exec, 0x00ff00ff")
    for j in range(3):
        a(f"buffer_store_dwordx4 {vr(vV + 64 + 4*j)}, v{vPUB}, {sWS}, s71 offen offset:{256*j} sc1")
    a("s_mov_b32 s11, 1")
    a("s_add_u32 s7, s12, 8")
    a("s_waitcnt vmcnt(0)")
    a("s_atomic_add s11, s[36:37], s7 glc")
    a("s_waitcnt lgkmcnt(0)")
    a("s_mov_b64 exec, 1")
    def body():
        a(f"buffer_load_dword v28, off, {sDBG}, s12 offset:8 sc1")
        a("s_waitcnt vmcnt(0)")
    poll(body, lambda: a("v_cmp_gt_u32 vcc, 32, v28"), 4)
    def gu_store(fl):
        set_exec(0, "0x00ff00ff")
        for j in range(3):
            a(f"buffer_store_dwordx4 {vr(vV + 64 + 4*j)}, v30, {sWS}, s70 offen {fl}")
            if j < 2: a("s_addk_i32 s70, 4096")
    gu_store("sc1")
    a("s_mov_b32 s27, 2")
    a("s_branch L_qgd")
    pad(3, "L_e0")
    a("L_qgl:")
    gu_store("")
    a("s_mov_b32 s27, 1")
    a("L_qgd:")
    stamp(5)
    c("sum the eight q partials of both heads")
    set_exec(-1, "0xffff")
    a(f"s_lshr_b32 s12, {sI}, 4")
    a("s_mul_i32 s12, s12, 6144")
    a("s_add_u32 s11, s14, s12")
    a("s_add_u32 s12, s11, 3072")
    a("s_add_u32 s13, s11, 12288")
    a("s_add_u32 s14, s11, 15360")
    a(f"v_and_b32 v29, 8, {vL}")
    a(f"v_add_u32 v29, v29, v{vPUB}")
    def q_sum(hb):
        for step in (16, 8, 4):
            for j in range(0, step, 2):
                a(f"v_pk_add_f32 {vr(vV+hb+j,2)}, {vr(vV+hb+j,2)}, {vr(vV+hb+step+j,2)}")
        a(f"v_cvt_pk_bf16_f32 v{vV+hb}, v{vV+hb}, v{vV+hb+1}")
        a(f"v_cvt_pk_bf16_f32 v{vV+hb+1}, v{vV+hb+2}, v{vV+hb+3}")
        a(f"ds_write_b64 v29, {vr(vV+hb,2)} offset:{L_Q + 12*hb}")
    def q_flag():
        a("v_mov_b32 v26, 0")
        a("v_mov_b32 v27, s27")
        a("s_waitcnt lgkmcnt(0)")
        a(f"ds_write_b32 v26, v27 offset:{L_FQ}")
    def q_loads(j0, j1):
        for j in range(j0, j1):
            a(f"buffer_load_dwordx4 {vr(vV + 4*j)}, v31, {sWS}, s{11 + j//4} offen offset:{768*(j%4)} sc1")
    def body():
        q_loads(0, 16)
        a("s_waitcnt vmcnt(0)")
    poll(body, lambda: chk_invalid(range(vV, vV + 64), 28))
    q_sum(0); q_sum(32); q_flag()
    exec_all()
    a("s_branch L_qw")

    a("@@qg_end")
    if stamps:
        a("L_dump:")
        exec_all()
        a("s_waitcnt vmcnt(0)")
        stamp(14)
        a("s_waitcnt lgkmcnt(0)")
        a("v_mov_b32 v4, 0")
        for i in range(15):
            a(f"v_mov_b32 v5, s{72+2*i}")
            a(f"v_cmp_eq_u32 vcc, {i}, v0")
            a("v_cndmask_b32 v4, v4, v5, vcc")
        srd(sWS, 38, "0x10000000")
        a("s_lshl_b32 s7, s2, 3")
        a(f"s_add_u32 s7, s7, {sWAVE}")
        a("s_lshl_b32 s7, s7, 6")
        a(f"s_add_u32 s7, s7, {STAMP_OFF}")
        a("v_lshlrev_b32 v3, 2, v0")
        a("s_mov_b64 exec, 0xffff")
        a(f"buffer_store_dword v4, v3, {sWS}, s7 offen")
    a("L_end:")
    a("s_endpgm")
    A.raw('.section .rodata,"a"')
    A.raw(".p2align 6")
    A.raw(f".amdhsa_kernel {KNAME}")
    A.raw("  .amdhsa_next_free_vgpr 256")
    A.raw("  .amdhsa_next_free_sgpr 102")
    A.raw("  .amdhsa_accum_offset 256")
    A.raw("  .amdhsa_group_segment_fixed_size 0")
    A.raw("  .amdhsa_kernarg_size 96")
    A.raw("  .amdhsa_user_sgpr_count 2")
    A.raw("  .amdhsa_user_sgpr_kernarg_segment_ptr 1")
    A.raw("  .amdhsa_system_sgpr_workgroup_id_x 1")
    A.raw("  .amdhsa_float_denorm_mode_32 3")
    A.raw(".end_amdhsa_kernel")
    it = A.items
    ix = {k: it.index("@@" + k) for k in ("start_end", "early_begin", "late_begin", "late_end", "qg_end")}
    head, stream = it[:ix["start_end"]], it[ix["start_end"]+1:ix["early_begin"]]
    early, late = it[ix["early_begin"]+1:ix["late_begin"]], it[ix["late_begin"]+1:ix["late_end"]]
    qg, rest = it[ix["late_end"]+1:ix["qg_end"]], it[ix["qg_end"]+1:]
    note = early.pop()
    A.items = head + ["s_branch L_e0", note] + late + [".p2align 12"] + stream + [".p2align 12"] + qg + early + rest
    return A.finalize()

if __name__ == "__main__":
    out = sys.argv[1]
    kw = {}
    for x in sys.argv[2:]:
        k, v = x.split("=")
        kw[k] = eval(v) if v[0].isdigit() or v[0] in "([" or v in ("True", "False") else v
    open(out, "w").write(gen(**kw))
```

```python
import sys, os
sys.path.insert(0, os.path.dirname(os.path.abspath(__file__)))
from asmlib import Asm

KNAME = "recurrent_scan__sliding_block_cached__glu_gated_swiglu__decode_kernel"
SLOT, SO = 3072, 1536
TML = 32 * SLOT
TEAM = TML + 2048
CT = 8 * TEAM
CTS = 4352
AM = CT + 8 * CTS
AS = AM + 45 * 128
WS_USED = AM + 96 * 128
STAMP_OFF = 2 << 20
BOUND = 200000
L_MODE, L_FQ, L_CNT, L_LVL, L_Q, L_ROW = 0, 4, 8, 12, 128, 1024
ROWS = 768
L_TS = (L_ROW + 16 * ROWS + 255) // 256 * 256
L_TM = L_TS + 8 * 768
L_W2 = L_TM + 768
L_ST = L_W2 + 8192
LDS_BYTES = L_ST + 1536
DPP = "row_mask:0xf bank_mask:0xf"
LOG2E = "0x3fb8aa3b"
SCALE = "0x3d93cd3a"
INV640 = "0x3acccccd"
EPS = "0x3727c5ac"

sWAVE, sX8, sI = "s3", "s4", "s5"
sK, sV, sWS, sX, sA, sBB, sDBG, sOUT = ("s[40:43]", "s[44:47]", "s[48:51]", "s[52:55]", "s[56:59]", "s[60:63]", "s[64:67]", "s[68:71]")
sCNT = "s15"
OFF = ["s8", "s18", "s19", "s20", "s21", "s22", "s23", "s26"]
vL, vKV, vR, vC = "v0", "v1", "v2", "v3"
vM = [4, 5, 6, 7]
vQ = 8
vS = 20
vK, vV, vD, vA = 32, 128, 224, 236
vPUB = 247

def vr(a, n=4):
    return f"v[{a}:{a+n-1}]"

HEADER = """; out = x + (attention(LN(x)) @ wo) * silu(swiglu(LN(x))) in one launch: 256 workgroups of 8 waves, one per CU.
; The last sums go through returning f32 atomic adds whose 64-byte request also carries a count; the last adder writes the output."""

def gen(stamps=False, nt="nt", est=False, force_global=False, notail=False,
        b0=8, fill=2, warm=3, fb=7, Wl=(5, 6, 7), th=(11, 21), rd=(8, 11), Wend=None, nend=24, pp=True, mpat=0, amat=0):
    A = Asm()
    a = A
    Wmax = max(Wl[2], Wend or 0)
    assert Wmax <= 9
    def c(text):
        a("; " + text)
    def estamp(i):
        if stamps and est:
            a(f"s_memrealtime s[{72+2*i}:{73+2*i}]")
    def stamp(i):
        if stamps and (not est or i in (0, 1, 2, 3, 13, 14)):
            a(f"s_memrealtime s[{72+2*i}:{73+2*i}]")
    def srd(dst, ptr, nbytes):
        d = int(dst[2:dst.index(":")])
        a(f"s_mov_b64 s[{d}:{d+1}], s[{ptr}:{ptr+1}]")
        a(f"s_mov_b32 s{d+2}, {nbytes}")
        a(f"s_mov_b32 s{d+3}, 0x20000")
    def red8(regs, op="add_f32"):
        for ctl in ("quad_perm:[1,0,3,2]", "quad_perm:[2,3,0,1]", "row_half_mirror"):
            for r in regs:
                a(f"v_{op}_dpp v{r}, v{r}, v{r} {ctl} {DPP}")
    def red_hi(r, t, op="add"):
        a(f"v_{op}_f32_dpp v{r}, v{r}, v{r} row_ror:8 {DPP}")
        a(f"v_mov_b32 v{t}, v{r}")
        a(f"v_permlane16_swap_b32 v{r}, v{t}")
        a(f"v_{op}_f32 v{r}, v{r}, v{t}")
        a(f"v_mov_b32 v{t}, v{r}")
        a(f"v_permlane32_swap_b32 v{r}, v{t}")
        a(f"v_{op}_f32 v{r}, v{r}, v{t}")
    def rnd1(r):
        a(f"v_cvt_pk_bf16_f32 v{r}, v{r}, v{r}")
        a(f"v_lshlrev_b32 v{r}, 16, v{r}")
    def rnd2(r0, r1):
        a(f"v_cvt_pk_bf16_f32 v{r1}, v{r0}, v{r1}")
        a(f"v_lshlrev_b32 v{r0}, 16, v{r1}")
        a(f"v_and_b32 v{r1}, 0xffff0000, v{r1}")
    def cvtA(dst, val):
        a(f"v_cvt_pk_bf16_f32 v{dst+3}, v{val}, v{val}")
    def andA(dst):
        for w in range(4):
            a(f"v_and_b32 v{dst+w}, v{vM[w]}, v{dst+3}")
    def mkA(dst, val):
        cvtA(dst, val); andA(dst)
    def mfma(d, aa, b, first=False):
        a(f"v_mfma_f32_16x16x32_bf16 {vr(d)}, {vr(aa)}, {vr(b)}, {'0' if first else vr(d)}")
    def lane_consts():
        a(f"v_and_b32 v28, 1, {vC}")
        a("v_lshlrev_b32 v28, 4, v28")
        a("v_mov_b32 v29, 0xffff")
        a("v_lshlrev_b32 v28, v28, v29")
        a(f"v_lshrrev_b32 v29, 1, {vC}")
        for w in range(4):
            a(f"v_cmp_eq_u32 vcc, {w}, v29")
            a(f"v_cndmask_b32 v{vM[w]}, 0, v28, vcc")
        a(f"v_lshrrev_b32 v28, 4, {vL}")
        a("v_lshlrev_b32 v28, 7, v28")
        a(f"v_lshl_add_u32 v{vPUB}, {vC}, 4, v28")
    lab = [0]
    def poll(body, check, sleep=0):
        lab[0] += 1
        n = lab[0]
        mark = len(A.items)
        a(f"s_mov_b32 {sCNT}, {BOUND}")
        a(f"Lpoll{n}:")
        body()
        if A.items[mark + 2].startswith("ds_read"): A.items[mark] = f"s_mov_b32 {sCNT}, 0x4000000"
        check()
        a(f"s_cbranch_vccz Lpdone{n}")
        if sleep: a(f"s_sleep {sleep}")
        a(f"s_sub_u32 {sCNT}, {sCNT}, 1")
        a(f"s_cbranch_scc0 Lpoll{n}")
        a(f"Lpdone{n}:")
    def chk_invalid(regs, t):
        regs = list(regs)
        a(f"v_max3_u32 v{t}, v{regs[0]}, v{regs[1]}, v{regs[2]}")
        i = 3
        while i < len(regs):
            if i + 1 < len(regs):
                a(f"v_max3_u32 v{t}, v{t}, v{regs[i]}, v{regs[i+1]}"); i += 2
            else:
                a(f"v_max_u32 v{t}, v{t}, v{regs[i]}"); i += 1
        a(f"v_cmp_eq_u32 vcc, -1, v{t}")
    def silu(r, t):
        a(f"v_mul_f32 v{t}, 0xbfb8aa3b, v{r}")
        a(f"v_exp_f32 v{t}, v{t}")
        a(f"v_add_f32 v{t}, 1.0, v{t}")
        a(f"v_rcp_f32 v{t}, v{t}")
        a(f"v_mul_f32 v{r}, v{r}, v{t}")
    def comb2(d, e):
        for r in range(4): a(f"v_permlane32_swap_b32 v{d+r}, v{e+r}")
        for r in range(4): a(f"v_add_f32_dpp v{d+r}, v{e+r}, v{d+r} row_ror:8 {DPP}")
    def set_exec(lo, hi):
        a(f"s_mov_b32 exec_lo, {lo}")
        a(f"s_mov_b32 exec_hi, {hi}")
    def exec_all():
        a("s_mov_b64 exec, -1")
    def pad(k, ret, inline=False):
        if not (warm & (1 if k <= 3 else 2)): return
        if inline: a(f"s_branch L_po{k}")
        c("an idle wave passes through here early so that the instruction cache holds the next KiB when it is needed")
        a(f"L_pad{k}:")
        a(f"s_branch {ret}")
        if inline: a(f"L_po{k}:")
    def rank_issue(off):
        c("how many members of the team have passed this point already; then say that this one has")
        a("s_mov_b32 exec_hi, 0")
        a(f"s_add_u32 s6, s13, {off}")
        a(f"buffer_load_ubyte v243, {vL}, {sWS}, s6 offen sc1")
        a("s_mov_b32 exec_lo, 1")
        a(f"s_add_u32 s6, s6, {sI}")
        a("v_mov_b32 v241, 1")
        a(f"buffer_store_byte v241, off, {sWS}, s6")
        exec_all()
    def rank_use(wait=True):
        c("level 1: ahead (fewer loads in flight), 0: in the middle, 2: behind (more loads in flight)")
        if wait: a("s_waitcnt vmcnt(1)")
        a("v_cmp_ne_u32 s[6:7], 0, v243")
        a("v_mov_b32 v243, 0")
        a("s_bcnt1_i32_b32 s6, s6")
        a(f"s_cmp_ge_u32 s6, {th[1]}")
        a("s_cselect_b32 s7, 2, 0")
        a(f"s_cmp_lt_u32 s6, {th[0]}")
        a("s_cselect_b32 s7, 1, s7")
        a("v_mov_b32 v241, s7")
        a(f"ds_write_b32 v243, v241 offset:{L_LVL}")
    def andA4(dst, src, k, ws=range(4)):
        for w in ws:
            a(f"v_and_b32_dpp v{dst+w}, v{src}, v{vM[w]} quad_perm:[{k},{k},{k},{k}] {DPP}")
    def dots(gs):
        for i in range(12):
            for g in gs:
                a(f"v_dot2c_f32_bf16 v{vS+g}, v{vK + 12*g + i}, v{vQ+i}")
    def score_post(gs):
        red8([vS + g for g in gs])
        for j in range(0, len(gs), 2): rnd2(vS + gs[j], vS + gs[j+1])
        for g in gs: a(f"v_mul_f32 v{vS+g}, {SCALE}, v{vS+g}")
        for j in range(0, len(gs), 2): rnd2(vS + gs[j], vS + gs[j+1])
    def end_wave():
        if stamps: a("s_branch L_dump")
        else: a("s_endpgm")
    def zero_stamps():
        if stamps and not est:
            for j in range(1, 15): a(f"s_mov_b64 s[{72+2*j}:{73+2*j}], 0")

    A.raw(f"; @launch grid=(256,1,1) block=(512,1,1) lds={LDS_BYTES}")
    A.raw(HEADER)
    A.raw('.amdgcn_target "amdgcn-amd-amdhsa--gfx950"')
    A.raw(".text")
    A.raw(f".globl {KNAME}")
    A.raw(".p2align 12")
    A.raw(".p2align 8")
    A.raw(f".type {KNAME},@function")
    a(f"{KNAME}:")
    stamp(0)
    a("s_load_dwordx2 s[40:41], s[0:1], 8")
    a("s_load_dwordx2 s[44:45], s[0:1], 16")
    a("s_load_dwordx16 s[16:31], s[0:1], 0")
    a("s_load_dwordx8 s[32:39], s[0:1], 64")
    a("v_lshrrev_b32 v1, 6, v0")
    a("s_cmpk_ge_u32 s2, 256")
    a("s_cbranch_scc1 L_end")
    a(f"v_readfirstlane_b32 {sWAVE}, v1")
    a("v_and_b32 v0, 63, v0")
    a(f"v_lshrrev_b32 {vR}, 3, {vL}")
    a(f"v_and_b32 {vC}, 7, {vL}")
    a(f"s_and_b32 {sX8}, s2, 7")
    a(f"s_lshr_b32 {sI}, s2, 3")
    a("s_lshr_b32 s6, s2, 7")
    a(f"s_lshl1_add_u32 s8, {sX8}, s6")
    a(f"s_and_b32 s9, {sI}, 15    ; slice")
    a("s_mov_b32 s42, 402653184")
    a("s_mov_b32 s43, 0x20000")
    a(f"s_cmp_eq_u32 {sWAVE}, 7")
    a("s_cbranch_scc1 L_w7")
    a(f"s_cmp_ge_u32 {sWAVE}, 4")
    a("s_cbranch_scc1 L_late")

    c("---- waves 0-3 at the start: members 0-29 fetch their tile of w2 into LDS")
    zero_stamps()
    a(f"s_cmp_ge_u32 {sI}, 30")
    a("s_cbranch_scc1 L_ann")
    a(f"s_mul_i32 s13, {sI}, 52")
    a("s_lshr_b32 s13, s13, 8")
    a("s_mul_i32 s12, s13, 5")
    a(f"s_sub_u32 s12, {sI}, s12")
    a("s_lshl_b32 s12, s12, 8")
    a(f"s_mul_i32 s10, {sX8}, 6")
    a("s_add_u32 s10, s10, s13")
    a("s_lshr_b32 s10, s10, 1")
    a("s_and_b32 s13, s13, 1")
    a("s_lshl4_add_u32 s10, s10, s13")
    a(f"s_lshl1_add_u32 s10, {sWAVE}, s10")
    a("s_mulk_i32 s10, 5120")
    a("s_add_u32 s10, s10, s12")
    a(f"v_and_b32 v30, 8, {vL}")
    a(f"v_lshrrev_b32 v29, 4, {vL}")
    a("v_lshl_add_u32 v30, v30, 2, v29")
    a("v_mul_u32_u24 v30, 1280, v30")
    a(f"v_lshl_add_u32 v30, {vC}, 4, v30")
    a("s_mov_b32 s62, 1966080")
    a("s_mov_b32 s63, s43")
    a(f"s_lshl_b32 s13, {sWAVE}, 11")
    a(f"s_add_u32 m0, s13, {L_W2}")
    a("s_waitcnt lgkmcnt(0)")
    a("s_mov_b64 s[60:61], s[32:33]")
    a(f"buffer_load_dwordx4 v30, {sBB}, s10 offen {nt} lds")
    a(f"s_add_u32 m0, s13, {L_W2 + 896}")
    a(f"buffer_load_dwordx4 v30, {sBB}, s10 offen offset:128 {nt} lds")
    a("L_e3:")
    if warm & 1:
        for k in (1, 2, 3):
            a(f"s_cmp_eq_u32 {sWAVE}, {k}")
            a(f"s_cbranch_scc1 L_pad{k}")
    a("s_branch L_e0")
    c("wave 0 of member 31 zeroes the team's roll-call line, then announces its XCD through d_debug")
    a("L_ann:")
    a(f"s_sub_u32 s10, {sI}, {sWAVE}")
    a("s_cmp_lg_u32 s10, 31")
    a("s_cbranch_scc1 L_e3")
    a("s_setprio 3")
    a("s_getreg_b32 s62, hwreg(HW_REG_XCC_ID, 0, 4)")
    a(f"s_mul_i32 s13, {sX8}, {CTS}")
    a(f"s_add_u32 s13, s13, {CT}")
    a(f"s_lshl_b32 s12, {sX8}, 5")
    a("s_add_u32 s62, s62, 1")
    a(f"v_lshlrev_b32 v28, 3, {vL}")
    a("v_mov_b32 v30, 0")
    a("v_mov_b32 v31, 0")
    a(f"s_mov_b32 s50, {WS_USED}")
    a("s_mov_b32 s51, s43")
    a("s_waitcnt lgkmcnt(0)")
    a("s_mov_b64 s[48:49], s[38:39]")
    a(f"buffer_store_dwordx2 v[30:31], v28, {sWS}, s13 offen")
    a("s_waitcnt vmcnt(0)")
    a("s_atomic_add s62, s[36:37], s12")
    a("s_setprio 0")
    a("@@start_end")
    a("L_e0:")
    estamp(4)
    lane_consts()
    a("s_barrier    ; barrier 0")
    stamp(13)

    c("---- K pass, scores, V pass: 8 groups of 8 keys per wave; waves 4-7 run it one barrier behind waves 0-3")
    a("L_stream:")
    a(f"s_and_b32 s11, {sWAVE}, 3")
    a("s_mul_i32 s8, s8, 12582912")
    a("s_lshl2_add_u32 s11, s9, s11")
    a(f"s_add_u32 s8, s8, {28672*384}")
    a("s_mulk_i32 s11, 3072")
    a(f"v_mul_u32_u24 {vKV}, 384, {vR}")
    a("s_add_u32 s8, s8, s11")
    a(f"v_lshl_add_u32 {vKV}, {vC}, 4, {vKV}")
    a(f"s_mov_b32 s10, 208896")
    a("s_mov_b64 s[46:47], s[42:43]")
    a("s_waitcnt lgkmcnt(0)")
    def kv_load(which, g):
        base, s = (vK, sK) if which == "k" else (vV, sV)
        for i in range(3):
            n = 3*g + i
            if fb and (n == Wl[0] or n in rd):
                a("s_waitcnt lgkmcnt(0)")
                a("v_readfirstlane_b32 s12, v242")
                a("s_cmp_lg_u32 s12, 2")
                a("s_cselect_b64 vcc, -1, 0")
            if fb and Wl[0] <= n < nend:
                k = f"{which}{n}"
                a("s_cmp_eq_u32 s12, 1")
                a(f"s_cbranch_scc0 Lw{k}a")
                a(f"s_waitcnt vmcnt({Wl[0]-1})")
                a(f"Lw{k}a:")
                a(f"s_cbranch_vccz Lw{k}b")
                a(f"s_waitcnt vmcnt({Wl[1]-1})")
                a(f"Lw{k}b:")
                if n >= Wl[2]: a(f"s_waitcnt vmcnt({Wl[2]-1})")
            elif n >= Wl[1]: a(f"s_waitcnt vmcnt({(Wend if n >= nend else Wl[1])-1})")
            a(f"buffer_load_dwordx4 {vr(base + 12*g + 4*i)}, {vKV}, {s}, {OFF[g]} offen offset:{i*128} {nt}")
            if fb and (n == 0 or n + 1 in rd):
                a("v_mov_b32 v242, 0")
                a(f"ds_read_b32 v242, v242 offset:{L_LVL}")
            if which == "k" and n == 4:
                srd(sWS, 38, WS_USED)
                a(f"s_mul_i32 s13, {sX8}, {CTS}")
                a(f"s_add_u32 s13, s13, {CT}")
                a(f"v_lshlrev_b32 v29, 2, {vC}")
            if fill and which == "v":
                for j in range(n*fill, min(8, (n+1)*fill)): mkA(vK + 4*j, vS + j)
        if which == "k" and g < 7:
            a(f"s_cmp_eq_u32 s9, {15-g}")
            a("s_cselect_b32 s11, 12288, s10")
            a(f"s_add_u32 {OFF[g+1]}, {OFF[g]}, s11")
    c(f"loads in flight per wave: {Wl[0]}, {Wl[1]} or {Wl[2]} by level (s12 / vcc)")
    for g in range(8):
        kv_load("k", g)
        if g == 6:
            a("v_mov_b32 v31, 0")
            a(f"ds_read_b32 v27, v31 offset:{L_MODE}")
    stamp(6)
    a(f"s_cmp_eq_u32 {sWAVE}, 0")
    a("s_waitcnt lgkmcnt(0)")
    a("v_readfirstlane_b32 s27, v27")
    a("s_cbranch_scc0 L_x1")
    a("s_mov_b64 exec, 0xff")
    a(f"buffer_load_dword v27, v29, {sWS}, s13 offen sc1")
    exec_all()
    a("L_x1:")
    def who1():
        a(f"s_lshl2_add_u32 s7, {sWAVE}, s27")
        if fb & 3 == 3: a("s_and_b32 s7, s7, 15")
        a(f"s_cmp_lg_u32 s7, {26 if fb & 3 == 2 else 10}")
    if fb & 3:
        who1()
        a("s_cbranch_scc1 L_x2")
        a(f"s_lshl3_add_u32 s7, {sWAVE}, 16")
        rank_issue("s7")
        a("L_x2:")
        a(f"s_cmp_eq_u32 {sWAVE}, 0")
    a("s_barrier    ; barrier X1")
    a("s_cbranch_scc1 L_qg")
    if fb & 3:
        who1()
        a("s_cbranch_scc1 L_qw")
        rank_use()
    a("L_qw:")
    a("v_mov_b32 v31, 0")
    def body():
        a(f"ds_read_b32 v28, v31 offset:{L_FQ}")
        a("s_waitcnt lgkmcnt(0)")
    poll(body, lambda: a("v_cmp_eq_u32 vcc, 0, v28"), 2)
    stamp(1)
    c("scores (bf16-rounded like the reference), the wave's max, p = exp(s - max), row sum")
    a("v_readfirstlane_b32 s27, v28")
    a(f"s_lshr_b32 s7, {sWAVE}, 2")
    a("s_mul_i32 s11, s7, 384")
    a(f"v_lshl_add_u32 v28, {vC}, 4, s11")
    for i in range(3):
        a(f"ds_read_b128 {vr(vQ + 4*i)}, v28 offset:{L_Q + 128*i}")
    a(f"s_lshl_b32 s7, s7, 5")
    a(f"s_add_u32 s7, s7, {sI}")
    a(f"s_and_b32 s11, {sWAVE}, 3")
    a("s_lshl2_add_u32 s7, s7, s11")
    a(f"s_mul_i32 s11, {sX8}, {TEAM}")
    a("s_lshl3_add_u32 s7, s7, s11")
    a(f"s_add_u32 s12, s7, {TML}")
    for j in range(8):
        a(f"v_mov_b32 v{vS+j}, 0")
    a("s_waitcnt vmcnt(0) lgkmcnt(0)")
    dots(range(8)); score_post(list(range(8)))
    a(f"v_max3_f32 v244, v{vS}, v{vS+1}, v{vS+2}")
    a(f"v_max3_f32 v244, v244, v{vS+3}, v{vS+4}")
    a(f"v_max3_f32 v244, v244, v{vS+5}, v{vS+6}")
    a(f"v_max_f32 v244, v244, v{vS+7}")
    red_hi(244, 28, "max")
    pad(1, "L_e0", True)
    for j in range(8): a(f"v_sub_f32 v{vS+j}, v{vS+j}, v244")
    for j in range(8): a(f"v_mul_f32 v{vS+j}, {LOG2E}, v{vS+j}")
    for j in range(8): a(f"v_exp_f32 v{vS+j}, v{vS+j}")
    a(f"v_add_f32 v9, v{vS}, v{vS+1}")
    for j in range(2, 8): a(f"v_add_f32 v9, v9, v{vS+j}")
    red_hi(9, 28, "add")
    a(f"s_mul_i32 s7, {sWAVE}, {2*ROWS}")
    a(f"v_lshrrev_b32 v29, 5, {vL}")
    a(f"v_mul_u32_u24 v29, {ROWS}, v29")
    a("v_add_u32 v29, s7, v29")
    a(f"v_and_b32 v28, 16, {vL}")
    a(f"v_lshl_add_u32 v28, {vC}, 5, v28")
    a("v_add_u32 v30, v28, v29")
    a("v_mov_b32 v8, v244")
    a("s_cmp_eq_u32 s27, 1")
    a("s_mov_b64 exec, 1")
    a("s_cbranch_scc0 L_mlg")
    a(f"buffer_store_dwordx2 v[8:9], off, {sWS}, s12")
    a("L_mld:")
    exec_all()
    if not fill:
        for g in range(8): mkA(vK + 4*g, vS + g)
    stamp(2)
    a("s_barrier    ; barrier X2")
    def pv(g, wait):
        for i in range(3):
            k = 23 - 3*g - i
            if wait and k < Wmax: a(f"s_waitcnt vmcnt({k})")
            mfma(vD + 4*i, vK + 4*g, vV + 12*g + 4*i, g == 0)
    for g in range(8):
        kv_load("v", g)
        if 3 <= g < 7: pv(g - 3, False)
    stamp(7)
    if fb & 4:
        a(f"s_lshl2_add_u32 s7, {sWAVE}, s27")
        a("s_cmp_lg_u32 s7, 9")
        a("s_cbranch_scc1 L_x4")
        rank_issue(96)
        a("L_x4:")
        a("s_cmp_lg_u32 s7, 9")
    a("s_barrier    ; barrier X3")
    if fb & 4:
        a("s_cbranch_scc1 L_x3")
        rank_use()
        a("L_x3:")
    stamp(8)
    for g in range(4, 8): pv(g, True)
    stamp(9)
    set_exec("0x00ff00ff", "0xff00ff00")
    a(f"s_cmp_lt_u32 {sWAVE}, 4")
    for i in range(3):
        a(f"ds_write_b128 v30, {vr(vD + 4*i)} offset:{L_ROW + 256*i}")
    a("s_cbranch_scc1 L_early")
    a("s_waitcnt lgkmcnt(0)")
    a("s_barrier    ; barrier B")
    stamp(10)
    if stamps and not notail:
        a(f"s_cmp_ge_u32 {sI}, 30")
        a("s_cbranch_scc1 L_done")
        a("s_barrier")
        a("s_barrier")
    end_wave()
    a("L_mlg:")
    a(f"buffer_store_dwordx2 v[8:9], off, {sWS}, s12 sc1")
    a("s_branch L_mld")

    a("@@early_begin")
    c("---- waves 0-3 after their pass: members 0-29 own a tile of 128 wo rows (32 w2 rows) x 128 columns")
    a(".p2align 12")
    pad(4, "L_lq2")
    a("L_early:")
    a("s_mov_b64 exec, 1")
    a("v_mov_b32 v28, 0")
    a("v_mov_b32 v29, 1")
    a("s_waitcnt lgkmcnt(0)")
    a(f"ds_add_u32 v28, v29 offset:{L_CNT}")
    exec_all()
    a("s_mov_b32 s14, s27")
    srd(sA, 24, 7864320)
    srd(sX, 16, 1280)
    srd(sOUT, 34, 1280)
    a(f"v_lshlrev_b32 v31, 4, {vL}")
    a(f"s_mul_i32 s12, {sX8}, {TEAM}")
    a(f"s_mul_i32 s13, {sI}, 52")
    a("s_lshr_b32 s13, s13, 8")
    a("s_mul_i32 s7, s13, 5")
    a(f"s_sub_u32 s7, {sI}, s7")
    a(f"s_mul_i32 s30, s7, {9*128}")
    a(f"s_add_u32 s30, s30, {AM}")
    a(f"s_add_u32 s31, s30, {AS-AM}")
    a(f"s_lshl2_add_u32 s6, s13, {sWAVE}")
    a("s_lshl_b32 s7, s7, 8")
    a(f"v_lshlrev_b32 v250, 4, {vC}")
    a(f"v_and_b32 v28, 8, {vL}")
    a(f"v_lshrrev_b32 v29, 4, {vL}")
    a("v_lshl_add_u32 v28, v28, 1, v29")
    a("v_mul_u32_u24 v248, 1280, v28")
    a("v_add_u32 v248, v248, v250")
    a(f"v_mul_u32_u24 v249, {SLOT}, {vR}")
    a("v_add_u32 v249, v249, v250")
    a("s_mul_i32 s10, s6, 43")
    a("s_lshr_b32 s10, s10, 8")
    a("s_and_b32 s11, s10, 1")
    a(f"s_mul_i32 s11, s11, {16*SLOT - 768}")
    a("s_lshr_b32 s10, s10, 1")
    a("s_mulk_i32 s10, 768")
    a("s_sub_u32 s11, s11, s10")
    a("s_lshl_b32 s10, s6, 7")
    a("s_add_u32 s11, s11, s10")
    a("s_add_u32 s11, s11, s12    ; o soffset")
    a(f"s_mul_i32 s8, {sX8}, 12")
    a("s_add_u32 s8, s8, s6")
    a("s_cmp_ge_u32 s6, 12")
    a("s_cselect_b32 s10, 84, 0")
    a("s_add_u32 s8, s8, s10")
    a("s_mul_i32 s8, s8, 40960")
    a("s_add_u32 s8, s8, s7")
    a(f"s_mul_i32 s6, {sWAVE}, 1536")
    a(f"v_lshrrev_b32 v28, 5, {vL}")
    a("v_mul_u32_u24 v28, 768, v28")
    a("v_add_u32 v28, s6, v28")
    a("v_mov_b32 v29, 0x3e000000")
    a(f"ds_write_b32 v28, v29 offset:{L_TS+512}")
    a(f"v_and_b32 v29, 0xff, v{vPUB}")
    a("v_add_u32 v246, v28, v29")
    c("lane map of the finishing step: segment = 3*wave + (lane>>4), n = 15*segment + (lane&15), lane 15 of a row counts")
    a(f"s_mul_i32 s6, {sWAVE}, 3")
    a(f"v_lshrrev_b32 v28, 4, {vL}")
    a("v_add_u32 v28, s6, v28")
    a(f"v_and_b32 v29, 15, {vL}")
    a("v_mad_u32_u24 v252, v28, 15, v29")
    a("v_lshlrev_b32 v253, 2, v29")
    a("v_min_u32 v28, 8, v28")
    a("v_lshl_add_u32 v253, v28, 7, v253")
    a("v_cmp_gt_u32 vcc, 0x80, v252")
    a("s_and_b32 s26, vcc_lo, 0x7fff7fff")
    a("s_and_b32 s27, vcc_hi, 0x7fff")
    a("s_or_b32 s28, s26, 0x80008000")
    a("s_or_b32 s29, s27, 0x8000")
    a("v_cmp_eq_u32 vcc, 15, v29")
    a("v_lshrrev_b32 v28, 6, v252")
    a("v_bfe_u32 v29, v252, 2, 3")
    a("v_lshl_add_u32 v28, v28, 3, v29")
    a("v_bfe_u32 v29, v252, 5, 1")
    a("v_lshl_add_u32 v28, v28, 1, v29")
    a("v_and_b32 v29, 3, v252")
    a("v_lshl_add_u32 v28, v28, 2, v29")
    a("v_lshl_add_u32 v254, v28, 1, s7")
    a("v_mov_b32 v28, 0x80")
    a("v_cndmask_b32 v252, v252, v28, vcc")
    a("v_lshlrev_b32 v252, 2, v252")
    a(f"buffer_load_ushort v255, v254, {sX}, 0 offen")
    a(f"s_cmp_ge_u32 {sWAVE}, 2")
    a("s_cbranch_scc1 L_e2")
    c("wave 1 hands over the partial of waves 0-3 now, wave 0 that of waves 4-7 later; both scale by exp(max_w - max) / sum")
    a(f"s_xor_b32 s6, {sWAVE}, 1")
    a(f"s_lshr_b32 s10, {sI}, 4")
    a("s_lshl1_add_u32 s10, s6, s10")
    a("s_lshl_b32 s10, s10, 9")
    a("s_add_u32 s10, s10, s12")
    a(f"s_add_u32 s10, s10, {TML}")
    a(f"s_lshl2_add_u32 s6, {sI}, s6")
    a("s_mulk_i32 s6, 768")
    a("s_add_u32 s6, s6, s12")
    a(f"v_lshlrev_b32 v30, 3, {vL}")
    def body():
        a(f"buffer_load_dwordx2 v[8:9], v30, {sWS}, s10 offen sc1")
        a("s_waitcnt vmcnt(0)")
        a("v_max_u32 v28, v8, v9")
    poll(body, lambda: a("v_cmp_eq_u32 vcc, -1, v28"), 2)
    a("v_mov_b32 v10, v8")
    red8([10], "max_f32"); red_hi(10, 28, "max")
    a("v_sub_f32 v8, v8, v10")
    a(f"v_mul_f32 v8, {LOG2E}, v8")
    a("v_exp_f32 v8, v8")
    a("v_mul_f32 v9, v9, v8")
    red8([9]); red_hi(9, 28)
    a("v_rcp_f32 v9, v9")
    a("s_lshl_b32 s10, s9, 2")
    a("v_mul_f32 v8, v8, v9")
    for w in range(4):
        a(f"v_readlane_b32 s{60+2*w}, v8, s10")
        if w < 3: a("s_add_u32 s10, s10, 1")
    def rows_sum(r0):
        for j in range(8):
            a(f"ds_read_b128 {vr(160 + 4*j)}, v31 offset:{L_ROW + ROWS*(r0+j)}")
        for w in range(4):
            a(f"s_waitcnt lgkmcnt({0 if stamps else 6-2*w})")
            for h in (0, 2):
                a(f"v_pk_add_f32 {vr(160+8*w+h,2)}, {vr(160+8*w+h,2)}, {vr(164+8*w+h,2)}")
            for h in (0, 2):
                if w == 0: a(f"v_pk_mul_f32 {vr(156+h,2)}, {vr(160+h,2)}, s[60:61] op_sel_hi:[1,0]")
                else: a(f"v_pk_fma_f32 {vr(156+h,2)}, {vr(160+8*w+h,2)}, s[{60+2*w}:{61+2*w}], {vr(156+h,2)} op_sel_hi:[1,0,1]")
    a(f"s_cmp_eq_u32 {sWAVE}, 0")
    a("s_cbranch_scc1 L_e2")
    a("v_mov_b32 v29, 0")
    def body():
        a(f"ds_read_b32 v28, v29 offset:{L_CNT}")
        a("s_waitcnt lgkmcnt(0)")
    poll(body, lambda: a("v_cmp_gt_u32 vcc, 4, v28"), 2)
    a("s_mov_b32 exec_hi, 0xffff")
    rows_sum(0)
    a("s_cmp_eq_u32 s14, 1")
    a("s_cbranch_scc0 L_pub1g")
    a(f"buffer_store_dwordx4 v[156:159], v31, {sWS}, s6 offen offset:{SO}")
    a("L_pub1d:")
    exec_all()
    a("L_e2:")
    a(f"s_cmp_ge_u32 {sI}, 30")
    a("s_cbranch_scc1 L_notile")
    a(f"s_cmp_eq_u32 {sWAVE}, 3")
    a("s_cbranch_scc1 L_mlp2")
    def mp_add(lbl):
        if lbl:
            a(f"s_cmp_eq_u32 {sWAVE}, 3")
            a(f"s_cbranch_scc1 {lbl}")
        a("s_mov_b64 exec, s[28:29]")
        a("s_waitcnt lgkmcnt(0)")
        if not notail: a(f"buffer_atomic_add_f32 v26, v253, {sWS}, s30 offen")
        exec_all()
        if lbl: a(f"{lbl}:")
    a("s_waitcnt lgkmcnt(0)")
    a("s_barrier    ; barrier A")
    stamp(3)
    a(f"ds_read_b32 v26, v252 offset:{L_TM}")
    if mpat == 0: mp_add(None)
    a("L_ea:")
    for k in range(8):
        rb, li = k // 2, k % 2
        a(f"buffer_load_dwordx4 {vr(vK + 8*rb + 4*li)}, v248, {sA}, s8 offen offset:{li*128} {nt}")
        if li and rb < 3: a("s_addk_i32 s8, 5120")
    if mpat == 1: mp_add("L_mp")
    a("s_waitcnt lgkmcnt(0)")
    a(f"s_cmp_eq_u32 {sWAVE}, 0")
    a("s_cbranch_scc1 L_pub")
    a("s_barrier    ; barrier B")
    stamp(4)
    a("s_branch L_og")

    pad(5, "L_lq2")
    a("L_pub:")
    a("s_mov_b32 exec_hi, 0xffff")
    a("s_cmp_eq_u32 s14, 1")
    a("s_barrier    ; barrier B")
    stamp(4)
    rows_sum(8)
    if not notail:
        a("s_cbranch_scc0 L_pubg")
        a(f"buffer_store_dwordx4 v[156:159], v31, {sWS}, s6 offen offset:{SO}")
    a("L_pubd:")
    exec_all()
    a(f"s_cmp_ge_u32 {sI}, 30")
    a("s_cbranch_scc1 L_done")
    c("gather the sixteen partials of 32 attention outputs, add, multiply with the wo rows")
    a("L_og:")
    a(f"s_add_u32 s10, s11, {8*SLOT}")
    a(f"s_mov_b32 {sCNT}, {BOUND}")
    if notail:
        a("s_waitcnt vmcnt(0)")
        stamp(11)
        end_wave()
    a("s_barrier    ; barrier B2")
    if mpat == 2: mp_add("L_mp")
    stamp(10)
    def o_loads(b):
        a(f"buffer_load_dwordx4 {vr(b)}, v249, {sWS}, s11 offen offset:{SO} sc1")
        a(f"buffer_load_dwordx4 {vr(b+4)}, v249, {sWS}, s10 offen offset:{SO} sc1")
    def o_check(b):
        a(f"v_pk_add_f32 v[16:17], {vr(b,2)}, {vr(b+4,2)}")
        a(f"v_pk_add_f32 v[18:19], {vr(b+2,2)}, {vr(b+6,2)}")
        a(f"v_max3_u32 v28, v{b}, v{b+1}, v{b+2}")
        a(f"v_max3_u32 v29, v{b+3}, v{b+4}, v{b+5}")
        a("v_permlane32_swap_b32 v16, v18")
        a("v_permlane32_swap_b32 v17, v19")
        a("v_pk_add_f32 v[16:17], v[16:17], v[18:19]")
        a(f"v_max3_u32 v28, v28, v{b+6}, v{b+7}")
        a("v_max_u32 v28, v28, v29")
        a("v_permlane16_swap_b32 v16, v17")
        a("v_add_f32 v16, v16, v17")
        a("v_cmp_eq_u32 vcc, -1, v28")
    if pp:
        o_loads(192)
        if stamps:
            a("s_waitcnt vmcnt(2)")
            stamp(5)
        a("L_poll:")
        a("s_waitcnt vmcnt(0)")
        o_loads(200)
        o_check(192)
        a("s_cbranch_vccz L_got")
        a("s_waitcnt vmcnt(0)")
        o_loads(192)
        o_check(200)
    else:
        a("L_poll:")
        o_loads(192)
        a("s_waitcnt vmcnt(0)")
        o_check(192)
    a("s_cbranch_vccnz L_retry")
    a("L_got:")
    stamp(11)
    a(f"v_add_f32_dpp v16, v16, v16 row_ror:8 {DPP}")
    a("v_cvt_pk_bf16_f32 v16, v16, v16")
    if amat == 0: a(f"buffer_load_dword v15, v253, {sWS}, s30 offen sc1")
    a("v_mov_b32_dpp v16, v16 row_shr:4 row_mask:0xf bank_mask:0x6")
    andA4(128, 16, 0)
    for k in range(3):
        andA4(132 + 4*k, 16, k + 1, (0, 1))
        mfma(vD, 128 + 4*k, vK + 8*k, k == 0)
        andA4(132 + 4*k, 16, k + 1, (2, 3))
        mfma(vD + 4, 128 + 4*k, vK + 8*k + 4, k == 0)
    a(f"s_cmp_eq_u32 {sWAVE}, 3")
    mfma(vD, 140, vK + 24)
    mfma(vD + 4, 140, vK + 28)
    if amat == 2: a(f"buffer_load_dword v15, v253, {sWS}, s30 offen sc1")
    set_exec("0x00ff00ff", "0xff00ff00")
    a(f"ds_write_b128 v246, {vr(vD)} offset:{L_TS}")
    a(f"ds_write_b128 v246, {vr(vD+4)} offset:{L_TS+256}")
    a("s_mov_b64 exec, s[28:29]")
    a("s_waitcnt lgkmcnt(0)")
    a("s_barrier    ; barrier C")
    a("s_cbranch_scc1 L_done")
    c("add this tile to the chip-wide sums; whoever adds last finishes the columns")
    for j in range(4):
        a(f"ds_read2st64_b32 {vr(16+2*j,2)}, v252 offset0:{L_TS//256+6*j} offset1:{L_TS//256+6*j+3}")
    a("s_waitcnt lgkmcnt(0)")
    a("v_pk_add_f32 v[16:17], v[16:17], v[18:19]")
    a("v_pk_add_f32 v[20:21], v[20:21], v[22:23]")
    a("v_pk_add_f32 v[16:17], v[16:17], v[20:21]")
    a("v_add_f32 v9, v16, v17")
    a(f"buffer_atomic_add_f32 v9, v253, {sWS}, s31 offen sc0")
    if amat == 1: a(f"buffer_load_dword v15, v253, {sWS}, s30 offen sc1")
    stamp(12)
    a("v_add_f32 v8, v16, v17")
    a("v_lshlrev_b32 v255, 16, v255")
    a(f"s_mov_b32 {sCNT}, {BOUND}")
    if amat == 1:
        a("L_g:")
        a("s_waitcnt vmcnt(0)")
        a("v_cvt_pk_bf16_f32 v14, v15, v15")
        a("v_add_f32 v10, v8, v9")
        a("v_lshlrev_b32 v14, 16, v14")
        a("v_mul_f32 v17, 0xbfb8aa3b, v14")
        a("v_exp_f32 v17, v17")
        a("v_cvt_pk_bf16_f32 v11, v10, v10")
        a("v_add_f32 v17, 1.0, v17")
        a("v_rcp_f32 v17, v17")
        a("v_lshlrev_b32 v11, 16, v11")
        a("v_mul_f32 v14, v14, v17")
        a("v_cvt_pk_bf16_f32 v14, v14, v14")
        a(f"v_mov_b32_dpp v16, v15 row_newbcast:15 {DPP}")
        a("v_lshlrev_b32 v14, 16, v14")
        a(f"v_mov_b32_dpp v17, v10 row_newbcast:15 {DPP}")
        a("v_mul_f32 v11, v11, v14")
        a("v_cmp_neq_f32 s[6:7], v16, v17")
        a("v_cvt_pk_bf16_f32 v11, v11, v11")
        a("v_cmp_eq_f32 vcc, 0x42400000, v17")
        a("v_lshlrev_b32 v11, 16, v11")
        a("s_and_b64 s[6:7], s[6:7], vcc")
        a("v_add_f32 v11, v11, v255")
    else:
        a("s_waitcnt vmcnt(1)")
        a("L_g:")
        a(f"v_mov_b32_dpp v16, v15 row_newbcast:15 {DPP}")
        rnd1(15)
        a("v_cmp_neq_f32 vcc, 0x42400000, v16")
        silu(15, 17)
        a("s_mov_b64 s[6:7], vcc")
        rnd1(15)
        a("s_waitcnt vmcnt(0)")
        a("v_add_f32 v10, v8, v9")
        a("v_cvt_pk_bf16_f32 v11, v10, v10")
        a("v_lshlrev_b32 v11, 16, v11")
        a(f"v_mov_b32_dpp v16, v10 row_newbcast:15 {DPP}")
        a("v_mul_f32 v11, v11, v15")
        a("v_cmp_eq_f32 vcc, 0x42400000, v16")
        rnd1(11)
        a("s_and_b64 s[6:7], s[6:7], vcc")
        a("v_add_f32 v11, v11, v255")
    a("s_cbranch_scc1 L_gslow")
    a("L_gok:")
    a("s_and_b64 exec, vcc, s[26:27]")
    a("v_cvt_pk_bf16_f32 v11, v11, v11")
    a("s_cbranch_scc0 L_done")
    a(f"buffer_store_short v11, v254, {sOUT}, 0 offen")
    stamp(13)
    a("L_done:")
    end_wave()
    a("L_retry:")
    a(f"s_sub_u32 {sCNT}, {sCNT}, 1")
    a("s_cbranch_scc0 L_poll")
    a("s_branch L_got")
    a("L_gslow:")
    a(f"s_sub_u32 {sCNT}, {sCNT}, 1")
    a("s_cbranch_scc1 L_gok")
    a(f"buffer_load_dword v15, v253, {sWS}, s30 offen sc1")
    a("s_waitcnt vmcnt(0)")
    a("s_branch L_g")
    a("L_pubg:")
    a(f"buffer_store_dwordx4 v[156:159], v31, {sWS}, s6 offen offset:{SO} sc1")
    a("s_branch L_pubd")
    a("L_pub1g:")
    a(f"buffer_store_dwordx4 v[156:159], v31, {sWS}, s6 offen offset:{SO} sc1")
    a("s_branch L_pub1d")
    a("L_notile:")
    a(f"s_cmp_eq_u32 {sWAVE}, 0")
    a("s_waitcnt lgkmcnt(0)")
    a("s_barrier    ; barrier A")
    a("s_cbranch_scc1 L_pub")
    end_wave()

    c("wave 3: second MLP stage for 32 F rows")
    pad(6, "L_lq2")
    a("L_mlp2:")
    srd(sDBG, 36, 256)
    a("s_lshr_b32 s6, s13, 1")
    a("s_lshl1_add_u32 s13, s6, s13")
    a("s_lshl_b32 s13, s13, 7")
    a("s_add_u32 s13, s13, s12")
    def body():
        a("s_mov_b32 s6, s13")
        for j in range(4):
            a(f"buffer_load_dwordx4 {vr(128+4*j)}, v249, {sWS}, s6 offen offset:256 sc1")
            if j < 3: a(f"s_addk_i32 s6, {8*SLOT}")
        a(f"buffer_load_dword v29, off, {sDBG}, 0 offset:4 sc1")
        a("s_waitcnt vmcnt(0)")
    def chk():
        a("v_cmp_gt_u32 vcc, 8, v29")
        a("v_cndmask_b32 v29, 0, -1, vcc")
        chk_invalid(list(range(128, 144)) + [29], 28)
    poll(body, chk, 4)
    for k in range(8):
        a(f"ds_read_b128 {vr(64 + 4*k)}, v31 offset:{L_W2 + 1024*k}")
    for j in (0, 2):
        a(f"v_pk_add_f32 {vr(128+j,2)}, {vr(128+j,2)}, {vr(132+j,2)}")
        a(f"v_pk_add_f32 {vr(132+j,2)}, {vr(136+j,2)}, {vr(140+j,2)}")
    for b in (128, 132):
        a(f"v_permlane32_swap_b32 v{b}, v{b+2}")
        a(f"v_permlane32_swap_b32 v{b+1}, v{b+3}")
        a(f"v_pk_add_f32 {vr(b,2)}, {vr(b,2)}, {vr(b+2,2)}")
        a(f"v_permlane16_swap_b32 v{b}, v{b+1}")
        a(f"v_add_f32 v{b}, v{b}, v{b+1}")
        a(f"v_add_f32_dpp v{b}, v{b}, v{b} row_ror:8 {DPP}")
    rnd2(128, 132)
    silu(128, 129)
    rnd1(128)
    a("v_mul_f32 v128, v128, v132")
    a("v_cvt_pk_bf16_f32 v128, v128, v128")
    a("v_mov_b32_dpp v128, v128 row_shr:4 row_mask:0xf bank_mask:0x6")
    for j in range(4): andA4(144 + 4*j, 128, j)
    a("v_mov_b32 v28, 0")
    a("v_mov_b32 v29, 1.0")
    a(f"ds_write_b32 v28, v29 offset:{L_TM+512}")
    a("s_waitcnt lgkmcnt(0)")
    for rb in range(4):
        for li in range(2):
            mfma(vD + 4*li, 144 + 4*rb, 64 + 8*rb + 4*li, rb == 0)
    comb2(vD, vD + 4)
    set_exec("0x00ff00ff", "0x00ff00ff")
    a(f"ds_write_b128 v{vPUB}, {vr(vD)} offset:{L_TM}")
    exec_all()
    stamp(5)
    a("s_waitcnt lgkmcnt(0)")
    a("s_barrier    ; barrier A")
    stamp(3)
    a("s_branch L_ea")

    c("---- waves 4-6 at the start: mark this member's share of the team area, LayerNorm, 80 rows of wq and 40 rows of w1 or w3")
    a("@@late_begin")
    a("L_late:")
    estamp(4)
    zero_stamps()
    a("v_mov_b32 v31, 0")
    a(f"v_lshlrev_b32 v30, 2, {vC}")
    a("ds_write_b32 v30, v31    ; flags")
    a("s_add_u32 s8, s8, 16")
    a(f"s_and_b32 s7, {sI}, 7")
    a(f"s_bfe_u32 s10, {sI}, 0x10003")
    a("s_lshl4_add_u32 s6, s6, s10")
    a(f"s_lshl1_add_u32 s6, {sX8}, s6")
    a(f"s_sub_u32 s13, {sWAVE}, 4")
    a(f"s_mul_i32 s14, {sX8}, {TEAM}")
    a(f"s_lshl_b32 s71, {sI}, 7")
    a("s_add_u32 s71, s71, s14")
    a(f"s_add_u32 s71, s71, {TML}")
    a(f"s_mul_i32 s10, {sI}, {SLOT}")
    a("s_add_u32 s14, s14, s10")
    a("s_lshl_b32 s70, s13, 10")
    a("s_add_u32 s70, s70, s14")
    for r in range(4): a(f"v_mov_b32 v{140+r}, -1")
    a(f"v_lshlrev_b32 v25, 4, {vL}")
    a(f"v_mul_u32_u24 v26, 20, {vL}")
    a(f"v_mul_u32_u24 v27, 20, {vR}")
    a(f"v_mul_u32_u24 v30, 122880, {vR}")
    a(f"v_lshl_add_u32 v30, {vC}, 4, v30")
    a("s_mul_i32 s10, s7, 160")
    a("s_mul_i32 s11, s7, 983040")
    a("s_mul_i32 s12, s6, 384")
    a("s_lshl_b32 s13, s13, 7    ; 128*j")
    a("s_add_u32 s11, s11, s12")
    a("s_add_u32 s11, s11, s13")
    a("s_movk_i32 s12, 12288")
    a(f"s_mov_b32 s50, {WS_USED}")
    a("s_mov_b32 s51, 0x20000")
    a("s_mov_b32 s54, 1280")
    a("s_mov_b32 s55, 0x20000")
    a("s_mov_b32 s58, 7864320")
    a("s_mov_b32 s59, 0x20000")
    a(f"s_lshl4_add_u32 s60, {sWAVE}, {sI}")
    a("s_cmpk_lt_u32 s60, 80")
    a("s_waitcnt lgkmcnt(0)")
    a("s_mov_b64 s[48:49], s[38:39]")
    a("s_mov_b64 s[52:53], s[16:17]")
    a("s_mov_b64 s[56:57], s[22:23]")
    estamp(5)
    a(f"buffer_store_dwordx4 v[140:143], v25, {sWS}, s70 offen")
    a("s_cbranch_scc0 L_l1")
    a("s_mov_b64 exec, 0xff")
    a(f"buffer_store_dwordx4 v[140:143], v25, {sWS}, s71 offen")
    exec_all()
    a("L_l1:")
    a(f"buffer_load_dwordx4 v[128:131], v26, {sX}, 0 offen")
    a(f"buffer_load_dword v132, v26, {sX}, 0 offen offset:16")
    a(f"buffer_load_dwordx4 v[134:137], v27, {sX}, s10 offen")
    a(f"buffer_load_dword v138, v27, {sX}, s10 offen offset:16")
    for rb in range(10):
        a(f"buffer_load_dwordx4 {vr(vK + 4*rb)}, v30, {sA}, s11 offen {nt}")
        if rb < 9: a("s_add_u32 s11, s11, s12")
    estamp(6)
    a(f"s_cmp_ge_u32 {sI}, 16")
    a("s_cselect_b64 s[60:61], s[30:31], s[28:29]")
    a("s_mov_b32 s62, 1966080")
    a("s_mov_b32 s63, 0x20000")
    a(f"v_mul_u32_u24 v30, 30720, {vR}")
    a(f"v_lshl_add_u32 v30, {vC}, 4, v30")
    a("s_mul_i32 s11, s7, 245760")
    a(f"s_bfe_u32 s10, {sI}, 0x10003")
    a("s_mul_i32 s12, s10, 15360")
    a("s_add_u32 s11, s11, s12")
    a(f"s_mul_i32 s12, {sX8}, 384")
    a("s_add_u32 s11, s11, s12")
    a("s_add_u32 s11, s11, s13")
    for rb in range(5):
        a(f"buffer_load_dwordx4 {vr(vK + 40 + 4*rb)}, v30, {sBB}, s11 offen offset:{(rb%2)*3072} {nt}")
        if rb % 2 == 1: a("s_addk_i32 s11, 6144")
    estamp(7)
    lane_consts()
    a("s_lshl_b32 s11, s13, 2")
    a(f"v_add_u32 v24, s11, v{vPUB}")
    a("s_waitcnt vmcnt(15)")
    stamp(3)
    for i in range(5):
        a(f"v_lshlrev_b32 v{140+2*i}, 16, v{128+i}")
        a(f"v_and_b32 v{141+2*i}, 0xffff0000, v{128+i}")
    a("v_add_f32 v160, v140, v141")
    for i in range(2, 10): a(f"v_add_f32 v160, v160, v{140+i}")
    red8([160]); red_hi(160, 161)
    a(f"v_mul_f32 v160, {INV640}, v160")
    for i in range(10): a(f"v_sub_f32 v{140+i}, v{140+i}, v160")
    a("v_mul_f32 v162, v140, v140")
    for i in range(1, 10): a(f"v_fmac_f32 v162, v{140+i}, v{140+i}")
    red8([162]); red_hi(162, 161)
    a(f"v_mul_f32 v162, {INV640}, v162")
    rnd2(160, 162)
    a(f"v_add_f32 v162, {EPS}, v162")
    rnd1(162)
    a("v_sqrt_f32 v162, v162")
    rnd1(162)
    a("v_rcp_f32 v162, v162")
    a(f"s_waitcnt vmcnt({b0})")
    a("s_barrier    ; barrier 0")
    for i in range(5):
        a(f"v_lshlrev_b32 v{150+2*i}, 16, v{134+i}")
        a(f"v_and_b32 v{151+2*i}, 0xffff0000, v{134+i}")
    for i in range(10): a(f"v_sub_f32 v{150+i}, v{150+i}, v160")
    for i in range(0, 10, 2): rnd2(150 + i, 151 + i)
    for i in range(10): a(f"v_mul_f32 v{150+i}, v{150+i}, v162")
    for i in range(10): mkA(164 + 4*i, 150 + i)
    estamp(8)
    a("s_waitcnt vmcnt(5)")
    estamp(9)
    for rb in range(10):
        mfma(vD, 164 + 4*rb, vK + 4*rb, rb == 0)
    a("s_cmp_lg_u32 s10, 0")
    a("s_waitcnt vmcnt(0)")
    a("s_cbranch_scc1 L_mh1")
    for rb in range(5):
        mfma(vD + 4, 164 + 4*rb, vK + 40 + 4*rb, rb == 0)
    a("s_branch L_mh2")
    a("L_mh1:")
    for rb in range(5):
        mfma(vD + 4, 184 + 4*rb, vK + 40 + 4*rb, rb == 0)
    a("L_mh2:")
    stamp(4)
    comb2(vD, vD + 4)
    set_exec("0x00ff00ff", "0x00ff00ff")
    a(f"ds_write_b128 v24, {vr(vD)} offset:{L_ST}")
    a(f"buffer_store_dwordx4 {vr(vD)}, v24, {sWS}, s14 offen")
    a("L_lq:")
    if warm & 2:
        for k in (4, 5, 6):
            a(f"s_cmp_eq_u32 {sWAVE}, {k}")
            a(f"s_cbranch_scc1 L_pad{k}")
    a("L_lq2:")
    exec_all()
    a("s_waitcnt lgkmcnt(0)")
    a("s_barrier    ; barrier H1")
    a("s_branch L_stream")

    c("---- wave 7 at the start")
    a("L_w7:")
    zero_stamps()
    a("s_add_u32 s8, s8, 16")
    lane_consts()
    a("s_waitcnt lgkmcnt(0)")
    srd(sWS, 38, WS_USED)
    a(f"s_lshl_b32 s12, {sX8}, 5")
    a("v_mov_b32 v31, 0")
    a("s_barrier    ; barrier 0")
    a("s_load_dword s11, s[36:37], s12")
    c("answer the roll call if this workgroup runs on the XCD that member 31 announced")
    srd(sDBG, 36, 256)
    a("s_getreg_b32 s10, hwreg(HW_REG_XCC_ID, 0, 4)")
    a(f"s_mul_i32 s13, {sX8}, {CTS}")
    a(f"s_add_u32 s13, s13, {CT}")
    a("s_add_u32 s10, s10, 1")
    a("s_mov_b64 exec, 1")
    a("v_mov_b32 v29, 1")
    a("s_waitcnt lgkmcnt(0)")
    a("s_cmp_lg_u32 s11, 0")
    a("s_cbranch_scc1 L_r1")
    def body():
        a(f"buffer_load_dword v28, off, {sDBG}, s12 sc1")
        a("s_waitcnt vmcnt(0)")
    poll(body, lambda: a("v_cmp_eq_u32 vcc, 0, v28"), 8)
    a("v_readfirstlane_b32 s11, v28")
    a("L_r1:")
    a(f"s_cmp_eq_u32 s11, {'0' if force_global else 's10'}")
    a("s_cbranch_scc1 L_r2")
    a(f"ds_write_b32 v31, v29 offset:{L_MODE}")
    a("s_branch L_r3")
    a("L_r2:")
    a("v_mov_b32 v28, 2")
    a(f"ds_write_b32 v31, v28 offset:{L_MODE}")
    a(f"s_add_u32 s13, s13, {sI}")
    a(f"buffer_store_byte v29, off, {sWS}, s13")
    a("L_r3:")
    stamp(5)
    a(f"s_cmp_lg_u32 {sI}, 31")
    a("s_cbranch_scc1 L_lq")
    c("member 31 zeroes 12 accumulator segments and counts its team as ready")
    exec_all()
    for r in range(4): a(f"v_mov_b32 v{144+r}, 0")
    a(f"v_lshrrev_b32 v28, 2, {vL}")
    a("v_lshlrev_b32 v28, 2, v28")
    a(f"v_add_lshl_u32 v28, v28, {vL}, 4")
    a(f"s_mul_i32 s11, {sX8}, {12*128}")
    a(f"s_add_u32 s11, s11, {AM}")
    a("s_mov_b32 exec_hi, 0xffff")
    a(f"buffer_store_dwordx4 v[144:147], v28, {sWS}, s11 offen sc1")
    a("s_mov_b32 s6, 1")
    a("s_waitcnt vmcnt(0)")
    a("s_atomic_add s6, s[36:37], 4")
    a("s_branch L_lq")

    a("@@late_end")
    c("---- wave 0 after its K pass: wait until all 32 members have answered or someone has called it off")
    pad(2, "L_e0")
    a("L_qg:")
    srd(sDBG, 36, 256)
    a("v_mov_b32 v31, 0")
    a(f"ds_read_b32 v28, v31 offset:{L_MODE}")
    a(f"s_lshl_b32 s12, {sX8}, 5")
    a(f"s_mul_i32 s14, {sX8}, {TEAM}")
    a(f"v_lshlrev_b32 v31, 4, {vL}")
    a(f"s_mov_b32 {sCNT}, {BOUND}")
    a("s_waitcnt lgkmcnt(0)")
    a("v_cmp_eq_u32 vcc, 1, v28")
    a("s_cbranch_vccnz L_qgg")
    a("s_mov_b64 exec, 0xff")
    a("s_cmp_eq_u32 s27, 2")
    a("s_cbranch_scc1 L_qgi")
    a("L_qgh:")
    a(f"buffer_load_dword v27, v29, {sWS}, s13 offen sc1")
    a("L_qgi:")
    a("s_waitcnt vmcnt(0)")
    a("v_cmp_ne_u32 vcc, 0x01010101, v27")
    a("s_cbranch_vccz L_qgl")
    a(f"s_sub_u32 {sCNT}, {sCNT}, 1")
    a("s_cbranch_scc1 L_qgl")
    a(f"s_cmp_gt_u32 {sCNT}, {BOUND-2}")
    a("s_cbranch_scc1 L_qgh")
    a(f"buffer_load_dword v28, off, {sDBG}, s12 offset:8 sc1")
    a("s_waitcnt vmcnt(0)")
    a("v_cmp_eq_u32 vcc, 0, v28")
    a("s_cbranch_vccnz L_qgh")
    c("the team spans several XCDs: mark and send again with write-through stores, count the arrivals in d_debug")
    a("L_qgg:")
    exec_all()
    for r in range(4): a(f"v_mov_b32 v{vV+r}, -1")
    a(f"s_lshr_b32 s11, {sI}, 4")
    a("s_mul_i32 s11, s11, 12288")
    a(f"s_and_b32 s7, {sI}, 15")
    a("s_lshl4_add_u32 s11, s7, s11")
    a("s_add_u32 s11, s11, s14")
    a(f"s_add_u32 s70, s11, {TG-4096}")
    a(f"v_lshlrev_b32 v30, 4, v{vPUB}")
    a(f"s_mul_i32 s71, {sI}, {SLOT}")
    a("s_add_u32 s71, s71, s14")
    a(f"buffer_store_dwordx4 {vr(vV)}, v31, {sWS}, s71 offen offset:2048 sc1")
    a("s_mov_b32 exec_hi, 0")
    a(f"buffer_store_dwordx4 {vr(vV)}, v31, {sWS}, s71 offen offset:{SO} sc1")
    a(f"s_cmp_ge_u32 {sI}, 16")
    a("s_cbranch_scc1 L_qgm")
    a(f"s_lshl_b32 s11, {sI}, 7")
    a("s_add_u32 s11, s11, s14")
    a(f"s_add_u32 s11, s11, {TML}")
    a("s_mov_b64 exec, 0xff")
    a(f"buffer_store_dwordx4 {vr(vV)}, v31, {sWS}, s11 offen sc1")
    a("L_qgm:")
    set_exec("0x00ff00ff", "0x00ff00ff")
    a("s_waitcnt lgkmcnt(0)")
    for j in range(3):
        a(f"buffer_store_dwordx4 {vr(vV + 64 + 4*j)}, v{vPUB}, {sWS}, s71 offen offset:{512*j} sc1")
    a("s_mov_b32 s11, 1")
    a("s_add_u32 s7, s12, 8")
    a("s_waitcnt vmcnt(0)")
    a("s_atomic_add s11, s[36:37], s7 glc")
    a("s_waitcnt lgkmcnt(0)")
    a("s_mov_b64 exec, 1")
    def body():
        a(f"buffer_load_dword v28, off, {sDBG}, s12 offset:8 sc1")
        a("s_waitcnt vmcnt(0)")
    poll(body, lambda: a("v_cmp_gt_u32 vcc, 32, v28"), 4)
    a("s_mov_b32 s27, 2")
    a("s_branch L_qgd")
    pad(3, "L_e0")
    a("L_qgl:")
    a("s_mov_b32 s27, 1")
    a("L_qgd:")
    stamp(5)
    c("sum the eight q partials of both heads")
    set_exec(-1, "0xffff")
    a(f"s_lshr_b32 s12, {sI}, 4")
    a(f"s_mul_i32 s12, s12, {8*SLOT}")
    a("s_add_u32 s11, s14, s12")
    a(f"v_lshrrev_b32 v28, 4, {vL}")
    a("v_lshl_add_u32 v31, v28, 8, v31")
    a(f"v_and_b32 v29, 8, {vL}")
    a(f"v_add_u32 v29, v29, v{vPUB}")
    def q_sum(hb):
        for step in (16, 8, 4):
            for j in range(0, step, 2):
                a(f"v_pk_add_f32 {vr(vV+hb+j,2)}, {vr(vV+hb+j,2)}, {vr(vV+hb+step+j,2)}")
        a(f"v_cvt_pk_bf16_f32 v{vV+hb}, v{vV+hb}, v{vV+hb+1}")
        a(f"v_cvt_pk_bf16_f32 v{vV+hb+1}, v{vV+hb+2}, v{vV+hb+3}")
        a(f"ds_write_b64 v29, {vr(vV+hb,2)} offset:{L_Q + 12*hb}")
    def q_flag():
        a("v_mov_b32 v26, 0")
        a("v_mov_b32 v27, s27")
        a("s_waitcnt lgkmcnt(0)")
        a(f"ds_write_b32 v26, v27 offset:{L_FQ}")
    def body():
        a("s_mov_b32 s12, s11")
        for j in range(16):
            a(f"buffer_load_dwordx4 {vr(vV + 4*j)}, v31, {sWS}, s12 offen offset:{SLOT*(j%2)} sc1")
            if j % 2 and j < 15: a(f"s_addk_i32 s12, {10*SLOT if j == 7 else 2*SLOT}")
        a("s_waitcnt vmcnt(0)")
    poll(body, lambda: chk_invalid(range(vV, vV + 64), 28))
    q_sum(0); q_sum(32); q_flag()
    exec_all()
    a("s_branch L_qw")

    a("@@qg_end")
    if stamps:
        a("L_dump:")
        exec_all()
        a("s_waitcnt vmcnt(0)")
        stamp(14)
        a("s_waitcnt lgkmcnt(0)")
        a("v_mov_b32 v4, 0")
        for i in range(15):
            a(f"v_mov_b32 v5, s{72+2*i}")
            a(f"v_cmp_eq_u32 vcc, {i}, v0")
            a("v_cndmask_b32 v4, v4, v5, vcc")
        srd(sWS, 38, "0x10000000")
        a("s_lshl_b32 s7, s2, 3")
        a(f"s_add_u32 s7, s7, {sWAVE}")
        a("s_lshl_b32 s7, s7, 6")
        a(f"s_add_u32 s7, s7, {STAMP_OFF}")
        a("v_lshlrev_b32 v3, 2, v0")
        a("s_mov_b64 exec, 0xffff")
        a(f"buffer_store_dword v4, v3, {sWS}, s7 offen")
    a("L_end:")
    a("s_endpgm")
    A.raw('.section .rodata,"a"')
    A.raw(".p2align 6")
    A.raw(f".amdhsa_kernel {KNAME}")
    A.raw("  .amdhsa_next_free_vgpr 256")
    A.raw("  .amdhsa_next_free_sgpr 102")
    A.raw("  .amdhsa_accum_offset 256")
    A.raw("  .amdhsa_group_segment_fixed_size 0")
    A.raw("  .amdhsa_kernarg_size 96")
    A.raw("  .amdhsa_user_sgpr_count 2")
    A.raw("  .amdhsa_user_sgpr_kernarg_segment_ptr 1")
    A.raw("  .amdhsa_system_sgpr_workgroup_id_x 1")
    A.raw("  .amdhsa_float_denorm_mode_32 3")
    A.raw(".end_amdhsa_kernel")
    it = A.items
    ix = {k: it.index("@@" + k) for k in ("start_end", "early_begin", "late_begin", "late_end", "qg_end")}
    head, stream = it[:ix["start_end"]], it[ix["start_end"]+1:ix["early_begin"]]
    early, late = it[ix["early_begin"]+1:ix["late_begin"]], it[ix["late_begin"]+1:ix["late_end"]]
    qg, rest = it[ix["late_end"]+1:ix["qg_end"]], it[ix["qg_end"]+1:]
    note = early.pop()
    A.items = head + ["s_branch L_e0", note] + late + [".p2align 12"] + stream + [".p2align 12"] + qg + early + rest
    return A.finalize()

if __name__ == "__main__":
    out = sys.argv[1]
    kw = {}
    for x in sys.argv[2:]:
        k, v = x.split("=")
        kw[k] = eval(v) if v[0].isdigit() or v[0] in "([" or v in ("True", "False") else v
    open(out, "w").write(gen(**kw))
```

```python
import sys, os
sys.path.insert(0, os.path.dirname(os.path.abspath(__file__)))
from asmlib import Asm

KNAME = "recurrent_scan__sliding_block_cached__glu_gated_swiglu__decode_kernel"
SLOT, SO = 3072, 1536
TML = 32 * SLOT
TEAM = TML + 2048
CT = 8 * TEAM
CTS = 4352
AM = CT + 8 * CTS
AS = AM + 45 * 128
WS_USED = AM + 96 * 128
STAMP_OFF = 2 << 20
BOUND = 200000
L_MODE, L_FQ, L_CNT, L_LVL, L_Q, L_ROW = 0, 4, 8, 12, 128, 1024
ROWS = 768
L_TS = (L_ROW + 16 * ROWS + 255) // 256 * 256
L_TM = L_TS + 8 * 768
L_W2 = L_TM + 768
L_ST = L_W2 + 8192
LDS_BYTES = L_ST + 1536
DPP = "row_mask:0xf bank_mask:0xf"
LOG2E = "0x3fb8aa3b"
SCALE = "0x3d93cd3a"
INV640 = "0x3acccccd"
EPS = "0x3727c5ac"

sWAVE, sX8, sI = "s3", "s4", "s5"
sK, sV, sWS, sX, sA, sBB, sDBG, sOUT = ("s[40:43]", "s[44:47]", "s[48:51]", "s[52:55]", "s[56:59]", "s[60:63]", "s[64:67]", "s[68:71]")
sCNT = "s15"
OFF = ["s8", "s18", "s19", "s20", "s21", "s22", "s23", "s26"]
vL, vKV, vR, vC = "v0", "v1", "v2", "v3"
vM = [4, 5, 6, 7]
vQ = 8
vS = 20
vK, vV, vD, vA = 32, 128, 224, 236
vPUB = 247

def vr(a, n=4):
    return f"v[{a}:{a+n-1}]"

HEADER = """; out = x + (attention(LN(x)) @ wo) * silu(swiglu(LN(x))) in one launch: 256 workgroups of 8 waves, one per CU.
; The last sums go through returning f32 atomic adds whose 64-byte request also carries a count; the last adder writes the output."""

def gen(stamps=False, nt="nt", est=False, force_global=False, notail=False,
        b0=8, fill=2, warm=3, fb=7, Wl=(5, 6, 7), th=(11, 21), rd=(8, 11), Wend=None, nend=24, pp=True, mpat=0, amat=0, skipA=False, pj=None, at=True, dA=5, bias=(0, 0), nob2=False):
    A = Asm()
    a = A
    Wmax = max(Wl[2], Wend or 0)
    assert Wmax <= 9
    def c(text):
        a("; " + text)
    def estamp(i):
        if stamps and est:
            a(f"s_memrealtime s[{72+2*i}:{73+2*i}]")
    def stamp(i):
        if stamps and (not est or i in (0, 1, 2, 3, 13, 14)):
            a(f"s_memrealtime s[{72+2*i}:{73+2*i}]")
    def srd(dst, ptr, nbytes):
        d = int(dst[2:dst.index(":")])
        a(f"s_mov_b64 s[{d}:{d+1}], s[{ptr}:{ptr+1}]")
        a(f"s_mov_b32 s{d+2}, {nbytes}")
        a(f"s_mov_b32 s{d+3}, 0x20000")
    def red8(regs, op="add_f32"):
        for ctl in ("quad_perm:[1,0,3,2]", "quad_perm:[2,3,0,1]", "row_half_mirror"):
            for r in regs:
                a(f"v_{op}_dpp v{r}, v{r}, v{r} {ctl} {DPP}")
    def red_hi(r, t, op="add"):
        a(f"v_{op}_f32_dpp v{r}, v{r}, v{r} row_ror:8 {DPP}")
        a(f"v_mov_b32 v{t}, v{r}")
        a(f"v_permlane16_swap_b32 v{r}, v{t}")
        a(f"v_{op}_f32 v{r}, v{r}, v{t}")
        a(f"v_mov_b32 v{t}, v{r}")
        a(f"v_permlane32_swap_b32 v{r}, v{t}")
        a(f"v_{op}_f32 v{r}, v{r}, v{t}")
    def rnd1(r):
        a(f"v_cvt_pk_bf16_f32 v{r}, v{r}, v{r}")
        a(f"v_lshlrev_b32 v{r}, 16, v{r}")
    def rnd2(r0, r1):
        a(f"v_cvt_pk_bf16_f32 v{r1}, v{r0}, v{r1}")
        a(f"v_lshlrev_b32 v{r0}, 16, v{r1}")
        a(f"v_and_b32 v{r1}, 0xffff0000, v{r1}")
    def cvtA(dst, val):
        a(f"v_cvt_pk_bf16_f32 v{dst+3}, v{val}, v{val}")
    def andA(dst):
        for w in range(4):
            a(f"v_and_b32 v{dst+w}, v{vM[w]}, v{dst+3}")
    def mkA(dst, val):
        cvtA(dst, val); andA(dst)
    def mfma(d, aa, b, first=False):
        a(f"v_mfma_f32_16x16x32_bf16 {vr(d)}, {vr(aa)}, {vr(b)}, {'0' if first else vr(d)}")
    def lane_consts():
        a(f"v_and_b32 v28, 1, {vC}")
        a("v_lshlrev_b32 v28, 4, v28")
        a("v_mov_b32 v29, 0xffff")
        a("v_lshlrev_b32 v28, v28, v29")
        a(f"v_lshrrev_b32 v29, 1, {vC}")
        for w in range(4):
            a(f"v_cmp_eq_u32 vcc, {w}, v29")
            a(f"v_cndmask_b32 v{vM[w]}, 0, v28, vcc")
        a(f"v_lshrrev_b32 v28, 4, {vL}")
        a("v_lshlrev_b32 v28, 7, v28")
        a(f"v_lshl_add_u32 v{vPUB}, {vC}, 4, v28")
    lab = [0]
    def poll(body, check, sleep=0):
        lab[0] += 1
        n = lab[0]
        mark = len(A.items)
        a(f"s_mov_b32 {sCNT}, {BOUND}")
        a(f"Lpoll{n}:")
        body()
        if A.items[mark + 2].startswith("ds_read"): A.items[mark] = f"s_mov_b32 {sCNT}, 0x4000000"
        check()
        a(f"s_cbranch_vccz Lpdone{n}")
        if sleep: a(f"s_sleep {sleep}")
        a(f"s_sub_u32 {sCNT}, {sCNT}, 1")
        a(f"s_cbranch_scc0 Lpoll{n}")
        a(f"Lpdone{n}:")
    def chk_invalid(regs, t):
        regs = list(regs)
        a(f"v_max3_u32 v{t}, v{regs[0]}, v{regs[1]}, v{regs[2]}")
        i = 3
        while i < len(regs):
            if i + 1 < len(regs):
                a(f"v_max3_u32 v{t}, v{t}, v{regs[i]}, v{regs[i+1]}"); i += 2
            else:
                a(f"v_max_u32 v{t}, v{t}, v{regs[i]}"); i += 1
        a(f"v_cmp_eq_u32 vcc, -1, v{t}")
    def silu(r, t):
        a(f"v_mul_f32 v{t}, 0xbfb8aa3b, v{r}")
        a(f"v_exp_f32 v{t}, v{t}")
        a(f"v_add_f32 v{t}, 1.0, v{t}")
        a(f"v_rcp_f32 v{t}, v{t}")
        a(f"v_mul_f32 v{r}, v{r}, v{t}")
    def comb2(d, e):
        for r in range(4): a(f"v_permlane32_swap_b32 v{d+r}, v{e+r}")
        for r in range(4): a(f"v_add_f32_dpp v{d+r}, v{e+r}, v{d+r} row_ror:8 {DPP}")
    def set_exec(lo, hi):
        a(f"s_mov_b32 exec_lo, {lo}")
        a(f"s_mov_b32 exec_hi, {hi}")
    def exec_all():
        a("s_mov_b64 exec, -1")
    def pad(k, ret, inline=False):
        if not (warm & (1 if k <= 3 else 2)): return
        if inline: a(f"s_branch L_po{k}")
        c("an idle wave passes through here early so that the instruction cache holds the next KiB when it is needed")
        a(f"L_pad{k}:")
        a(f"s_branch {ret}")
        if inline: a(f"L_po{k}:")
    def rank_issue(off):
        c("how many members of the team have passed this point already; then say that this one has")
        a("s_mov_b32 exec_hi, 0")
        a(f"s_add_u32 s6, s13, {off}")
        a(f"buffer_load_ubyte v243, {vL}, {sWS}, s6 offen sc1")
        a("s_mov_b32 exec_lo, 1")
        a(f"s_add_u32 s6, s6, {sI}")
        a("v_mov_b32 v241, 1")
        a(f"buffer_store_byte v241, off, {sWS}, s6")
        exec_all()
    def rank_use(wait=True, bias=0):
        c("level 1: ahead (fewer loads in flight), 0: in the middle, 2: behind (more loads in flight)")
        if wait: a("s_waitcnt vmcnt(1)")
        a("v_cmp_ne_u32 s[6:7], 0, v243")
        a("v_mov_b32 v243, 0")
        a("s_bcnt1_i32_b32 s6, s6")
        if bias:
            a(f"s_cmp_lt_u32 {sI}, 15")
            a(f"s_cselect_b32 s7, {bias}, {-bias}")
            a("s_add_i32 s6, s6, s7")
        a(f"s_cmp_ge_i32 s6, {th[1]}")
        a("s_cselect_b32 s7, 2, 0")
        a(f"s_cmp_lt_i32 s6, {th[0]}")
        a("s_cselect_b32 s7, 1, s7")
        a("v_mov_b32 v241, s7")
        a(f"ds_write_b32 v243, v241 offset:{L_LVL}")
    def andA4(dst, src, k, ws=range(4)):
        for w in ws:
            a(f"v_and_b32_dpp v{dst+w}, v{src}, v{vM[w]} quad_perm:[{k},{k},{k},{k}] {DPP}")
    def dots(gs):
        for i in range(12):
            for g in gs:
                a(f"v_dot2c_f32_bf16 v{vS+g}, v{vK + 12*g + i}, v{vQ+i}")
    def score_post(gs):
        red8([vS + g for g in gs])
        for j in range(0, len(gs), 2): rnd2(vS + gs[j], vS + gs[j+1])
        for g in gs: a(f"v_mul_f32 v{vS+g}, {SCALE}, v{vS+g}")
        for j in range(0, len(gs), 2): rnd2(vS + gs[j], vS + gs[j+1])
    def end_wave():
        if stamps: a("s_branch L_dump")
        else: a("s_endpgm")
    def zero_stamps():
        if stamps and not est:
            for j in range(1, 15): a(f"s_mov_b64 s[{72+2*j}:{73+2*j}], 0")

    A.raw(f"; @launch grid=(256,1,1) block=(512,1,1) lds={LDS_BYTES}")
    A.raw(HEADER)
    A.raw('.amdgcn_target "amdgcn-amd-amdhsa--gfx950"')
    A.raw(".text")
    A.raw(f".globl {KNAME}")
    A.raw(".p2align 12")
    A.raw(".p2align 8")
    A.raw(f".type {KNAME},@function")
    a(f"{KNAME}:")
    stamp(0)
    a("s_load_dwordx2 s[40:41], s[0:1], 8")
    a("s_load_dwordx2 s[44:45], s[0:1], 16")
    a("s_load_dwordx16 s[16:31], s[0:1], 0")
    a("s_load_dwordx8 s[32:39], s[0:1], 64")
    a("v_lshrrev_b32 v1, 6, v0")
    a("s_cmpk_ge_u32 s2, 256")
    a("s_cbranch_scc1 L_end")
    a(f"v_readfirstlane_b32 {sWAVE}, v1")
    a("v_and_b32 v0, 63, v0")
    a(f"v_lshrrev_b32 {vR}, 3, {vL}")
    a(f"v_and_b32 {vC}, 7, {vL}")
    a(f"s_and_b32 {sX8}, s2, 7")
    a(f"s_lshr_b32 {sI}, s2, 3")
    a("s_lshr_b32 s6, s2, 7")
    a(f"s_lshl1_add_u32 s8, {sX8}, s6")
    a(f"s_and_b32 s9, {sI}, 15    ; slice")
    a("s_mov_b32 s42, 402653184")
    a("s_mov_b32 s43, 0x20000")
    a(f"s_cmp_eq_u32 {sWAVE}, 7")
    a("s_cbranch_scc1 L_w7")
    a(f"s_cmp_ge_u32 {sWAVE}, 4")
    a("s_cbranch_scc1 L_late")

    c("---- waves 0-3 at the start: members 0-29 fetch their tile of w2 into LDS")
    zero_stamps()
    a(f"s_cmp_ge_u32 {sI}, 30")
    a("s_cbranch_scc1 L_ann")
    a(f"s_mul_i32 s13, {sI}, 52")
    a("s_lshr_b32 s13, s13, 8")
    a("s_mul_i32 s12, s13, 5")
    a(f"s_sub_u32 s12, {sI}, s12")
    a("s_lshl_b32 s12, s12, 8")
    a(f"s_mul_i32 s10, {sX8}, 6")
    a("s_add_u32 s10, s10, s13")
    a("s_lshr_b32 s10, s10, 1")
    a("s_and_b32 s13, s13, 1")
    a("s_lshl4_add_u32 s10, s10, s13")
    a(f"s_lshl1_add_u32 s10, {sWAVE}, s10")
    a("s_mulk_i32 s10, 5120")
    a("s_add_u32 s10, s10, s12")
    a(f"v_and_b32 v30, 8, {vL}")
    a(f"v_lshrrev_b32 v29, 4, {vL}")
    a("v_lshl_add_u32 v30, v30, 2, v29")
    a("v_mul_u32_u24 v30, 1280, v30")
    a(f"v_lshl_add_u32 v30, {vC}, 4, v30")
    a("s_mov_b32 s62, 1966080")
    a("s_mov_b32 s63, s43")
    a(f"s_lshl_b32 s13, {sWAVE}, 11")
    a(f"s_add_u32 m0, s13, {L_W2}")
    a("s_waitcnt lgkmcnt(0)")
    a("s_mov_b64 s[60:61], s[32:33]")
    a(f"buffer_load_dwordx4 v30, {sBB}, s10 offen {nt} lds")
    a(f"s_add_u32 m0, s13, {L_W2 + 896}")
    a(f"buffer_load_dwordx4 v30, {sBB}, s10 offen offset:128 {nt} lds")
    a("L_e3:")
    if warm & 1:
        for k in (1, 2, 3):
            a(f"s_cmp_eq_u32 {sWAVE}, {k}")
            a(f"s_cbranch_scc1 L_pad{k}")
    a("s_branch L_e0")
    c("wave 0 of member 31 zeroes the team's roll-call line, then announces its XCD through d_debug")
    a("L_ann:")
    a(f"s_sub_u32 s10, {sI}, {sWAVE}")
    a("s_cmp_lg_u32 s10, 31")
    a("s_cbranch_scc1 L_e3")
    a("s_setprio 3")
    a("s_getreg_b32 s62, hwreg(HW_REG_XCC_ID, 0, 4)")
    a(f"s_mul_i32 s13, {sX8}, {CTS}")
    a(f"s_add_u32 s13, s13, {CT}")
    a(f"s_lshl_b32 s12, {sX8}, 5")
    a("s_add_u32 s62, s62, 1")
    a(f"v_lshlrev_b32 v28, 3, {vL}")
    a("v_mov_b32 v30, 0")
    a("v_mov_b32 v31, 0")
    a(f"s_mov_b32 s50, {WS_USED}")
    a("s_mov_b32 s51, s43")
    a("s_waitcnt lgkmcnt(0)")
    a("s_mov_b64 s[48:49], s[38:39]")
    a(f"buffer_store_dwordx2 v[30:31], v28, {sWS}, s13 offen")
    a("s_waitcnt vmcnt(0)")
    a("s_atomic_add s62, s[36:37], s12")
    a("s_setprio 0")
    a("@@start_end")
    a("L_e0:")
    estamp(4)
    lane_consts()
    a("s_barrier    ; barrier 0")
    stamp(13)

    c("---- K pass, scores, V pass: 8 groups of 8 keys per wave; waves 4-7 run it one barrier behind waves 0-3")
    a("L_stream:")
    a(f"s_and_b32 s11, {sWAVE}, 3")
    a("s_mul_i32 s8, s8, 12582912")
    a("s_lshl2_add_u32 s11, s9, s11")
    a(f"s_add_u32 s8, s8, {28672*384}")
    a("s_mulk_i32 s11, 3072")
    a(f"v_mul_u32_u24 {vKV}, 384, {vR}")
    a("s_add_u32 s8, s8, s11")
    a(f"v_lshl_add_u32 {vKV}, {vC}, 4, {vKV}")
    a(f"s_mov_b32 s10, 208896")
    a("s_mov_b64 s[46:47], s[42:43]")
    a("s_waitcnt lgkmcnt(0)")
    def kv_load(which, g):
        base, s = (vK, sK) if which == "k" else (vV, sV)
        for i in range(3):
            n = 3*g + i
            if fb and (n == Wl[0] or n in rd):
                a("s_waitcnt lgkmcnt(0)")
                a("v_readfirstlane_b32 s12, v242")
                a("s_cmp_lg_u32 s12, 2")
                a("s_cselect_b64 vcc, -1, 0")
            if fb and Wl[0] <= n < nend:
                k = f"{which}{n}"
                a("s_cmp_eq_u32 s12, 1")
                a(f"s_cbranch_scc0 Lw{k}a")
                a(f"s_waitcnt vmcnt({Wl[0]-1})")
                a(f"Lw{k}a:")
                a(f"s_cbranch_vccz Lw{k}b")
                a(f"s_waitcnt vmcnt({Wl[1]-1})")
                a(f"Lw{k}b:")
                if n >= Wl[2]: a(f"s_waitcnt vmcnt({Wl[2]-1})")
            elif n >= Wl[1]: a(f"s_waitcnt vmcnt({(Wend if n >= nend else Wl[1])-1})")
            a(f"buffer_load_dwordx4 {vr(base + 12*g + 4*i)}, {vKV}, {s}, {OFF[g]} offen offset:{i*128} {nt}")
            if fb and (n == 0 or n + 1 in rd):
                a("v_mov_b32 v242, 0")
                a(f"ds_read_b32 v242, v242 offset:{L_LVL}")
            if which == "k" and n == 4:
                srd(sWS, 38, WS_USED)
                a(f"s_mul_i32 s13, {sX8}, {CTS}")
                a(f"s_add_u32 s13, s13, {CT}")
                a(f"v_lshlrev_b32 v29, 2, {vC}")
            if fill and which == "v":
                for j in range(n*fill, min(8, (n+1)*fill)): mkA(vK + 4*j, vS + j)
        if which == "k" and g < 7:
            a(f"s_cmp_eq_u32 s9, {15-g}")
            a("s_cselect_b32 s11, 12288, s10")
            a(f"s_add_u32 {OFF[g+1]}, {OFF[g]}, s11")
    c(f"loads in flight per wave: {Wl[0]}, {Wl[1]} or {Wl[2]} by level (s12 / vcc)")
    for g in range(8):
        kv_load("k", g)
        if g == 6:
            a("v_mov_b32 v31, 0")
            a(f"ds_read_b32 v27, v31 offset:{L_MODE}")
    stamp(6)
    a(f"s_cmp_eq_u32 {sWAVE}, 0")
    a("s_waitcnt lgkmcnt(0)")
    a("v_readfirstlane_b32 s27, v27")
    a("s_cbranch_scc0 L_x1")
    a("s_mov_b64 exec, 0xff")
    a(f"buffer_load_dword v27, v29, {sWS}, s13 offen sc1")
    exec_all()
    a("L_x1:")
    def who1():
        a(f"s_lshl2_add_u32 s7, {sWAVE}, s27")
        if fb & 3 == 3: a("s_and_b32 s7, s7, 15")
        a(f"s_cmp_lg_u32 s7, {26 if fb & 3 == 2 else 10}")
    if fb & 3:
        who1()
        a("s_cbranch_scc1 L_x2")
        a(f"s_lshl3_add_u32 s7, {sWAVE}, 16")
        rank_issue("s7")
        a("L_x2:")
        a(f"s_cmp_eq_u32 {sWAVE}, 0")
    a("s_barrier    ; barrier X1")
    a("s_cbranch_scc1 L_qg")
    if fb & 3:
        who1()
        a("s_cbranch_scc1 L_qw")
        rank_use(bias=bias[0])
    a("L_qw:")
    a("v_mov_b32 v31, 0")
    def body():
        a(f"ds_read_b32 v28, v31 offset:{L_FQ}")
        a("s_waitcnt lgkmcnt(0)")
    poll(body, lambda: a("v_cmp_eq_u32 vcc, 0, v28"), 2)
    stamp(1)
    c("scores (bf16-rounded like the reference), the wave's max, p = exp(s - max), row sum")
    a("v_readfirstlane_b32 s27, v28")
    a(f"s_lshr_b32 s7, {sWAVE}, 2")
    a("s_mul_i32 s11, s7, 384")
    a(f"v_lshl_add_u32 v28, {vC}, 4, s11")
    for i in range(3):
        a(f"ds_read_b128 {vr(vQ + 4*i)}, v28 offset:{L_Q + 128*i}")
    a(f"s_lshl_b32 s7, s7, 5")
    a(f"s_add_u32 s7, s7, {sI}")
    a(f"s_and_b32 s11, {sWAVE}, 3")
    a("s_lshl2_add_u32 s7, s7, s11")
    a(f"s_mul_i32 s11, {sX8}, {TEAM}")
    a("s_lshl3_add_u32 s7, s7, s11")
    a(f"s_add_u32 s12, s7, {TML}")
    for j in range(8):
        a(f"v_mov_b32 v{vS+j}, 0")
    a("s_waitcnt vmcnt(0) lgkmcnt(0)")
    dots(range(8)); score_post(list(range(8)))
    a(f"v_max3_f32 v244, v{vS}, v{vS+1}, v{vS+2}")
    a(f"v_max3_f32 v244, v244, v{vS+3}, v{vS+4}")
    a(f"v_max3_f32 v244, v244, v{vS+5}, v{vS+6}")
    a(f"v_max_f32 v244, v244, v{vS+7}")
    red_hi(244, 28, "max")
    pad(1, "L_e0", True)
    for j in range(8): a(f"v_sub_f32 v{vS+j}, v{vS+j}, v244")
    for j in range(8): a(f"v_mul_f32 v{vS+j}, {LOG2E}, v{vS+j}")
    for j in range(8): a(f"v_exp_f32 v{vS+j}, v{vS+j}")
    a(f"v_add_f32 v9, v{vS}, v{vS+1}")
    for j in range(2, 8): a(f"v_add_f32 v9, v9, v{vS+j}")
    red_hi(9, 28, "add")
    a(f"s_mul_i32 s7, {sWAVE}, {2*ROWS}")
    a(f"v_lshrrev_b32 v29, 5, {vL}")
    a(f"v_mul_u32_u24 v29, {ROWS}, v29")
    a("v_add_u32 v29, s7, v29")
    a(f"v_and_b32 v28, 16, {vL}")
    a(f"v_lshl_add_u32 v28, {vC}, 5, v28")
    a("v_add_u32 v30, v28, v29")
    a("v_mov_b32 v8, v244")
    a("s_cmp_eq_u32 s27, 1")
    a("s_mov_b64 exec, 1")
    a("s_cbranch_scc0 L_mlg")
    a(f"buffer_store_dwordx2 v[8:9], off, {sWS}, s12")
    a("L_mld:")
    exec_all()
    if not fill:
        for g in range(8): mkA(vK + 4*g, vS + g)
    stamp(2)
    a("s_barrier    ; barrier X2")
    def pv(g, wait):
        for i in range(3):
            k = 23 - 3*g - i
            if wait and k < Wmax: a(f"s_waitcnt vmcnt({k})")
            mfma(vD + 4*i, vK + 4*g, vV + 12*g + 4*i, g == 0)
    for g in range(8):
        kv_load("v", g)
        if 3 <= g < 7: pv(g - 3, False)
    stamp(7)
    if fb & 4:
        a(f"s_lshl2_add_u32 s7, {sWAVE}, s27")
        a("s_cmp_lg_u32 s7, 9")
        a("s_cbranch_scc1 L_x4")
        rank_issue(96)
        a("L_x4:")
        a("s_cmp_lg_u32 s7, 9")
    a("s_barrier    ; barrier X3")
    if fb & 4:
        a("s_cbranch_scc1 L_x3")
        rank_use(bias=bias[1])
        a("L_x3:")
    stamp(8)
    for g in range(4, 8): pv(g, True)
    stamp(9)
    set_exec("0x00ff00ff", "0xff00ff00")
    a(f"s_cmp_lt_u32 {sWAVE}, 4")
    for i in range(3):
        a(f"ds_write_b128 v30, {vr(vD + 4*i)} offset:{L_ROW + 256*i}")
    a("s_cbranch_scc1 L_early")
    a("s_waitcnt lgkmcnt(0)")
    a("s_barrier    ; barrier B")
    stamp(10)
    if stamps and not notail:
        a(f"s_cmp_ge_u32 {sI}, 30")
        a("s_cbranch_scc1 L_done")
        a("s_barrier")
        a("s_barrier")
    end_wave()
    a("L_mlg:")
    a(f"buffer_store_dwordx2 v[8:9], off, {sWS}, s12 sc1")
    a("s_branch L_mld")

    a("@@early_begin")
    c("---- waves 0-3 after their pass: members 0-29 own a tile of 128 wo rows (32 w2 rows) x 128 columns")
    a(".p2align 12")
    pad(4, "L_lq2")
    a("L_early:")
    a("s_mov_b64 exec, 1")
    a("v_mov_b32 v28, 0")
    a("v_mov_b32 v29, 1")
    a("s_waitcnt lgkmcnt(0)")
    a(f"ds_add_u32 v28, v29 offset:{L_CNT}")
    exec_all()
    a("s_mov_b32 s14, s27")
    srd(sA, 24, 7864320)
    srd(sX, 16, 1280)
    srd(sOUT, 34, 1280)
    a(f"v_lshlrev_b32 v31, 4, {vL}")
    a(f"s_mul_i32 s12, {sX8}, {TEAM}")
    a(f"s_mul_i32 s13, {sI}, 52")
    a("s_lshr_b32 s13, s13, 8")
    a("s_mul_i32 s7, s13, 5")
    a(f"s_sub_u32 s7, {sI}, s7")
    a(f"s_mul_i32 s30, s7, {9*128}")
    a(f"s_add_u32 s30, s30, {AM}")
    a(f"s_add_u32 s31, s30, {AS-AM}")
    a(f"s_lshl2_add_u32 s6, s13, {sWAVE}")
    a("s_lshl_b32 s7, s7, 8")
    a(f"v_lshlrev_b32 v250, 4, {vC}")
    a(f"v_and_b32 v28, 8, {vL}")
    a(f"v_lshrrev_b32 v29, 4, {vL}")
    a("v_lshl_add_u32 v28, v28, 1, v29")
    a("v_mul_u32_u24 v248, 1280, v28")
    a("v_add_u32 v248, v248, v250")
    a(f"v_mul_u32_u24 v249, {SLOT}, {vR}")
    a("v_add_u32 v249, v249, v250")
    a("s_mul_i32 s10, s6, 43")
    a("s_lshr_b32 s10, s10, 8")
    a("s_and_b32 s11, s10, 1")
    a(f"s_mul_i32 s11, s11, {16*SLOT - 768}")
    a("s_lshr_b32 s10, s10, 1")
    a("s_mulk_i32 s10, 768")
    a("s_sub_u32 s11, s11, s10")
    a("s_lshl_b32 s10, s6, 7")
    a("s_add_u32 s11, s11, s10")
    a("s_add_u32 s11, s11, s12    ; o soffset")
    a(f"s_mul_i32 s8, {sX8}, 12")
    a("s_add_u32 s8, s8, s6")
    a("s_cmp_ge_u32 s6, 12")
    a("s_cselect_b32 s10, 84, 0")
    a("s_add_u32 s8, s8, s10")
    a("s_mul_i32 s8, s8, 40960")
    a("s_add_u32 s8, s8, s7")
    a(f"s_mul_i32 s6, {sWAVE}, 1536")
    a(f"v_lshrrev_b32 v28, 5, {vL}")
    a("v_mul_u32_u24 v28, 768, v28")
    a("v_add_u32 v28, s6, v28")
    a("v_mov_b32 v29, 0x3e000000")
    a(f"ds_write_b32 v28, v29 offset:{L_TS+512}")
    a(f"v_and_b32 v29, 0xff, v{vPUB}")
    a("v_add_u32 v246, v28, v29")
    c("lane map of the finishing step: segment = 3*wave + (lane>>4), n = 15*segment + (lane&15), lane 15 of a row counts")
    a(f"s_mul_i32 s6, {sWAVE}, 3")
    a(f"v_lshrrev_b32 v28, 4, {vL}")
    a("v_add_u32 v28, s6, v28")
    a(f"v_and_b32 v29, 15, {vL}")
    a("v_mad_u32_u24 v252, v28, 15, v29")
    a("v_lshlrev_b32 v253, 2, v29")
    a("v_min_u32 v28, 8, v28")
    a("v_lshl_add_u32 v253, v28, 7, v253")
    if skipA:
        a(f"s_cmp_lt_u32 {sI}, 15")
        a("s_cselect_b32 s6, 0x40000000, 0")
        a(f"s_cmp_eq_u32 {sWAVE}, 3")
        a("s_cselect_b32 s6, 0x40000000, s6")
        a("v_add_u32 v251, s6, v253")
    a("v_cmp_gt_u32 vcc, 0x80, v252")
    a("s_and_b32 s26, vcc_lo, 0x7fff7fff")
    a("s_and_b32 s27, vcc_hi, 0x7fff")
    a("s_or_b32 s28, s26, 0x80008000")
    a("s_or_b32 s29, s27, 0x8000")
    a("v_cmp_eq_u32 vcc, 15, v29")
    a("v_lshrrev_b32 v28, 6, v252")
    a("v_bfe_u32 v29, v252, 2, 3")
    a("v_lshl_add_u32 v28, v28, 3, v29")
    a("v_bfe_u32 v29, v252, 5, 1")
    a("v_lshl_add_u32 v28, v28, 1, v29")
    a("v_and_b32 v29, 3, v252")
    a("v_lshl_add_u32 v28, v28, 2, v29")
    a("v_lshl_add_u32 v254, v28, 1, s7")
    a("v_mov_b32 v28, 0x80")
    a("v_cndmask_b32 v252, v252, v28, vcc")
    a("v_lshlrev_b32 v252, 2, v252")
    a(f"buffer_load_ushort v255, v254, {sX}, 0 offen")
    a(f"s_cmp_ge_u32 {sWAVE}, 2")
    a("s_cbranch_scc1 L_e2")
    c("wave 1 hands over the partial of waves 0-3 now, wave 0 that of waves 4-7 later; both scale by exp(max_w - max) / sum")
    a(f"s_xor_b32 s6, {sWAVE}, 1")
    a(f"s_lshr_b32 s10, {sI}, 4")
    a("s_lshl1_add_u32 s10, s6, s10")
    a("s_lshl_b32 s10, s10, 9")
    a("s_add_u32 s10, s10, s12")
    a(f"s_add_u32 s10, s10, {TML}")
    a(f"s_lshl2_add_u32 s6, {sI}, s6")
    a("s_mulk_i32 s6, 768")
    a("s_add_u32 s6, s6, s12")
    a(f"v_lshlrev_b32 v30, 3, {vL}")
    def body():
        a(f"buffer_load_dwordx2 v[8:9], v30, {sWS}, s10 offen sc1")
        a("s_waitcnt vmcnt(0)")
        a("v_max_u32 v28, v8, v9")
    poll(body, lambda: a("v_cmp_eq_u32 vcc, -1, v28"), 2)
    a("v_mov_b32 v10, v8")
    red8([10], "max_f32"); red_hi(10, 28, "max")
    a("v_sub_f32 v8, v8, v10")
    a(f"v_mul_f32 v8, {LOG2E}, v8")
    a("v_exp_f32 v8, v8")
    a("v_mul_f32 v9, v9, v8")
    red8([9]); red_hi(9, 28)
    a("v_rcp_f32 v9, v9")
    a("s_lshl_b32 s10, s9, 2")
    a("v_mul_f32 v8, v8, v9")
    for w in range(4):
        a(f"v_readlane_b32 s{60+2*w}, v8, s10")
        if w < 3: a("s_add_u32 s10, s10, 1")
    def rows_sum(r0):
        for j in range(8):
            a(f"ds_read_b128 {vr(160 + 4*j)}, v31 offset:{L_ROW + ROWS*(r0+j)}")
        for w in range(4):
            a(f"s_waitcnt lgkmcnt({0 if stamps else 6-2*w})")
            for h in (0, 2):
                a(f"v_pk_add_f32 {vr(160+8*w+h,2)}, {vr(160+8*w+h,2)}, {vr(164+8*w+h,2)}")
            for h in (0, 2):
                if w == 0: a(f"v_pk_mul_f32 {vr(156+h,2)}, {vr(160+h,2)}, s[60:61] op_sel_hi:[1,0]")
                else: a(f"v_pk_fma_f32 {vr(156+h,2)}, {vr(160+8*w+h,2)}, s[{60+2*w}:{61+2*w}], {vr(156+h,2)} op_sel_hi:[1,0,1]")
    a(f"s_cmp_eq_u32 {sWAVE}, 0")
    a("s_cbranch_scc1 L_e2")
    a("v_mov_b32 v29, 0")
    def body():
        a(f"ds_read_b32 v28, v29 offset:{L_CNT}")
        a("s_waitcnt lgkmcnt(0)")
    poll(body, lambda: a("v_cmp_gt_u32 vcc, 4, v28"), 2)
    a("s_mov_b32 exec_hi, 0xffff")
    rows_sum(0)
    a("s_cmp_eq_u32 s14, 1")
    a("s_cbranch_scc0 L_pub1g")
    a(f"buffer_store_dwordx4 v[156:159], v31, {sWS}, s6 offen offset:{SO}")
    a("L_pub1d:")
    exec_all()
    a("L_e2:")
    a(f"s_cmp_ge_u32 {sI}, 30")
    a("s_cbranch_scc1 L_notile")
    a(f"s_cmp_eq_u32 {sWAVE}, 3")
    a("s_cbranch_scc1 L_mlp2")
    def mp_add(lbl):
        if lbl:
            a(f"s_cmp_eq_u32 {sWAVE}, 3")
            a(f"s_cbranch_scc1 {lbl}")
        a("s_mov_b64 exec, s[28:29]")
        a("s_waitcnt lgkmcnt(0)")
        if not notail: a(f"buffer_atomic_add_f32 v26, v253, {sWS}, s30 offen")
        exec_all()
        if lbl: a(f"{lbl}:")
    a("s_waitcnt lgkmcnt(0)")
    a("s_barrier    ; barrier A")
    stamp(3)
    a(f"ds_read_b32 v26, v252 offset:{L_TM}")
    if mpat == 0: mp_add(None)
    def o_loads(b):
        a(f"buffer_load_dwordx4 {vr(b)}, v249, {sWS}, s11 offen offset:{SO} sc1")
        a(f"buffer_load_dwordx4 {vr(b+4)}, v249, {sWS}, s10 offen offset:{SO} sc1")
    def o_check(b):
        a(f"v_pk_add_f32 v[16:17], {vr(b,2)}, {vr(b+4,2)}")
        a(f"v_pk_add_f32 v[18:19], {vr(b+2,2)}, {vr(b+6,2)}")
        a(f"v_max3_u32 v28, v{b}, v{b+1}, v{b+2}")
        a(f"v_max3_u32 v29, v{b+3}, v{b+4}, v{b+5}")
        a("v_permlane32_swap_b32 v16, v18")
        a("v_permlane32_swap_b32 v17, v19")
        a("v_pk_add_f32 v[16:17], v[16:17], v[18:19]")
        a(f"v_max3_u32 v28, v28, v{b+6}, v{b+7}")
        a("v_max_u32 v28, v28, v29")
        a("v_permlane16_swap_b32 v16, v17")
        a("v_add_f32 v16, v16, v17")
        a("v_cmp_eq_u32 vcc, -1, v28")
    def wo_load(k):
        rb, li = k // 2, k % 2
        a(f"buffer_load_dwordx4 {vr(vK + 8*rb + 4*li)}, v248, {sA}, s8 offen offset:{li*128} {nt}")
        if li and rb < 3: a("s_addk_i32 s8, 5120")
    a("L_ea:")
    a(f"s_add_u32 s10, s11, {8*SLOT}")
    if at:
        a(f"s_cmp_ge_u32 {sI}, 15")
        a("s_cbranch_scc1 L_eb")
        o_loads(192)
        a("L_eb:")
    for k in range(8 - (dA if at else 0)): wo_load(k)
    if at and dA:
        a(f"s_cmp_lt_u32 {sI}, 15")
        a("s_cbranch_scc1 L_ec")
        for k in range(8 - dA, 8): wo_load(k)
        a("L_ec:")
    if mpat == 1: mp_add("L_mp")
    a("s_waitcnt lgkmcnt(0)")
    a(f"s_cmp_eq_u32 {sWAVE}, 0")
    a("s_cbranch_scc1 L_pub")
    a("s_barrier    ; barrier B")
    stamp(4)
    if pj is not None: a(f"s_waitcnt vmcnt({pj})")
    a("s_branch L_og")

    pad(5, "L_lq2")
    a("L_pub:")
    a("s_mov_b32 exec_hi, 0xffff")
    a("s_cmp_eq_u32 s14, 1")
    a("s_barrier    ; barrier B")
    stamp(4)
    rows_sum(8)
    if not notail:
        a("s_cbranch_scc0 L_pubg")
        a(f"buffer_store_dwordx4 v[156:159], v31, {sWS}, s6 offen offset:{SO}")
    a("L_pubd:")
    exec_all()
    a(f"s_cmp_ge_u32 {sI}, 30")
    a("s_cbranch_scc1 L_done")
    if pj is not None: a(f"s_waitcnt vmcnt({pj+1})")
    c("gather the sixteen partials of 32 attention outputs, add, multiply with the wo rows")
    a("L_og:")
    a(f"s_mov_b32 {sCNT}, {BOUND}")
    if notail:
        a("s_waitcnt vmcnt(0)")
        stamp(11)
        end_wave()
    if at: a(f"s_cmp_lt_u32 {sI}, 15")
    if nob2: a("s_cbranch_scc1 L_at")
    a("s_barrier    ; barrier B2")
    if at and not nob2: a("s_cbranch_scc1 L_at")
    a("L_bt:")
    if mpat == 2: mp_add("L_mp")
    stamp(10)
    if pp:
        o_loads(192)
        if stamps:
            a("s_waitcnt vmcnt(2)")
            stamp(5)
        a("L_poll:")
        a("s_waitcnt vmcnt(0)")
        o_loads(200)
        o_check(192)
        a("s_cbranch_vccz L_got")
        a("s_waitcnt vmcnt(0)")
        o_loads(192)
        o_check(200)
    else:
        a("L_poll:")
        o_loads(192)
        a("s_waitcnt vmcnt(0)")
        o_check(192)
    a("s_cbranch_vccnz L_retry")
    a("L_got:")
    stamp(11)
    a(f"v_add_f32_dpp v16, v16, v16 row_ror:8 {DPP}")
    a("v_cvt_pk_bf16_f32 v16, v16, v16")
    if amat == 0: a(f"buffer_load_dword v15, {'v251' if skipA else 'v253'}, {sWS}, s30 offen sc1")
    a("v_mov_b32_dpp v16, v16 row_shr:4 row_mask:0xf bank_mask:0x6")
    andA4(128, 16, 0)
    for k in range(3):
        andA4(132 + 4*k, 16, k + 1, (0, 1))
        mfma(vD, 128 + 4*k, vK + 8*k, k == 0)
        andA4(132 + 4*k, 16, k + 1, (2, 3))
        mfma(vD + 4, 128 + 4*k, vK + 8*k + 4, k == 0)
    a(f"s_cmp_eq_u32 {sWAVE}, 3")
    mfma(vD, 140, vK + 24)
    mfma(vD + 4, 140, vK + 28)
    a("L_join:")
    set_exec("0x00ff00ff", "0xff00ff00")
    a(f"ds_write_b128 v246, {vr(vD)} offset:{L_TS}")
    a(f"ds_write_b128 v246, {vr(vD+4)} offset:{L_TS+256}")
    a("s_mov_b64 exec, s[28:29]")
    a("s_waitcnt lgkmcnt(0)")
    a("s_barrier    ; barrier C")
    a("s_cbranch_scc1 L_done")
    c("add this tile to the chip-wide sums; whoever adds last finishes the columns")
    for j in range(4):
        a(f"ds_read2st64_b32 {vr(16+2*j,2)}, v252 offset0:{L_TS//256+6*j} offset1:{L_TS//256+6*j+3}")
    a("s_waitcnt lgkmcnt(0)")
    a("v_pk_add_f32 v[16:17], v[16:17], v[18:19]")
    a("v_pk_add_f32 v[20:21], v[20:21], v[22:23]")
    a("v_pk_add_f32 v[16:17], v[16:17], v[20:21]")
    a("v_add_f32 v9, v16, v17")
    a(f"buffer_atomic_add_f32 v9, v253, {sWS}, s31 offen sc0")
    if amat == 1: a(f"buffer_load_dword v15, v253, {sWS}, s30 offen sc1")
    stamp(12)
    a("v_add_f32 v8, v16, v17")
    a("v_lshlrev_b32 v255, 16, v255")
    a(f"s_mov_b32 {sCNT}, {BOUND}")
    if amat == 1:
        a("L_g:")
        a("s_waitcnt vmcnt(0)")
        a("v_cvt_pk_bf16_f32 v14, v15, v15")
        a("v_add_f32 v10, v8, v9")
        a("v_lshlrev_b32 v14, 16, v14")
        a("v_mul_f32 v17, 0xbfb8aa3b, v14")
        a("v_exp_f32 v17, v17")
        a("v_cvt_pk_bf16_f32 v11, v10, v10")
        a("v_add_f32 v17, 1.0, v17")
        a("v_rcp_f32 v17, v17")
        a("v_lshlrev_b32 v11, 16, v11")
        a("v_mul_f32 v14, v14, v17")
        a("v_cvt_pk_bf16_f32 v14, v14, v14")
        a(f"v_mov_b32_dpp v16, v15 row_newbcast:15 {DPP}")
        a("v_lshlrev_b32 v14, 16, v14")
        a(f"v_mov_b32_dpp v17, v10 row_newbcast:15 {DPP}")
        a("v_mul_f32 v11, v11, v14")
        a("v_cmp_neq_f32 s[6:7], v16, v17")
        a("v_cvt_pk_bf16_f32 v11, v11, v11")
        a("v_cmp_eq_f32 vcc, 0x42400000, v17")
        a("v_lshlrev_b32 v11, 16, v11")
        a("s_and_b64 s[6:7], s[6:7], vcc")
        a("v_add_f32 v11, v11, v255")
    else:
        a("s_waitcnt vmcnt(1)")
        a("L_g:")
        a(f"v_mov_b32_dpp v16, v15 row_newbcast:15 {DPP}")
        rnd1(15)
        a("v_cmp_neq_f32 vcc, 0x42400000, v16")
        silu(15, 17)
        a("s_mov_b64 s[6:7], vcc")
        rnd1(15)
        a("s_waitcnt vmcnt(0)")
        a("v_add_f32 v10, v8, v9")
        a("v_cvt_pk_bf16_f32 v11, v10, v10")
        a("v_lshlrev_b32 v11, 16, v11")
        a(f"v_mov_b32_dpp v16, v10 row_newbcast:15 {DPP}")
        a("v_mul_f32 v11, v11, v15")
        a("v_cmp_eq_f32 vcc, 0x42400000, v16")
        rnd1(11)
        a("s_and_b64 s[6:7], s[6:7], vcc")
        a("v_add_f32 v11, v11, v255")
    a("s_cbranch_scc1 L_gslow")
    a("L_gok:")
    a("s_and_b64 exec, vcc, s[26:27]")
    a("v_cvt_pk_bf16_f32 v11, v11, v11")
    a("s_cbranch_scc0 L_done")
    a(f"buffer_store_short v11, v254, {sOUT}, 0 offen")
    stamp(13)
    a("L_done:")
    end_wave()
    if at:
        c("tiles of the lower heads asked for their partials before the wo rows, and fetch the last rows after the hand-over")
        a("L_at:")
        for k in range(8 - dA, 8): wo_load(k)
        a("s_waitcnt vmcnt(8)")
        o_check(192)
        a("s_cbranch_vccnz L_bt")
        stamp(11)
        a(f"v_add_f32_dpp v16, v16, v16 row_ror:8 {DPP}")
        a("v_cvt_pk_bf16_f32 v16, v16, v16")
        a("v_mov_b32_dpp v16, v16 row_shr:4 row_mask:0xf bank_mask:0x6")
        for k in range(4): andA4(128 + 4*k, 16, k)
        a(f"s_cmp_eq_u32 {sWAVE}, 3")
        for k in range(8):
            a(f"s_waitcnt vmcnt({7-k})")
            mfma(vD + 4*(k % 2), 128 + 4*(k // 2), vK + 4*k, k < 2)
        a(f"buffer_load_dword v15, v253, {sWS}, s30 offen sc1")
        a("s_branch L_join")
    a("L_retry:")
    a(f"s_sub_u32 {sCNT}, {sCNT}, 1")
    a("s_cbranch_scc0 L_poll")
    a("s_branch L_got")
    a("L_gslow:")
    a(f"s_sub_u32 {sCNT}, {sCNT}, 1")
    a("s_cbranch_scc1 L_gok")
    a(f"buffer_load_dword v15, v253, {sWS}, s30 offen sc1")
    a("s_waitcnt vmcnt(0)")
    a("s_branch L_g")
    a("L_pubg:")
    a(f"buffer_store_dwordx4 v[156:159], v31, {sWS}, s6 offen offset:{SO} sc1")
    a("s_branch L_pubd")
    a("L_pub1g:")
    a(f"buffer_store_dwordx4 v[156:159], v31, {sWS}, s6 offen offset:{SO} sc1")
    a("s_branch L_pub1d")
    a("L_notile:")
    a(f"s_cmp_eq_u32 {sWAVE}, 0")
    a("s_waitcnt lgkmcnt(0)")
    a("s_barrier    ; barrier A")
    a("s_cbranch_scc1 L_pub")
    end_wave()

    c("wave 3: second MLP stage for 32 F rows")
    pad(6, "L_lq2")
    a("L_mlp2:")
    srd(sDBG, 36, 256)
    a("s_lshr_b32 s6, s13, 1")
    a("s_lshl1_add_u32 s13, s6, s13")
    a("s_lshl_b32 s13, s13, 7")
    a("s_add_u32 s13, s13, s12")
    def body():
        a("s_mov_b32 s6, s13")
        for j in range(4):
            a(f"buffer_load_dwordx4 {vr(128+4*j)}, v249, {sWS}, s6 offen offset:256 sc1")
            if j < 3: a(f"s_addk_i32 s6, {8*SLOT}")
        a(f"buffer_load_dword v29, off, {sDBG}, 0 offset:4 sc1")
        a("s_waitcnt vmcnt(0)")
    def chk():
        a("v_cmp_gt_u32 vcc, 8, v29")
        a("v_cndmask_b32 v29, 0, -1, vcc")
        chk_invalid(list(range(128, 144)) + [29], 28)
    poll(body, chk, 4)
    for k in range(8):
        a(f"ds_read_b128 {vr(64 + 4*k)}, v31 offset:{L_W2 + 1024*k}")
    for j in (0, 2):
        a(f"v_pk_add_f32 {vr(128+j,2)}, {vr(128+j,2)}, {vr(132+j,2)}")
        a(f"v_pk_add_f32 {vr(132+j,2)}, {vr(136+j,2)}, {vr(140+j,2)}")
    for b in (128, 132):
        a(f"v_permlane32_swap_b32 v{b}, v{b+2}")
        a(f"v_permlane32_swap_b32 v{b+1}, v{b+3}")
        a(f"v_pk_add_f32 {vr(b,2)}, {vr(b,2)}, {vr(b+2,2)}")
        a(f"v_permlane16_swap_b32 v{b}, v{b+1}")
        a(f"v_add_f32 v{b}, v{b}, v{b+1}")
        a(f"v_add_f32_dpp v{b}, v{b}, v{b} row_ror:8 {DPP}")
    rnd2(128, 132)
    silu(128, 129)
    rnd1(128)
    a("v_mul_f32 v128, v128, v132")
    a("v_cvt_pk_bf16_f32 v128, v128, v128")
    a("v_mov_b32_dpp v128, v128 row_shr:4 row_mask:0xf bank_mask:0x6")
    for j in range(4): andA4(144 + 4*j, 128, j)
    a("v_mov_b32 v28, 0")
    a("v_mov_b32 v29, 1.0")
    a(f"ds_write_b32 v28, v29 offset:{L_TM+512}")
    a("s_waitcnt lgkmcnt(0)")
    for rb in range(4):
        for li in range(2):
            mfma(vD + 4*li, 144 + 4*rb, 64 + 8*rb + 4*li, rb == 0)
    comb2(vD, vD + 4)
    set_exec("0x00ff00ff", "0x00ff00ff")
    a(f"ds_write_b128 v{vPUB}, {vr(vD)} offset:{L_TM}")
    exec_all()
    stamp(5)
    a("s_waitcnt lgkmcnt(0)")
    a("s_barrier    ; barrier A")
    stamp(3)
    a("s_branch L_ea")

    c("---- waves 4-6 at the start: mark this member's share of the team area, LayerNorm, 80 rows of wq and 40 rows of w1 or w3")
    a("@@late_begin")
    a("L_late:")
    estamp(4)
    zero_stamps()
    a("v_mov_b32 v31, 0")
    a(f"v_lshlrev_b32 v30, 2, {vC}")
    a("ds_write_b32 v30, v31    ; flags")
    a("s_add_u32 s8, s8, 16")
    a(f"s_and_b32 s7, {sI}, 7")
    a(f"s_bfe_u32 s10, {sI}, 0x10003")
    a("s_lshl4_add_u32 s6, s6, s10")
    a(f"s_lshl1_add_u32 s6, {sX8}, s6")
    a(f"s_sub_u32 s13, {sWAVE}, 4")
    a(f"s_mul_i32 s14, {sX8}, {TEAM}")
    a(f"s_lshl_b32 s71, {sI}, 7")
    a("s_add_u32 s71, s71, s14")
    a(f"s_add_u32 s71, s71, {TML}")
    a(f"s_mul_i32 s10, {sI}, {SLOT}")
    a("s_add_u32 s14, s14, s10")
    a("s_lshl_b32 s70, s13, 10")
    a("s_add_u32 s70, s70, s14")
    for r in range(4): a(f"v_mov_b32 v{140+r}, -1")
    a(f"v_lshlrev_b32 v25, 4, {vL}")
    a(f"v_mul_u32_u24 v26, 20, {vL}")
    a(f"v_mul_u32_u24 v27, 20, {vR}")
    a(f"v_mul_u32_u24 v30, 122880, {vR}")
    a(f"v_lshl_add_u32 v30, {vC}, 4, v30")
    a("s_mul_i32 s10, s7, 160")
    a("s_mul_i32 s11, s7, 983040")
    a("s_mul_i32 s12, s6, 384")
    a("s_lshl_b32 s13, s13, 7    ; 128*j")
    a("s_add_u32 s11, s11, s12")
    a("s_add_u32 s11, s11, s13")
    a("s_movk_i32 s12, 12288")
    a(f"s_mov_b32 s50, {WS_USED}")
    a("s_mov_b32 s51, 0x20000")
    a("s_mov_b32 s54, 1280")
    a("s_mov_b32 s55, 0x20000")
    a("s_mov_b32 s58, 7864320")
    a("s_mov_b32 s59, 0x20000")
    a(f"s_lshl4_add_u32 s60, {sWAVE}, {sI}")
    a("s_cmpk_lt_u32 s60, 80")
    a("s_waitcnt lgkmcnt(0)")
    a("s_mov_b64 s[48:49], s[38:39]")
    a("s_mov_b64 s[52:53], s[16:17]")
    a("s_mov_b64 s[56:57], s[22:23]")
    estamp(5)
    a(f"buffer_store_dwordx4 v[140:143], v25, {sWS}, s70 offen")
    a("s_cbranch_scc0 L_l1")
    a("s_mov_b64 exec, 0xff")
    a(f"buffer_store_dwordx4 v[140:143], v25, {sWS}, s71 offen")
    exec_all()
    a("L_l1:")
    a(f"buffer_load_dwordx4 v[128:131], v26, {sX}, 0 offen")
    a(f"buffer_load_dword v132, v26, {sX}, 0 offen offset:16")
    a(f"buffer_load_dwordx4 v[134:137], v27, {sX}, s10 offen")
    a(f"buffer_load_dword v138, v27, {sX}, s10 offen offset:16")
    for rb in range(10):
        a(f"buffer_load_dwordx4 {vr(vK + 4*rb)}, v30, {sA}, s11 offen {nt}")
        if rb < 9: a("s_add_u32 s11, s11, s12")
    estamp(6)
    a(f"s_cmp_ge_u32 {sI}, 16")
    a("s_cselect_b64 s[60:61], s[30:31], s[28:29]")
    a("s_mov_b32 s62, 1966080")
    a("s_mov_b32 s63, 0x20000")
    a(f"v_mul_u32_u24 v30, 30720, {vR}")
    a(f"v_lshl_add_u32 v30, {vC}, 4, v30")
    a("s_mul_i32 s11, s7, 245760")
    a(f"s_bfe_u32 s10, {sI}, 0x10003")
    a("s_mul_i32 s12, s10, 15360")
    a("s_add_u32 s11, s11, s12")
    a(f"s_mul_i32 s12, {sX8}, 384")
    a("s_add_u32 s11, s11, s12")
    a("s_add_u32 s11, s11, s13")
    for rb in range(5):
        a(f"buffer_load_dwordx4 {vr(vK + 40 + 4*rb)}, v30, {sBB}, s11 offen offset:{(rb%2)*3072} {nt}")
        if rb % 2 == 1: a("s_addk_i32 s11, 6144")
    estamp(7)
    lane_consts()
    a("s_lshl_b32 s11, s13, 2")
    a(f"v_add_u32 v24, s11, v{vPUB}")
    a("s_waitcnt vmcnt(15)")
    stamp(3)
    for i in range(5):
        a(f"v_lshlrev_b32 v{140+2*i}, 16, v{128+i}")
        a(f"v_and_b32 v{141+2*i}, 0xffff0000, v{128+i}")
    a("v_add_f32 v160, v140, v141")
    for i in range(2, 10): a(f"v_add_f32 v160, v160, v{140+i}")
    red8([160]); red_hi(160, 161)
    a(f"v_mul_f32 v160, {INV640}, v160")
    for i in range(10): a(f"v_sub_f32 v{140+i}, v{140+i}, v160")
    a("v_mul_f32 v162, v140, v140")
    for i in range(1, 10): a(f"v_fmac_f32 v162, v{140+i}, v{140+i}")
    red8([162]); red_hi(162, 161)
    a(f"v_mul_f32 v162, {INV640}, v162")
    rnd2(160, 162)
    a(f"v_add_f32 v162, {EPS}, v162")
    rnd1(162)
    a("v_sqrt_f32 v162, v162")
    rnd1(162)
    a("v_rcp_f32 v162, v162")
    a(f"s_waitcnt vmcnt({b0})")
    a("s_barrier    ; barrier 0")
    for i in range(5):
        a(f"v_lshlrev_b32 v{150+2*i}, 16, v{134+i}")
        a(f"v_and_b32 v{151+2*i}, 0xffff0000, v{134+i}")
    for i in range(10): a(f"v_sub_f32 v{150+i}, v{150+i}, v160")
    for i in range(0, 10, 2): rnd2(150 + i, 151 + i)
    for i in range(10): a(f"v_mul_f32 v{150+i}, v{150+i}, v162")
    for i in range(10): mkA(164 + 4*i, 150 + i)
    estamp(8)
    a("s_waitcnt vmcnt(5)")
    estamp(9)
    for rb in range(10):
        mfma(vD, 164 + 4*rb, vK + 4*rb, rb == 0)
    a("s_cmp_lg_u32 s10, 0")
    a("s_waitcnt vmcnt(0)")
    a("s_cbranch_scc1 L_mh1")
    for rb in range(5):
        mfma(vD + 4, 164 + 4*rb, vK + 40 + 4*rb, rb == 0)
    a("s_branch L_mh2")
    a("L_mh1:")
    for rb in range(5):
        mfma(vD + 4, 184 + 4*rb, vK + 40 + 4*rb, rb == 0)
    a("L_mh2:")
    stamp(4)
    comb2(vD, vD + 4)
    set_exec("0x00ff00ff", "0x00ff00ff")
    a(f"ds_write_b128 v24, {vr(vD)} offset:{L_ST}")
    a(f"buffer_store_dwordx4 {vr(vD)}, v24, {sWS}, s14 offen")
    a("L_lq:")
    if warm & 2:
        for k in (4, 5, 6):
            a(f"s_cmp_eq_u32 {sWAVE}, {k}")
            a(f"s_cbranch_scc1 L_pad{k}")
    a("L_lq2:")
    exec_all()
    a("s_waitcnt lgkmcnt(0)")
    a("s_barrier    ; barrier H1")
    a("s_branch L_stream")

    c("---- wave 7 at the start")
    a("L_w7:")
    zero_stamps()
    a("s_add_u32 s8, s8, 16")
    lane_consts()
    a("s_waitcnt lgkmcnt(0)")
    srd(sWS, 38, WS_USED)
    a(f"s_lshl_b32 s12, {sX8}, 5")
    a("v_mov_b32 v31, 0")
    a("s_barrier    ; barrier 0")
    a("s_load_dword s11, s[36:37], s12")
    c("answer the roll call if this workgroup runs on the XCD that member 31 announced")
    srd(sDBG, 36, 256)
    a("s_getreg_b32 s10, hwreg(HW_REG_XCC_ID, 0, 4)")
    a(f"s_mul_i32 s13, {sX8}, {CTS}")
    a(f"s_add_u32 s13, s13, {CT}")
    a("s_add_u32 s10, s10, 1")
    a("s_mov_b64 exec, 1")
    a("v_mov_b32 v29, 1")
    a("s_waitcnt lgkmcnt(0)")
    a("s_cmp_lg_u32 s11, 0")
    a("s_cbranch_scc1 L_r1")
    def body():
        a(f"buffer_load_dword v28, off, {sDBG}, s12 sc1")
        a("s_waitcnt vmcnt(0)")
    poll(body, lambda: a("v_cmp_eq_u32 vcc, 0, v28"), 8)
    a("v_readfirstlane_b32 s11, v28")
    a("L_r1:")
    a(f"s_cmp_eq_u32 s11, {'0' if force_global else 's10'}")
    a("s_cbranch_scc1 L_r2")
    a(f"ds_write_b32 v31, v29 offset:{L_MODE}")
    a("s_branch L_r3")
    a("L_r2:")
    a("v_mov_b32 v28, 2")
    a(f"ds_write_b32 v31, v28 offset:{L_MODE}")
    a(f"s_add_u32 s13, s13, {sI}")
    a(f"buffer_store_byte v29, off, {sWS}, s13")
    a("L_r3:")
    stamp(5)
    a(f"s_cmp_lg_u32 {sI}, 31")
    a("s_cbranch_scc1 L_lq")
    c("member 31 zeroes 12 accumulator segments and counts its team as ready")
    exec_all()
    for r in range(4): a(f"v_mov_b32 v{144+r}, 0")
    a(f"v_lshrrev_b32 v28, 2, {vL}")
    a("v_lshlrev_b32 v28, 2, v28")
    a(f"v_add_lshl_u32 v28, v28, {vL}, 4")
    a(f"s_mul_i32 s11, {sX8}, {12*128}")
    a(f"s_add_u32 s11, s11, {AM}")
    a("s_mov_b32 exec_hi, 0xffff")
    a(f"buffer_store_dwordx4 v[144:147], v28, {sWS}, s11 offen sc1")
    a("s_mov_b32 s6, 1")
    a("s_waitcnt vmcnt(0)")
    a("s_atomic_add s6, s[36:37], 4")
    a("s_branch L_lq")

    a("@@late_end")
    c("---- wave 0 after its K pass: wait until all 32 members have answered or someone has called it off")
    pad(2, "L_e0")
    a("L_qg:")
    srd(sDBG, 36, 256)
    a("v_mov_b32 v31, 0")
    a(f"ds_read_b32 v28, v31 offset:{L_MODE}")
    a(f"s_lshl_b32 s12, {sX8}, 5")
    a(f"s_mul_i32 s14, {sX8}, {TEAM}")
    a(f"v_lshlrev_b32 v31, 4, {vL}")
    a(f"s_mov_b32 {sCNT}, {BOUND}")
    a("s_waitcnt lgkmcnt(0)")
    a("v_cmp_eq_u32 vcc, 1, v28")
    a("s_cbranch_vccnz L_qgg")
    a("s_mov_b64 exec, 0xff")
    a("s_cmp_eq_u32 s27, 2")
    a("s_cbranch_scc1 L_qgi")
    a("L_qgh:")
    a(f"buffer_load_dword v27, v29, {sWS}, s13 offen sc1")
    a("L_qgi:")
    a("s_waitcnt vmcnt(0)")
    a("v_cmp_ne_u32 vcc, 0x01010101, v27")
    a("s_cbranch_vccz L_qgl")
    a(f"s_sub_u32 {sCNT}, {sCNT}, 1")
    a("s_cbranch_scc1 L_qgl")
    a(f"s_cmp_gt_u32 {sCNT}, {BOUND-2}")
    a("s_cbranch_scc1 L_qgh")
    a(f"buffer_load_dword v28, off, {sDBG}, s12 offset:8 sc1")
    a("s_waitcnt vmcnt(0)")
    a("v_cmp_eq_u32 vcc, 0, v28")
    a("s_cbranch_vccnz L_qgh")
    c("the team spans several XCDs: mark and send again with write-through stores, count the arrivals in d_debug")
    a("L_qgg:")
    exec_all()
    for r in range(4): a(f"v_mov_b32 v{vV+r}, -1")
    a(f"s_lshr_b32 s11, {sI}, 4")
    a("s_mul_i32 s11, s11, 12288")
    a(f"s_and_b32 s7, {sI}, 15")
    a("s_lshl4_add_u32 s11, s7, s11")
    a("s_add_u32 s11, s11, s14")
    a(f"s_add_u32 s70, s11, {TG-4096}")
    a(f"v_lshlrev_b32 v30, 4, v{vPUB}")
    a(f"s_mul_i32 s71, {sI}, {SLOT}")
    a("s_add_u32 s71, s71, s14")
    a(f"buffer_store_dwordx4 {vr(vV)}, v31, {sWS}, s71 offen offset:2048 sc1")
    a("s_mov_b32 exec_hi, 0")
    a(f"buffer_store_dwordx4 {vr(vV)}, v31, {sWS}, s71 offen offset:{SO} sc1")
    a(f"s_cmp_ge_u32 {sI}, 16")
    a("s_cbranch_scc1 L_qgm")
    a(f"s_lshl_b32 s11, {sI}, 7")
    a("s_add_u32 s11, s11, s14")
    a(f"s_add_u32 s11, s11, {TML}")
    a("s_mov_b64 exec, 0xff")
    a(f"buffer_store_dwordx4 {vr(vV)}, v31, {sWS}, s11 offen sc1")
    a("L_qgm:")
    set_exec("0x00ff00ff", "0x00ff00ff")
    a("s_waitcnt lgkmcnt(0)")
    for j in range(3):
        a(f"buffer_store_dwordx4 {vr(vV + 64 + 4*j)}, v{vPUB}, {sWS}, s71 offen offset:{512*j} sc1")
    a("s_mov_b32 s11, 1")
    a("s_add_u32 s7, s12, 8")
    a("s_waitcnt vmcnt(0)")
    a("s_atomic_add s11, s[36:37], s7 glc")
    a("s_waitcnt lgkmcnt(0)")
    a("s_mov_b64 exec, 1")
    def body():
        a(f"buffer_load_dword v28, off, {sDBG}, s12 offset:8 sc1")
        a("s_waitcnt vmcnt(0)")
    poll(body, lambda: a("v_cmp_gt_u32 vcc, 32, v28"), 4)
    a("s_mov_b32 s27, 2")
    a("s_branch L_qgd")
    pad(3, "L_e0")
    a("L_qgl:")
    a("s_mov_b32 s27, 1")
    a("L_qgd:")
    stamp(5)
    c("sum the eight q partials of both heads")
    set_exec(-1, "0xffff")
    a(f"s_lshr_b32 s12, {sI}, 4")
    a(f"s_mul_i32 s12, s12, {8*SLOT}")
    a("s_add_u32 s11, s14, s12")
    a(f"v_lshrrev_b32 v28, 4, {vL}")
    a("v_lshl_add_u32 v31, v28, 8, v31")
    a(f"v_and_b32 v29, 8, {vL}")
    a(f"v_add_u32 v29, v29, v{vPUB}")
    def q_sum(hb):
        for step in (16, 8, 4):
            for j in range(0, step, 2):
                a(f"v_pk_add_f32 {vr(vV+hb+j,2)}, {vr(vV+hb+j,2)}, {vr(vV+hb+step+j,2)}")
        a(f"v_cvt_pk_bf16_f32 v{vV+hb}, v{vV+hb}, v{vV+hb+1}")
        a(f"v_cvt_pk_bf16_f32 v{vV+hb+1}, v{vV+hb+2}, v{vV+hb+3}")
        a(f"ds_write_b64 v29, {vr(vV+hb,2)} offset:{L_Q + 12*hb}")
    def q_flag():
        a("v_mov_b32 v26, 0")
        a("v_mov_b32 v27, s27")
        a("s_waitcnt lgkmcnt(0)")
        a(f"ds_write_b32 v26, v27 offset:{L_FQ}")
    def body():
        a("s_mov_b32 s12, s11")
        for j in range(16):
            a(f"buffer_load_dwordx4 {vr(vV + 4*j)}, v31, {sWS}, s12 offen offset:{SLOT*(j%2)} sc1")
            if j % 2 and j < 15: a(f"s_addk_i32 s12, {10*SLOT if j == 7 else 2*SLOT}")
        a("s_waitcnt vmcnt(0)")
    poll(body, lambda: chk_invalid(range(vV, vV + 64), 28))
    q_sum(0); q_sum(32); q_flag()
    exec_all()
    a("s_branch L_qw")

    a("@@qg_end")
    if stamps:
        a("L_dump:")
        exec_all()
        a("s_waitcnt vmcnt(0)")
        stamp(14)
        a("s_waitcnt lgkmcnt(0)")
        a("v_mov_b32 v4, 0")
        for i in range(15):
            a(f"v_mov_b32 v5, s{72+2*i}")
            a(f"v_cmp_eq_u32 vcc, {i}, v0")
            a("v_cndmask_b32 v4, v4, v5, vcc")
        srd(sWS, 38, "0x10000000")
        a("s_lshl_b32 s7, s2, 3")
        a(f"s_add_u32 s7, s7, {sWAVE}")
        a("s_lshl_b32 s7, s7, 6")
        a(f"s_add_u32 s7, s7, {STAMP_OFF}")
        a("v_lshlrev_b32 v3, 2, v0")
        a("s_mov_b64 exec, 0xffff")
        a(f"buffer_store_dword v4, v3, {sWS}, s7 offen")
    a("L_end:")
    a("s_endpgm")
    A.raw('.section .rodata,"a"')
    A.raw(".p2align 6")
    A.raw(f".amdhsa_kernel {KNAME}")
    A.raw("  .amdhsa_next_free_vgpr 256")
    A.raw("  .amdhsa_next_free_sgpr 102")
    A.raw("  .amdhsa_accum_offset 256")
    A.raw("  .amdhsa_group_segment_fixed_size 0")
    A.raw("  .amdhsa_kernarg_size 96")
    A.raw("  .amdhsa_user_sgpr_count 2")
    A.raw("  .amdhsa_user_sgpr_kernarg_segment_ptr 1")
    A.raw("  .amdhsa_system_sgpr_workgroup_id_x 1")
    A.raw("  .amdhsa_float_denorm_mode_32 3")
    A.raw(".end_amdhsa_kernel")
    it = A.items
    ix = {k: it.index("@@" + k) for k in ("start_end", "early_begin", "late_begin", "late_end", "qg_end")}
    head, stream = it[:ix["start_end"]], it[ix["start_end"]+1:ix["early_begin"]]
    early, late = it[ix["early_begin"]+1:ix["late_begin"]], it[ix["late_begin"]+1:ix["late_end"]]
    qg, rest = it[ix["late_end"]+1:ix["qg_end"]], it[ix["qg_end"]+1:]
    note = early.pop()
    A.items = head + ["s_branch L_e0", note] + late + [".p2align 12"] + stream + [".p2align 12"] + qg + early + rest
    return A.finalize()

if __name__ == "__main__":
    out = sys.argv[1]
    kw = {}
    for x in sys.argv[2:]:
        k, v = x.split("=")
        kw[k] = eval(v) if v[0].isdigit() or v[0] in "([" or v in ("True", "False") else v
    open(out, "w").write(gen(**kw))
```
